```python
import torch

def _softmax(x, axis=-1):
    return torch.softmax(x, dim=axis)
def _gelu(x):
    return torch.nn.functional.gelu(x, approximate="tanh")
def _silu(x):
    return torch.nn.functional.silu(x)
def _sigmoid(x):
    return torch.sigmoid(x)
def _layernorm(x, axis=-1, eps=1e-5):
    m = x.mean(dim=axis, keepdim=True)
    v = x.var(dim=axis, keepdim=True, unbiased=False)
    return (x - m) / torch.sqrt(v + eps)
def _scatter_add(tgt, idx, src, axis=0):
    return tgt.clone().index_add_(axis, idx, src)
def _segment_sum(src, seg, n):
    out = torch.zeros((n,) + src.shape[1:], dtype=src.dtype)
    return out.index_add_(0, seg, src)
def _pad(x, pw):
    flat = tuple(v for pair in reversed(pw) for v in pair)
    return torch.nn.functional.pad(x, flat)

kernel_name = 'sequential_preLN__sliding_block_cached__swiglu_ffn__decode'

def setup_inputs():

    _w = (lambda a: (lambda t: t.to(torch.bfloat16) if t.is_floating_point() else t)(torch.as_tensor(a)))
    def _A_setup():
        B, Sq, D = 4, 1, 448
        Hq, Hkv, Sk, Dh = 16, 8, 4096, 256
        assert Hq % Hkv == 0, (Hq, Hkv)
        return {
            "x": _w((lambda *s: torch.randn(*s, dtype=torch.bfloat16) * 0.05)(B, Sq, D)),
            "k_cache": _w((lambda *s: torch.randn(*s, dtype=torch.bfloat16) * 3.2)(B, Hkv, Sk, Dh)),
            "v_cache": _w((lambda *s: torch.randn(*s, dtype=torch.bfloat16) * 0.4)(B, Hkv, Sk, Dh)),
            "wq": _w((lambda *s: torch.randn(*s, dtype=torch.bfloat16) * 3.2)(D, Hq * Dh) * (D ** -0.5)),
            "wo": _w((lambda *s: torch.randn(*s, dtype=torch.bfloat16) * 0.4)(Hq * Dh, D) * ((Hq * Dh) ** -0.5)),
        }
    _A_in = _A_setup()

    def _B_setup():
        B, S, D, F = 4, 1, 448, 1792
        return {
            "x": _w((lambda *s: torch.randn(*s, dtype=torch.bfloat16) * 0.05)(B, S, D)),
            "w_gate": _w((lambda *s: torch.randn(*s, dtype=torch.bfloat16) * 0.05)(D, F)),
            "w_up": _w((lambda *s: torch.randn(*s, dtype=torch.bfloat16) * 0.05)(D, F)),
            "w_down": _w((lambda *s: torch.randn(*s, dtype=torch.bfloat16) * 0.05)(F, D)),
        }
    _B_in = _B_setup()

    return {
        "A_x": _A_in["x"],
        "A_k_cache": _A_in["k_cache"],
        "A_v_cache": _A_in["v_cache"],
        "A_wq": _A_in["wq"],
        "A_wo": _A_in["wo"],
        "B_x": _B_in["x"],
        "B_w_gate": _B_in["w_gate"],
        "B_w_up": _B_in["w_up"],
        "B_w_down": _B_in["w_down"],
    }

def reference(A_x, A_k_cache, A_v_cache, A_wq, A_wo, B_x, B_w_gate, B_w_up, B_w_down):
    def _A_ref(x, k_cache, v_cache, wq, wo):
        B, Sq, D = x.shape
        Hq, Dh = 16, 256
        Hkv, Sk = k_cache.shape[1], k_cache.shape[2]
        W = min(4096, max(256, Sk // 4))
        rep = Hq // Hkv
        q = (lambda x, *d: x.permute(*d))((x @ wq).reshape(B, Sq, Hq, Dh), 0, 2, 1, 3)
        k = (lambda x, n, axis: torch.repeat_interleave(x, n, dim=axis))(k_cache[:, :, Sk - W:, :], rep, axis=1)
        v = (lambda x, n, axis: torch.repeat_interleave(x, n, dim=axis))(v_cache[:, :, Sk - W:, :], rep, axis=1)
        scores = torch.einsum("bhqd,bhkd->bhqk", q, k) * (Dh ** -0.5)
        p = _softmax(scores, axis=-1)
        o = torch.einsum("bhqk,bhkd->bhqd", p, v)
        return (lambda x, *d: x.permute(*d))(o, 0, 2, 1, 3).reshape(B, Sq, Hq * Dh) @ wo

    def _B_ref(x, w_gate, w_up, w_down):
        g = _silu(x @ w_gate)
        u = x @ w_up
        return (g * u) @ w_down

    x = A_x
    h = x + _A_ref(_layernorm(x, axis=-1), A_k_cache, A_v_cache, A_wq, A_wo)
    h2 = h + _B_ref(_layernorm(h, axis=-1), B_w_gate, B_w_up, B_w_down)
    return h2
```

```python
NAME = "sequential_preLN__sliding_block_cached__swiglu_ffn__decode_kernel"
class Asm:
    def __init__(self):
        self.lines = []
    def __call__(self, s, *a):
        self.lines.append("    " + (s % a if a else s))
    def label(self, l):
        self.lines.append(l + ":")
    def comment(self, c):
        self.lines.append("    ; " + c)
    def text(self):
        return "\n".join(self.lines) + "\n"

def wrap(body, grid, block, lds, vgpr=256, sgpr=102, accum=None, name=NAME, header=""):
    if accum is None:
        accum = min(256, (vgpr + 3)//4*4)
    return f"""{header}; @launch grid=({grid},1,1) block=({block},1,1) lds={lds}
.amdgcn_target "amdgcn-amd-amdhsa--gfx950"
.text
.globl {name}
.p2align 8
.type {name},@function
{name}:
{body}
.section .rodata,"a"
.p2align 6
.amdhsa_kernel {name}
  .amdhsa_next_free_vgpr {vgpr}
  .amdhsa_next_free_sgpr {sgpr}
  .amdhsa_accum_offset {accum}
  .amdhsa_group_segment_fixed_size 0
  .amdhsa_kernarg_size 96
  .amdhsa_user_sgpr_count 2
  .amdhsa_user_sgpr_kernarg_segment_ptr 1
  .amdhsa_system_sgpr_workgroup_id_x 1
.end_amdhsa_kernel
"""
```

```python
import sys
from asmgen import Asm, NAME

WS_EPOCH = 0x0
WS_FLAGS = 0x1000
WS_Q = 0x2000
WS_SC = 0x20000
WS_H = 0x40000
WS_A = 0x80000
WS_C = 0x100000
WS_TS = 0x180000
WS_SIZE = 0x200000
NF = 56
HREP_STRIDE = 4096
OOB = 0x40000000

RINGK = 0
RINGO = 32768
BIG = 65536
GT = BIG
UT = BIG + 28672
DT = BIG + 57344
SH = 151552
XN = SH
XN_STR = 960
QS = SH + 3840
QS_STR = 576
PS = SH + 4992
PS_STR = 1088
OS = SH + 7168
OS_STR = 320
ACT = SH + 8448
ZERO = SH + 8704
FL = SH + 8768
LDS_TOTAL = SH + 8832
F_TAG, F_XN, F_Q, F_SC, F_P, F_OS, F_KISS = 0, 4, 8, 12, 16, 20, 24

LOG2E = 1.4426950408889634


def f32(x):
    import struct
    return "0x%08x" % struct.unpack("<I", struct.pack("<f", x))[0]


class Cfg:
    diag = False
    pol_kv = "nt"
    pol_wq = ""
    pol_wo = ""
    pol_ffn = ""
    kiss_batch = 1
    hrep = 2
    poll_max = 1 << 20
    ffn_thr = 8


class Gen:
    def __init__(self, cfg):
        self.c = cfg
        self.a = Asm()
        self.uid = 0

    def lbl(self, base):
        self.uid += 1
        return "L_%s_%d" % (base, self.uid)

    def stamp(self, k):
        if self.c.diag:
            a = self.a
            a("s_memrealtime s[%d:%d]" % (72 + 2 * k, 73 + 2 * k))
            a("s_waitcnt lgkmcnt(0)")

    def stamps_init(self):
        if self.c.diag:
            for k in range(12):
                self.a("s_mov_b32 s%d, 0" % (72 + 2 * k))

    def finish(self):
        a = self.a
        if self.c.diag:
            a("s_branch L_DIAG_END")
        else:
            a("s_endpgm")

    def srd(self, d, ptr, off_sreg, nrec):
        a = self.a
        if off_sreg is None:
            a("s_mov_b32 s%d, s%d" % (d, ptr))
            a("s_mov_b32 s%d, s%d" % (d + 1, ptr + 1))
        else:
            a("s_add_u32 s%d, s%d, %s" % (d, ptr, off_sreg))
            a("s_addc_u32 s%d, s%d, 0" % (d + 1, ptr + 1))
        a("s_mov_b32 s%d, %d" % (d + 2, nrec))
        a("s_mov_b32 s%d, 0x20000" % (d + 3))

    def dma(self, voff, srd, soff, m0, pol):
        a = self.a
        if isinstance(m0, tuple):
            a("s_add_u32 m0, %s, %d" % m0)
        else:
            a("s_mov_b32 m0, %d" % m0)
        if isinstance(soff, tuple):
            a("s_add_u32 s15, %s, %d" % soff)
        else:
            a("s_mov_b32 s15, %d" % soff)
        a("buffer_load_dwordx4 %s, s[%d:%d], s15 offen%s lds" % (voff, srd, srd + 3, (" " + pol) if pol else ""))

    def wait_flag(self, vfl, off, n, vt, sleep=0):
        a = self.a
        l = self.lbl("wf")
        a.label(l)
        if sleep:
            a("s_sleep %d" % sleep)
        a("ds_read_b32 %s, %s offset:%d" % (vt, vfl, off))
        a("s_waitcnt lgkmcnt(0)")
        a("v_readfirstlane_b32 s14, %s" % vt)
        a("s_cmp_ge_u32 s14, %d" % n)
        a("s_cbranch_scc0 %s" % l)

    def signal(self, vfl, off, vone):
        a = self.a
        a("s_mov_b64 exec, 1")
        a("ds_add_u32 %s, %s offset:%d" % (vfl, vone, off))
        a("s_mov_b64 exec, -1")

    def tr_addrs(self, dst, base_sreg_or_int, t0, t1, t2):
        a = self.a
        a("v_lshrrev_b32 %s, 2, v0" % t0)
        a("v_bfe_u32 %s, v0, 3, 2" % t1)
        a("v_and_b32 %s, 3, v0" % t2)
        a("v_lshlrev_b32 %s, 7, %s" % (t0, t0))
        a("v_lshl_add_u32 %s, %s, 3, %s" % (t0, t2, t0))
        a("v_add_u32 %s, %s, %s" % (t0, base_sreg_or_int, t0))
        for n in range(4):
            a("v_xor_b32 %s, %d, %s" % (t2, n, t1))
            a("v_lshl_add_u32 v%d, %s, 5, %s" % (dst + n, t2, t0))

    def tile_reads(self, dst, addr0, off):
        a = self.a
        for n in range(4):
            for hh in range(2):
                r = dst + 4 * n + 2 * hh
                a("ds_read_b64_tr_b16 v[%d:%d], v%d offset:%d" % (r, r + 1, addr0 + n, off + hh * 2048))

    def mfma(self, d, A, B, first):
        self.a("v_mfma_f32_16x16x32_bf16 v[%d:%d], v[%d:%d], v[%d:%d], %s" % (
            d, d + 3, A, A + 3, B, B + 3, "0" if first else "v[%d:%d]" % (d, d + 3)))

    def wave_reduce2(self, op, x, y):
        a = self.a
        for ctl in ("row_shr:1", "row_shr:2", "row_shr:4", "row_shr:8"):
            a("s_nop 0")
            for r in (x, y):
                a("%s_dpp %s, %s, %s %s row_mask:0xf bank_mask:0xf" % (op, r, r, r, ctl))
        for ctl in ("row_bcast:15 row_mask:0xa", "row_bcast:31 row_mask:0xc"):
            a("s_nop 0")
            for r in (x, y):
                a("%s_dpp %s, %s, %s %s bank_mask:0xf" % (op, r, r, r, ctl))

    def wave_reduce1(self, op, x):
        a = self.a
        for ctl in ("row_shr:1", "row_shr:2", "row_shr:4", "row_shr:8"):
            a("s_nop 1")
            a("%s_dpp %s, %s, %s %s row_mask:0xf bank_mask:0xf" % (op, x, x, x, ctl))
        for ctl in ("row_bcast:15 row_mask:0xa", "row_bcast:31 row_mask:0xc"):
            a("s_nop 1")
            a("%s_dpp %s, %s, %s %s bank_mask:0xf" % (op, x, x, x, ctl))

    def layernorm(self, src, f, t):
        a = self.a
        for k in range(4):
            a("v_lshlrev_b32 v%d, 16, v%d" % (f + 2 * k, src + k))
            a("v_and_b32 v%d, 0xffff0000, v%d" % (f + 2 * k + 1, src + k))
        a("v_readfirstlane_b32 s56, v%d" % f)
        a("v_mov_b32 v%d, 0" % (t + 8))
        a("v_mov_b32 v%d, 0" % (t + 9))
        a("s_mov_b32 exec_hi, 0x00ffffff")
        for k in range(4):
            a("v_pk_add_f32 v[%d:%d], v[%d:%d], s[56:57] op_sel_hi:[1,0] neg_lo:[0,1] neg_hi:[0,1]" % (
                t + 2 * k, t + 2 * k + 1, f + 2 * k, f + 2 * k + 1))
        a("v_pk_mul_f32 v[%d:%d], v[%d:%d], v[%d:%d]" % (t + 10, t + 11, t, t + 1, t, t + 1))
        for k in range(1, 4):
            a("v_pk_fma_f32 v[%d:%d], v[%d:%d], v[%d:%d], v[%d:%d]" % (
                t + 10, t + 11, t + 2 * k, t + 2 * k + 1, t + 2 * k, t + 2 * k + 1, t + 10, t + 11))
        a("v_pk_add_f32 v[%d:%d], v[%d:%d], v[%d:%d]" % (t, t + 1, t, t + 1, t + 2, t + 3))
        a("v_pk_add_f32 v[%d:%d], v[%d:%d], v[%d:%d]" % (t + 4, t + 5, t + 4, t + 5, t + 6, t + 7))
        a("v_pk_add_f32 v[%d:%d], v[%d:%d], v[%d:%d]" % (t, t + 1, t, t + 1, t + 4, t + 5))
        a("v_add_f32 v%d, v%d, v%d" % (t + 9, t + 10, t + 11))
        a("v_add_f32 v%d, v%d, v%d" % (t + 8, t, t + 1))
        a("s_mov_b64 exec, -1")
        S, Q = "v%d" % (t + 8), "v%d" % (t + 9)
        a("s_nop 0")
        self.wave_reduce2("v_add_f32", Q, S)
        a("s_nop 0")
        a("v_readlane_b32 s58, %s, 63" % Q)
        a("v_readlane_b32 s57, %s, 63" % S)
        a("v_mov_b32 v%d, %s" % (t + 2, f32(1.0 / 448)))
        a("v_mul_f32 v%d, s58, v%d" % (t + 1, t + 2))
        a("v_mul_f32 v%d, s57, v%d" % (t, t + 2))
        a("v_fma_f32 v%d, -v%d, v%d, v%d" % (t + 1, t, t, t + 1))
        a("v_add_f32 v%d, s56, v%d" % (t, t))
        a("v_max_f32 v%d, 0, v%d" % (t + 1, t + 1))
        a("v_cvt_pk_bf16_f32 v%d, v%d, v%d" % (t + 2, t, t + 1))
        a("v_and_b32 v%d, 0xffff0000, v%d" % (t + 1, t + 2))
        a("v_lshlrev_b32 v%d, 16, v%d" % (t, t + 2))
        a("v_add_f32 v%d, %s, v%d" % (t + 1, f32(1e-5), t + 1))
        a("v_cvt_pk_bf16_f32 v%d, v%d, v%d" % (t + 1, t + 1, t + 1))
        a("v_lshlrev_b32 v%d, 16, v%d" % (t + 1, t + 1))
        a("v_sqrt_f32 v%d, v%d" % (t + 1, t + 1))
        for k in range(4):
            a("v_pk_add_f32 v[%d:%d], v[%d:%d], v[%d:%d] op_sel_hi:[1,0] neg_lo:[0,1] neg_hi:[0,1]" % (
                f + 2 * k, f + 2 * k + 1, f + 2 * k, f + 2 * k + 1, t, t + 1))
        a("v_cvt_pk_bf16_f32 v%d, v%d, v%d" % (t + 2, t + 1, t + 1))
        a("v_lshlrev_b32 v%d, 16, v%d" % (t + 2, t + 2))
        a("v_rcp_f32 v%d, v%d" % (t + 2, t + 2))
        for k in range(4):
            a("v_cvt_pk_bf16_f32 v%d, v%d, v%d" % (src + k, f + 2 * k, f + 2 * k + 1))
        for k in range(4):
            a("v_lshlrev_b32 v%d, 16, v%d" % (f + 2 * k, src + k))
            a("v_and_b32 v%d, 0xffff0000, v%d" % (f + 2 * k + 1, src + k))
        for k in range(4):
            a("v_pk_mul_f32 v[%d:%d], v[%d:%d], v[%d:%d] op_sel_hi:[1,0]" % (
                f + 2 * k, f + 2 * k + 1, f + 2 * k, f + 2 * k + 1, t + 2, t + 3))
        for k in range(4):
            a("v_cvt_pk_bf16_f32 v%d, v%d, v%d" % (src + k, f + 2 * k, f + 2 * k + 1))

    def inbox_reduce(self, nl, voff, soff, L, T, out):
        a = self.a
        top, ok, chk = self.lbl("rp"), self.lbl("rok"), self.lbl("rchk")
        a("s_mov_b32 s13, 0")
        a.label(top)
        for i in range(nl):
            if i < 4:
                a("buffer_load_dwordx4 v[%d:%d], %s, s[48:51], %s offen offset:%d sc1" % (L + 4 * i, L + 4 * i + 3, voff, soff[0], i * 1024))
            else:
                a("buffer_load_dwordx4 v[%d:%d], %s, s[48:51], %s offen offset:%d sc1" % (L + 4 * i, L + 4 * i + 3, voff, soff[1], (i - 4) * 1024))

        def padd(d, x, y):
            for h in (0, 2):
                a("v_pk_add_f32 v[%d:%d], v[%d:%d], v[%d:%d]" % (d + h, d + h + 1, x + h, x + h + 1, y + h, y + h + 1))
        for k in range(nl // 2):
            a("s_waitcnt vmcnt(%d)" % (nl - 2 - 2 * k))
            padd(T + 4 * k, L + 8 * k, L + 8 * k + 4)
        padd(T, T, T + 4)
        if nl == 8:
            padd(T + 8, T + 8, T + 12)
        else:
            a("s_waitcnt vmcnt(0)")
            padd(T + 8, T + 8, L + 24)
        padd(T, T, T + 8)
        a("s_nop 1")
        a("v_permlane16_swap_b32 v%d, v%d" % (T, T + 1))
        a("v_permlane16_swap_b32 v%d, v%d" % (T + 2, T + 3))
        a("v_add_f32 v%d, v%d, v%d" % (T, T, T + 1))
        a("v_add_f32 v%d, v%d, v%d" % (T + 2, T + 2, T + 3))
        a("s_nop 1")
        a("v_permlane32_swap_b32 v%d, v%d" % (T, T + 2))
        a("v_add_f32 v%d, v%d, v%d" % (T, T, T + 2))
        a("s_nop 1")
        a("v_add_f32_dpp %s, v%d, v%d row_ror:8 row_mask:0xf bank_mask:0xf" % (out, T, T))
        a("v_cmp_u_f32 vcc, %s, %s" % (out, out))
        a("s_cbranch_vccz %s" % ok)
        a("s_add_u32 s13, s13, 1")
        a("s_and_b32 s14, s13, 15")
        a("s_cbranch_scc1 %s" % top)
        regs = [L + i for i in range(4 * nl)]
        a("v_max_u32 v%d, v%d, v%d" % (T + 4, regs[0], regs[1]))
        for i in range(2, 4 * nl, 2):
            a("v_max3_u32 v%d, v%d, v%d, v%d" % (T + 4, T + 4, regs[i], regs[i + 1]))
        a("v_cmp_eq_u32 vcc, -1, v%d" % (T + 4))
        a("s_cbranch_vccz %s" % ok)
        a("s_cmp_lt_u32 s13, %d" % self.c.poll_max)
        a("s_cbranch_scc1 %s" % top)
        a.label(ok)

    def build(self):
        a, c = self.a, self.c
        a("s_cmp_ge_u32 s2, 256")
        a("s_cbranch_scc1 L_END")
        a("s_load_dwordx16 s[16:31], s[0:1], 0")
        a("s_load_dwordx8 s[32:39], s[0:1], 64")
        self.stamps_init()
        if c.diag:
            a("s_memrealtime s[72:73]")
        a("v_lshrrev_b32 v1, 6, v0")
        a("v_and_b32 v0, 63, v0")
        a("v_readfirstlane_b32 s3, v1")
        a("s_and_b32 s4, s2, 7")
        a("s_lshr_b32 s5, s2, 3")
        a("s_lshr_b32 s6, s2, 6")
        a("s_and_b32 s7, s5, 7")
        a("s_lshr_b32 s8, s7, 1")
        a("s_and_b32 s9, s7, 1")
        a("s_lshl_b32 s10, s6, 3")
        a("s_add_u32 s10, s10, s4")
        a("s_and_b32 s11, s3, 3")
        a("s_cmp_lt_u32 s3, 4")
        a("s_cbranch_scc1 L_SROLE")
        a("s_cmp_ge_u32 s3, 8")
        a("s_cbranch_scc1 L_OROLE")
        self.k_role()
        self.o_role()
        self.s_role()
        if c.diag:
            a.label("L_DIAG_END")
            a("s_memrealtime s[94:95]")
            a("s_waitcnt lgkmcnt(0)")
            a("s_mov_b64 exec, -1")
            for k in range(12):
                a("v_mov_b32 v%d, s%d" % (4 + k, 72 + 2 * k))
            a("s_mul_i32 s14, s2, 12")
            a("s_add_u32 s14, s14, s3")
            a("s_lshl_b32 s14, s14, 6")
            a("s_add_u32 s14, s14, %d" % WS_TS)
            a("v_mov_b32 v1, 0")
            a("s_mov_b64 exec, 1")
            for k in range(3):
                a("buffer_store_dwordx4 v[%d:%d], v1, s[48:51], s14 offen offset:%d" % (4 + 4 * k, 7 + 4 * k, 16 * k))
            a("s_waitcnt vmcnt(0)")
        a.label("L_END")
        a("s_endpgm")
        return a.text()

    def k_issue(self, b):
        c = self.c
        for k in range(4):
            m0 = ("s12", (b & 1) * 4096 + k * 1024)
            if b < 4:
                i = 4 * b + k
                u, dseg, half = i >> 3, (i >> 1) & 3, i & 1
                self.dma("v2" if half else "v1", 40, u * 8192 + dseg * 128, m0, c.pol_kv)
            else:
                i = 4 * (b - 4) + k
                self.dma("v3", 44, i * 4096, m0, c.pol_kv)

    def k_role(self):
        a, c = self.a, self.c
        KF, VF, QF, SA = 16, 80, 144, 160
        a("v_lshrrev_b32 v13, 3, v0")
        a("v_and_b32 v14, 7, v0")
        a("v_lshrrev_b32 v15, 1, v13")
        a("v_xor_b32 v1, v14, v15")
        a("v_lshlrev_b32 v1, 4, v1")
        a("v_lshl_add_u32 v1, v13, 9, v1")
        a("v_xor_b32 v2, 64, v1")
        a("v_add_u32 v2, 4096, v2")
        a("v_lshlrev_b32 v3, 1, v15")
        a("v_xor_b32 v3, v14, v3")
        a("v_lshlrev_b32 v3, 4, v3")
        a("v_lshl_add_u32 v3, v13, 9, v3")
        a("s_lshl_b32 s12, s11, 13")
        a("s_lshl_b32 s56, s10, 21")
        a("s_add_u32 s56, s56, 0x180000")
        a("s_lshl_b32 s57, s7, 16")
        a("s_lshl_b32 s58, s11, 14")
        a("s_add_u32 s57, s57, s58")
        a("s_add_u32 s57, s57, s56")
        a("s_lshl_b32 s58, s9, 18")
        a("s_lshl_b32 s59, s11, 16")
        a("s_add_u32 s58, s58, s59")
        a("s_lshl_b32 s59, s8, 7")
        a("s_add_u32 s58, s58, s59")
        a("s_add_u32 s58, s58, s56")
        a("s_waitcnt lgkmcnt(0)")
        self.srd(40, 18, "s57", 16384)
        self.srd(44, 20, "s58", 127 * 512 + 128)
        self.k_issue(0)
        self.k_issue(1)
        self.srd(48, 38, None, WS_SIZE)
        a("v_and_b32 v13, 15, v0")
        a("v_lshrrev_b32 v14, 4, v0")
        a("v_lshrrev_b32 v15, 1, v13")
        a("v_xor_b32 v4, v14, v15")
        a("v_lshlrev_b32 v4, 4, v4")
        a("v_lshl_add_u32 v4, v13, 7, v4")
        a("v_add_u32 v4, s12, v4")
        a("v_xor_b32 v5, 64, v4")
        a("v_and_b32 v13, 1, v0")
        a("v_mul_u32_u24 v10, %d, v13" % QS_STR)
        a("v_lshl_add_u32 v10, v14, 4, v10")
        a("v_add_u32 v10, %d, v10" % QS)
        a("v_lshlrev_b32 v12, 11, v13")
        a("v_lshl_add_u32 v12, v14, 4, v12")
        self.tr_addrs(6, "s12", "v13", "v14", "v15")
        a("v_mov_b32 v13, %d" % FL)
        a("v_mov_b32 v14, 1")
        a("s_lshl_b32 s59, s10, 12")
        a("s_lshl_b32 s58, s7, 8")
        a("s_add_u32 s59, s59, s58")
        a("s_lshl_b32 s58, s11, 6")
        a("s_add_u32 s59, s59, s58")
        a("s_add_u32 s59, s59, %d" % WS_SC)
        a("s_mov_b32 s60, 0")
        a("s_barrier")
        for b in range(7):
            a("s_waitcnt vmcnt(4)")
            if b < 4:
                for pp in range(2):
                    for tt in range(2):
                        fi = (b >> 1) * 8 + 2 * (2 * (b & 1) + pp) + tt
                        r = KF + 4 * fi
                        a("ds_read_b128 v[%d:%d], v%d offset:%d" % (r, r + 3, 4 + tt, (b & 1) * 4096 + pp * 2048))
            else:
                self.tile_reads(VF + 16 * (b - 4), 6, (b & 1) * 4096)
            if b >= 3:
                a("ds_read_b32 v11, v13 offset:%d" % F_Q)
            a("s_waitcnt lgkmcnt(0)")
            if b + 2 <= 7:
                self.k_issue(b + 2)
            if b == c.kiss_batch:
                self.signal("v13", F_KISS, "v14")
            if b == 3:
                self.stamp(1)
            if 3 <= b <= 5:
                a("s_cmp_lg_u32 s60, 0")
                a("s_cbranch_scc1 L_KRET%d" % b)
                a("v_readfirstlane_b32 s14, v11")
                a("s_mov_b32 s61, %d" % b)
                a("s_cmp_lg_u32 s14, 0")
                a("s_cbranch_scc1 L_SCORES")
                a.label("L_KRET%d" % b)
            if b == 6:
                a("s_cmp_lg_u32 s60, 0")
                a("s_cbranch_scc1 L_KRET6")
                self.wait_flag("v13", F_Q, 1, "v11")
                a("s_mov_b32 s61, 6")
        a.label("L_SCORES")
        self.stamp(2)
        for t in range(4):
            a("ds_read_b128 v[%d:%d], v10 offset:%d" % (QF + 4 * t, QF + 4 * t + 3, t * 64))
        for tp in range(4):
            a("s_waitcnt lgkmcnt(%d)" % (2 if tp < 3 else 0))
            for t in (2 * tp, 2 * tp + 1):
                for u in range(2):
                    self.mfma(SA + 4 * u, KF + 4 * (u * 8 + t), QF + 4 * (t & 3), t == 0)
            if tp < 2:
                for t in (2 * tp + 4, 2 * tp + 5):
                    a("ds_read_b128 v[%d:%d], v10 offset:%d" % (QF + 4 * (t & 3), QF + 4 * (t & 3) + 3, t * 64))
        a("s_nop 7")
        for k in range(4):
            a("v_cvt_pk_bf16_f32 v%d, v%d, v%d" % (QF + k, SA + 2 * k, SA + 2 * k + 1))
        for k in range(4):
            a("v_min_u32 v%d, -2, v%d" % (QF + k, QF + k))
        a("s_mov_b32 exec_lo, 0x00030003")
        a("s_mov_b32 exec_hi, 0x00030003")
        a("buffer_store_dwordx4 v[%d:%d], v12, s[48:51], s59 offen sc1" % (QF, QF + 3))
        self.signal("v13", F_SC, "v14")
        self.stamp(3)
        a("s_mov_b32 s60, 1")
        for b in (3, 4, 5):
            a("s_cmp_eq_u32 s61, %d" % b)
            a("s_cbranch_scc1 L_KRET%d" % b)
        a.label("L_KRET6")
        PF, AC, PK = 16, 32, 48
        a("v_and_b32 v15, 1, v0")
        a("v_mul_u32_u24 v10, %d, v15" % PS_STR)
        a("v_lshrrev_b32 v11, 4, v0")
        a("v_lshl_add_u32 v10, v11, 4, v10")
        a("s_lshl_b32 s14, s11, 8")
        a("s_add_u32 s14, s14, %d" % PS)
        a("v_add_u32 v10, s14, v10")
        a("v_lshlrev_b32 v12, 7, v15")
        a("v_lshl_add_u32 v12, v11, 5, v12")
        a("s_mul_i32 s14, s11, %d" % OS_STR)
        a("s_add_u32 s14, s14, %d" % OS)
        a("v_add_u32 v12, s14, v12")
        self.wait_flag("v13", F_P, 2, "v11")
        self.stamp(4)
        for s in range(4):
            a("ds_read_b128 v[%d:%d], v10 offset:%d" % (PF + 4 * s, PF + 4 * s + 3, s * 64))
        for s in range(3):
            a("s_waitcnt lgkmcnt(%d)" % (3 - s))
            for n in range(4):
                self.mfma(AC + 4 * n, VF + 16 * s + 4 * n, PF + 4 * s, s == 0)
        a("s_waitcnt vmcnt(0)")
        self.stamp(5)
        self.tile_reads(VF + 48, 6, 4096)
        for n in range(4):
            a("s_waitcnt lgkmcnt(%d)" % (6 - 2 * n))
            self.mfma(AC + 4 * n, VF + 48 + 4 * n, PF + 12, False)
        a("s_nop 4")
        for n in range(4):
            if n == 3:
                a("s_nop 1")
            a("v_cvt_pk_bf16_f32 v%d, v%d, v%d" % (PK + 2 * n, AC + 4 * n, AC + 4 * n + 1))
            a("v_cvt_pk_bf16_f32 v%d, v%d, v%d" % (PK + 2 * n + 1, AC + 4 * n + 2, AC + 4 * n + 3))
        a("s_mov_b32 exec_lo, 0x00030003")
        a("s_mov_b32 exec_hi, 0x00030003")
        a("ds_write_b128 v12, v[%d:%d]" % (PK, PK + 3))
        a("ds_write_b128 v12, v[%d:%d] offset:16" % (PK + 4, PK + 7))
        self.signal("v13", F_OS, "v14")
        self.finish()

    def o_issue(self, b):
        pp, s = b >> 2, b & 3
        for ii in range(4):
            rows = 16 * (ii >> 1) + 4 * (ii & 1) + 8 * (s & 1) + 256 * (s >> 1)
            self.dma("v1", 40, ("s57" if pp else "s56", rows * 896), ("s12", (b & 1) * 4096 + ii * 1024), self.c.pol_wo)

    def o_role(self):
        a, c = self.a, self.c
        AF, WF, AC0, AC1, O0, O1 = 8, 24, 152, 24, 40, 44
        a.label("L_OROLE")
        a("v_lshrrev_b32 v8, 3, v0")
        a("v_and_b32 v9, 7, v0")
        a("v_bfe_u32 v10, v0, 4, 2")
        a("v_lshlrev_b32 v10, 1, v10")
        a("v_xor_b32 v9, v9, v10")
        a("v_lshlrev_b32 v9, 4, v9")
        a("v_lshrrev_b32 v10, 2, v8")
        a("v_lshlrev_b32 v10, 5, v10")
        a("v_and_b32 v8, 3, v8")
        a("v_add_u32 v8, v8, v10")
        a("v_mul_u32_u24 v8, 896, v8")
        a("v_add_u32 v1, v8, v9")
        a("s_lshl_b32 s12, s11, 13")
        a("s_add_u32 s12, s12, %d" % RINGO)
        self.tr_addrs(2, "s12", "v8", "v9", "v10")
        a("v_and_b32 v8, 3, v0")
        a("v_mul_u32_u24 v6, %d, v8" % OS_STR)
        a("v_lshrrev_b32 v9, 4, v0")
        a("v_lshl_add_u32 v6, v9, 4, v6")
        a("v_add_u32 v6, %d, v6" % OS)
        a("v_bfe_u32 v8, v0, 3, 1")
        a("v_lshlrev_b32 v7, 13, v8")
        a("v_and_b32 v8, 7, v0")
        a("v_lshl_add_u32 v7, v8, 4, v7")
        a("v_mov_b32 v8, %d" % OOB)
        a("v_cmp_gt_u32 vcc, 16, v0")
        a("s_lshl_b32 s58, s4, 9")
        a("s_lshl_b32 s59, s8, 6")
        a("v_cndmask_b32 v7, v8, v7, vcc")
        a("s_add_u32 s58, s58, s59")
        a("s_mul_i32 s58, s58, 896")
        a("s_lshl_b32 s56, s11, 8")
        a("s_add_u32 s57, s56, 128")
        a("s_mul_i32 s59, s6, 14")
        a("s_lshl_b32 s60, s11, 2")
        a("s_add_u32 s59, s59, s60")
        a("s_lshl_b32 s59, s59, 13")
        a("s_lshl_b32 s60, s4, 3")
        a("s_add_u32 s60, s60, s7")
        a("s_lshl_b32 s60, s60, 7")
        a("s_add_u32 s59, s59, s60")
        a("s_add_u32 s59, s59, %d" % WS_A)
        a("s_add_u32 s60, s59, 16384")
        a("s_cmp_eq_u32 s11, 3")
        a("s_cselect_b32 s57, %d, s57" % OOB)
        a("s_cselect_b32 s60, %d, s60" % OOB)
        a("v_mov_b32 v167, %d" % FL)
        a("s_waitcnt lgkmcnt(0)")
        self.srd(40, 24, "s58", 320 * 896)
        self.srd(48, 38, None, WS_SIZE)
        a("s_barrier")
        self.wait_flag("v167", F_KISS, 4, "v8", sleep=2)
        self.stamp(1)
        self.o_issue(0)
        self.o_issue(1)
        for b in range(8):
            a("s_waitcnt vmcnt(%d)" % (4 if b < 7 else 0))
            self.tile_reads(WF + 16 * b, 2, (b & 1) * 4096)
            a("s_waitcnt lgkmcnt(0)")
            if b + 2 <= 7:
                self.o_issue(b + 2)
        self.stamp(2)
        self.wait_flag("v167", F_OS, 4, "v8")
        self.stamp(3)
        for s in range(4):
            a("ds_read_b128 v[%d:%d], v6 offset:%d" % (AF + 4 * s, AF + 4 * s + 3, s * 64))
        for n in range(4):
            for s in range(4):
                if n == 0:
                    a("s_waitcnt lgkmcnt(%d)" % (3 - s))
                self.mfma(AC0 + 4 * n, AF + 4 * s, WF + 16 * s + 4 * n, s == 0)

        def epi(acc, out, n):
            r = acc + 4 * n
            return ["v_pk_add_f32 v[%d:%d], v[%d:%d], v[%d:%d]" % (r, r + 1, r, r + 1, r + 2, r + 3),
                    "v_add_f32 v%d, v%d, v%d" % (out + n, r, r + 1),
                    "v_min_u32 v%d, -2, v%d" % (out + n, out + n)]
        fill = []
        for n in range(4):
            fill += epi(AC0, O0, n)
        fill.append("buffer_store_dwordx4 v[%d:%d], v7, s[48:51], s59 offen sc1" % (O0, O0 + 3))
        k = 0
        for n in range(4):
            for s in range(4):
                self.mfma(AC1 + 4 * n, AF + 4 * s, WF + 64 + 16 * s + 4 * n, s == 0)
                idx = 4 * n + s
                if idx >= 2 and k < len(fill):
                    a(fill[k]); k += 1
        assert k == len(fill)
        for n in range(3):
            for ins in epi(AC1, O1, n):
                a(ins)
        for ins in epi(AC1, O1, 3):
            a(ins)
        a("buffer_store_dwordx4 v[%d:%d], v7, s[48:51], s60 offen sc1" % (O1, O1 + 3))
        self.stamp(4)
        self.finish()

    def ffn_gu_issue(self, i):
        c = self.c
        self.dma("v20", 40, i * 16 * 3584, GT + i * 1024, c.pol_ffn)
        self.dma("v21", 44, i * 16 * 3584, UT + i * 1024, c.pol_ffn)

    def ffn_gu_setup(self):
        a = self.a
        a("v_lshrrev_b32 v22, 2, v0")
        a("v_mul_u32_u24 v20, 3584, v22")
        a("v_and_b32 v23, 3, v0")
        a("v_lshrrev_b32 v22, 5, v0")
        a("v_xor_b32 v23, v23, v22")
        a("v_lshl_add_u32 v20, v23, 4, v20")
        a("v_xor_b32 v21, 32, v20")
        a("s_lshl_b32 s56, s62, 6")
        self.srd(40, 28, "s56", 447 * 3584 + 64)
        self.srd(44, 30, "s56", 447 * 3584 + 64)

    def s_role(self):
        a, c = self.a, self.c
        a.label("L_SROLE")
        a("s_setprio 2")
        a("v_mov_b32 v2, %d" % FL)
        a("v_mov_b32 v3, 1")
        a("v_lshlrev_b32 v4, 4, v0")
        a("v_mov_b32 v5, %d" % OOB)
        a("v_cmp_gt_u32 vcc, 56, v0")
        a("s_mul_i32 s62, s4, 7")
        a("s_add_u32 s62, s62, s5")
        a("s_sub_u32 s62, s62, 16")
        a("v_cndmask_b32 v5, v5, v4, vcc")
        a("s_sub_u32 s63, s2, 192")
        a("s_mul_i32 s64, s63, 4682")
        a("s_lshr_b32 s64, s64, 16")
        a("s_mul_i32 s65, s64, 14")
        a("s_sub_u32 s65, s63, s65")
        a("s_mov_b32 s66, 3")
        a("s_cmp_lt_u32 s5, 31")
        a("s_cselect_b32 s66, 2, s66")
        a("s_cmp_lt_u32 s5, 24")
        a("s_cselect_b32 s66, 3, s66")
        a("s_cmp_lt_u32 s5, 23")
        a("s_cselect_b32 s66, 1, s66")
        a("s_cmp_lt_u32 s5, 16")
        a("s_cselect_b32 s66, 0, s66")
        a("s_mul_i32 s67, s11, 896")
        a("s_waitcnt lgkmcnt(0)")
        self.srd(48, 38, None, WS_SIZE)
        self.srd(52, 16, None, 3584)
        a("s_cmp_lg_u32 s66, 0")
        a("s_cbranch_scc1 L_S_NOX")
        a("buffer_load_dwordx4 v[8:11], v5, s[52:55], s67 offen")
        a.label("L_S_NOX")
        a("s_cmp_eq_u32 s11, 1")
        a("s_cbranch_scc1 L_S1")
        a("s_cmp_eq_u32 s11, 2")
        a("s_cbranch_scc1 L_S2")
        a("s_cmp_eq_u32 s11, 3")
        a("s_cbranch_scc1 L_S3")
        self.s0()
        self.s1()
        self.s2()
        self.s3()
        self.softmax()
        self.ffn()

    def ln1(self, vm):
        a = self.a
        skip = self.lbl("ln1skip")
        a("s_cmp_lg_u32 s66, 0")
        a("s_cbranch_scc1 %s" % skip)
        a("s_waitcnt vmcnt(%d)" % vm)
        self.layernorm(8, 24, 32)
        a("s_mul_i32 s14, s11, %d" % XN_STR)
        a("s_add_u32 s14, s14, %d" % XN)
        a("v_add_u32 v6, s14, v4")
        a("s_mov_b32 exec_hi, 0x00ffffff")
        a("ds_write_b128 v6, v[8:11]")
        self.signal("v2", F_XN, "v3")
        a.label(skip)

    def s0(self):
        a, c = self.a, self.c
        XF, WF, AC = 48, 104, 136
        a("s_cmp_eq_u32 s66, 1")
        a("s_cbranch_scc1 L_S0_FFN")
        a("s_cmp_lg_u32 s66, 0")
        a("s_cbranch_scc1 L_S0_BAR")
        a("v_lshrrev_b32 v22, 2, v0")
        a("v_lshlrev_b32 v20, 13, v22")
        a("v_and_b32 v23, 3, v0")
        a("v_lshrrev_b32 v22, 5, v0")
        a("v_lshlrev_b32 v22, 1, v22")
        a("v_xor_b32 v23, v23, v22")
        a("v_lshl_add_u32 v20, v23, 4, v20")
        a("s_lshl_b32 s56, s4, 10")
        a("s_lshl_b32 s57, s5, 6")
        a("s_add_u32 s56, s56, s57")
        self.srd(40, 22, "s56", 447 * 8192 + 64)
        for i in range(28):
            self.dma("v20", 40, i * 16 * 8192, BIG + i * 1024, c.pol_wq)
        a("s_barrier")
        self.stamp(1)
        self.ln1(28)
        a("v_lshrrev_b32 v22, 4, v0")
        a("v_bfe_u32 v23, v0, 2, 2")
        a("v_lshl_add_u32 v23, v22, 3, v23")
        a("v_lshlrev_b32 v20, 6, v23")
        a("v_and_b32 v23, 3, v0")
        a("v_lshl_add_u32 v20, v23, 3, v20")
        a("v_and_b32 v21, 1, v22")
        a("v_lshl_add_u32 v20, v21, 5, v20")
        a("v_add_u32 v20, %d, v20" % BIG)
        a("v_xor_b32 v21, 32, v20")
        a("v_mul_u32_u24 v6, %d, v23" % XN_STR)
        a("v_lshl_add_u32 v6, v22, 4, v6")
        a("v_add_u32 v6, %d, v6" % XN)
        a("v_lshlrev_b32 v7, 14, v23")
        a("v_bfe_u32 v24, v0, 2, 1")
        a("v_lshl_add_u32 v7, v24, 6, v7")
        a("v_lshl_add_u32 v7, v22, 4, v7")
        a("v_cmp_eq_u32 s[58:59], 1, v24")
        a("s_lshl_b32 s56, s4, 11")
        a("s_lshl_b32 s57, s5, 7")
        a("s_add_u32 s56, s56, s57")
        a("s_add_u32 s56, s56, %d" % WS_Q)
        self.wait_flag("v2", F_XN, 4, "v24")
        for s in range(14):
            a("ds_read_b128 v[%d:%d], v6 offset:%d" % (XF + 4 * s, XF + 4 * s + 3, s * 64))
        self.wait_flag("v2", F_TAG, 1, "v24")
        a("s_mov_b32 s68, s14")
        self.stamp(2)
        for sp in range(7):
            a("s_waitcnt vmcnt(%d)" % (24 - 4 * sp))
            base = WF + 16 * (sp & 1)
            for ss in range(2):
                s = 2 * sp + ss
                for n in range(2):
                    for hh in range(2):
                        r = base + 8 * ss + 4 * n + 2 * hh
                        a("ds_read_b64_tr_b16 v[%d:%d], v%d offset:%d" % (r, r + 1, 20 + n, s * 2048 + hh * 256))
            for ss in range(2):
                s = 2 * sp + ss
                for n in range(2):
                    a("s_waitcnt lgkmcnt(%d)" % (6 - 4 * ss - 2 * n))
                    self.mfma(AC + 4 * n, base + 8 * ss + 4 * n, XF + 4 * s, s == 0)
        a("v_mov_b32 v13, s68")
        a("v_mov_b32 v15, s68")
        a("s_nop 5")
        a("v_cvt_pk_bf16_f32 v12, v%d, v%d" % (AC, AC + 1))
        a("v_cvt_pk_bf16_f32 v14, v%d, v%d" % (AC + 2, AC + 3))
        a("v_cvt_pk_bf16_f32 v16, v%d, v%d" % (AC + 4, AC + 5))
        a("v_cvt_pk_bf16_f32 v17, v%d, v%d" % (AC + 6, AC + 7))
        a("v_cndmask_b32 v12, v12, v16, s[58:59]")
        a("v_cndmask_b32 v14, v14, v17, s[58:59]")
        a("s_mov_b32 exec_lo, 0x00ff00ff")
        a("s_mov_b32 exec_hi, 0x00ff00ff")
        a("buffer_store_dwordx4 v[12:15], v7, s[48:51], s56 offen sc1")
        a("s_mov_b64 exec, -1")
        self.stamp(3)
        a("s_branch L_S0_GATHER")
        a.label("L_S0_FFN")
        self.ffn_gu_setup()
        for i in range(14):
            self.ffn_gu_issue(i)
        a.label("L_S0_BAR")
        a("s_barrier")
        self.wait_flag("v2", F_TAG, 1, "v24")
        a("s_mov_b32 s68, s14")
        a.label("L_S0_GATHER")
        a("s_lshl_b32 s56, s10, 11")
        a("s_add_u32 s56, s56, %d" % WS_Q)
        a("s_lshl_b32 s57, s10, 5")
        a("s_add_u32 s57, s57, %d" % WS_FLAGS)
        a("v_and_b32 v6, 7, v0")
        a("v_lshlrev_b32 v6, 2, v6")
        a("v_lshlrev_b32 v7, 3, v0")
        a("v_add_u32 v7, %d, v7" % QS)
        a("s_mov_b32 s13, 0")
        a.label("L_QPOLL")
        a("buffer_load_dwordx4 v[8:11], v4, s[48:51], s56 offen sc1")
        a("buffer_load_dwordx4 v[12:15], v4, s[48:51], s56 offen offset:1024 sc1")
        a("buffer_load_dword v16, v6, s[48:51], s57 offen sc1")
        a("s_waitcnt vmcnt(0)")
        a("v_xor_b32 v9, s68, v9")
        a("v_xor_b32 v11, s68, v11")
        a("v_xor_b32 v13, s68, v13")
        a("v_xor_b32 v15, s68, v15")
        a("v_xor_b32 v16, s68, v16")
        a("v_or3_b32 v9, v9, v11, v13")
        a("v_or3_b32 v9, v9, v15, v16")
        a("v_cmp_ne_u32 vcc, 0, v9")
        a("s_cbranch_vccz L_QOK")
        a("s_add_u32 s13, s13, 1")
        a("s_cmp_lt_u32 s13, %d" % c.poll_max)
        a("s_cbranch_scc1 L_QPOLL")
        a.label("L_QOK")
        a("v_mov_b32 v9, v10")
        a("v_mov_b32 v13, v14")
        a("ds_write_b64 v7, v[8:9]")
        a("ds_write_b64 v7, v[12:13] offset:%d" % QS_STR)
        self.signal("v2", F_Q, "v3")
        self.stamp(4)
        a("s_cmp_eq_u32 s66, 1")
        a("s_cbranch_scc1 L_FFN")
        self.finish()

    def s1(self):
        a = self.a
        a.label("L_S1")
        a("s_barrier")
        self.ln1(0)
        a("s_branch L_SOFTMAX")

    def s2(self):
        a, c = self.a, self.c
        a.label("L_S2")
        a("v_mov_b32 v19, 0")
        a("buffer_load_dword v7, v19, s[48:51], 0 offen sc1")
        for k in range(4):
            a("v_mov_b32 v%d, -1" % (12 + k))
        a("v_bfe_u32 v16, v0, 4, 1")
        a("v_lshlrev_b32 v16, 11, v16")
        a("v_and_b32 v17, 15, v0")
        a("v_lshl_add_u32 v16, v17, 4, v16")
        a("s_lshl_b32 s56, s10, 12")
        a("s_lshl_b32 s57, s7, 8")
        a("s_add_u32 s56, s56, s57")
        a("s_add_u32 s56, s56, %d" % WS_SC)
        a("s_mov_b32 exec_hi, 0")
        a("buffer_store_dwordx4 v[12:15], v16, s[48:51], s56 offen sc1")
        a("s_mov_b64 exec, -1")
        a("v_lshrrev_b32 v17, 3, v0")
        a("v_and_b32 v18, 7, v0")
        a("v_lshlrev_b32 v18, 4, v18")
        a("v_lshl_add_u32 v16, v17, 13, v18")
        a("s_mul_i32 s56, s6, %d" % (14 * 8192))
        a("s_lshl_b32 s57, s4, 3")
        a("s_add_u32 s57, s57, s7")
        a("s_lshl_b32 s57, s57, 7")
        a("s_add_u32 s56, s56, s57")
        a("s_add_u32 s56, s56, %d" % WS_A)
        a("buffer_store_dwordx4 v[12:15], v16, s[48:51], s56 offen sc1")
        a("s_add_u32 s56, s56, %d" % (8 * 8192))
        a("s_mov_b32 exec_hi, 0x0000ffff")
        a("buffer_store_dwordx4 v[12:15], v16, s[48:51], s56 offen sc1")
        a("s_mov_b64 exec, -1")
        a("s_cmp_eq_u32 s66, 1")
        a("s_cbranch_scc0 L_S2_NOC")
        a("v_mul_u32_u24 v16, %d, v17" % (NF * 128))
        a("v_add_u32 v16, v16, v18")
        a("s_lshl_b32 s56, s62, 7")
        a("s_add_u32 s56, s56, %d" % WS_C)
        for k in range(7):
            a("buffer_store_dwordx4 v[12:15], v16, s[48:51], s56 offen sc1")
            a("s_add_u32 s56, s56, %d" % (8 * NF * 128))
        a.label("L_S2_NOC")
        a("s_cmp_eq_u32 s66, 2")
        a("s_cbranch_scc0 L_S2_NOH")
        a("v_lshrrev_b32 v17, 2, v0")
        a("v_mul_u32_u24 v16, %d, v17" % HREP_STRIDE)
        a("v_and_b32 v17, 3, v0")
        a("v_lshl_add_u32 v16, v17, 5, v16")
        self.h_soffset("s56")
        a("s_mov_b32 exec_lo, 0x%x" % ((1 << (4 * c.hrep)) - 1))
        a("s_mov_b32 exec_hi, 0")
        a("buffer_store_dwordx4 v[12:15], v16, s[48:51], s56 offen sc1")
        a("s_mov_b64 exec, -1")
        a.label("L_S2_NOH")
        a("s_barrier")
        a("s_waitcnt vmcnt(3)")
        a("v_readfirstlane_b32 s68, v7")
        a("s_or_b32 s68, s68, 1")
        a("s_mul_i32 s68, s68, 0x9E3779B1")
        a("s_add_u32 s68, s68, 0x85EBCA6A")
        a("v_mov_b32 v7, s68")
        a("s_mov_b64 exec, 1")
        a("ds_write_b32 v2, v7 offset:%d" % F_TAG)
        a("s_mov_b64 exec, -1")
        self.ln1(3)
        a("s_lshl_b32 s56, s10, 5")
        a("s_lshl_b32 s57, s7, 2")
        a("s_add_u32 s56, s56, s57")
        a("s_add_u32 s56, s56, %d" % WS_FLAGS)
        a("s_waitcnt vmcnt(0)")
        a("s_mov_b64 exec, 1")
        a("buffer_store_dword v7, v19, s[48:51], s56 offen sc1")
        a("s_mov_b64 exec, -1")
        self.stamp(1)
        a("s_branch L_SOFTMAX")

    def h_soffset(self, d):
        a = self.a
        self.col_offset(d)
        a("s_add_u32 %s, %s, %d" % (d, d, WS_H))

    def col_offset(self, d):
        a = self.a
        a("s_mul_i32 %s, s64, 896" % d)
        a("s_lshr_b32 s14, s65, 1")
        a("s_lshl_b32 s14, s14, 7")
        a("s_add_u32 %s, %s, s14" % (d, d))
        a("s_and_b32 s14, s65, 1")
        a("s_lshl_b32 s14, s14, 4")
        a("s_add_u32 %s, %s, s14" % (d, d))

    def flags_check(self):
        a, c = self.a, self.c
        top, ok = self.lbl("fc"), self.lbl("fcok")
        self.wait_flag("v2", F_TAG, 1, "v24", sleep=1)
        a("s_mov_b32 s68, s14")
        a("s_mov_b32 s13, 0")
        a("s_mov_b32 s56, %d" % WS_FLAGS)
        a.label(top)
        a("buffer_load_dwordx4 v[12:15], v4, s[48:51], s56 offen sc1")
        a("s_waitcnt vmcnt(0)")
        for k in range(4):
            a("v_xor_b32 v%d, s68, v%d" % (12 + k, 12 + k))
        a("v_or3_b32 v12, v12, v13, v14")
        a("v_or_b32 v12, v12, v15")
        a("v_cmp_ne_u32 vcc, 0, v12")
        a("s_cbranch_vccz %s" % ok)
        a("s_sleep 8")
        a("s_add_u32 s13, s13, 1")
        a("s_cmp_lt_u32 s13, %d" % c.poll_max)
        a("s_cbranch_scc1 %s" % top)
        a.label(ok)

    def s3(self):
        a, c = self.a, self.c
        a.label("L_S3")
        a("v_and_b32 v6, 31, v0")
        a("v_lshlrev_b32 v6, 2, v6")
        a("v_add_u32 v6, %d, v6" % ZERO)
        a("v_mov_b32 v7, 0")
        a("ds_write_b32 v6, v7")
        a("s_waitcnt lgkmcnt(0)")
        a("s_barrier")
        self.ln1(0)
        a("s_cmp_eq_u32 s66, 1")
        a("s_cbranch_scc1 L_S3_FFN")
        a("s_cmp_eq_u32 s66, 2")
        a("s_cbranch_scc1 L_S3_RED")
        self.finish()
        a.label("L_S3_FFN")
        self.ffn_gu_setup()
        a("v_lshrrev_b32 v16, 3, v0")
        a("v_and_b32 v17, 7, v0")
        a("v_bfe_u32 v18, v0, 4, 2")
        a("v_lshlrev_b32 v18, 1, v18")
        a("v_xor_b32 v17, v17, v18")
        a("v_lshlrev_b32 v17, 4, v17")
        a("v_lshrrev_b32 v18, 2, v16")
        a("v_lshlrev_b32 v18, 3, v18")
        a("v_and_b32 v16, 3, v16")
        a("v_add_u32 v16, v16, v18")
        a("v_mul_u32_u24 v16, 896, v16")
        a("v_add_u32 v19, v16, v17")
        a("s_mul_i32 s56, s62, %d" % (32 * 896))
        self.srd(52, 32, "s56", 32 * 896)
        self.wait_flag("v2", F_SC, 4, "v24", sleep=2)
        n = 0
        for i in range(14, 28):
            self.ffn_gu_issue(i)
            n += 2
            if n >= c.ffn_thr:
                a("s_waitcnt vmcnt(%d)" % (c.ffn_thr - 2))
        for P in range(7):
            for ii in range(4):
                rows = 16 * (ii & 1) + 4 * (ii >> 1)
                self.dma("v19", 52, P * 128 + rows * 896, DT + P * 4096 + ii * 1024, c.pol_ffn)
            a("s_waitcnt vmcnt(%d)" % c.ffn_thr)
        self.flags_check()
        a("s_branch L_FFN")
        a.label("L_S3_RED")
        L, T = 32, 64
        a("v_lshrrev_b32 v16, 4, v0")
        a("v_and_b32 v17, 7, v0")
        a("v_lshlrev_b32 v18, 5, v16")
        a("v_lshl_add_u32 v18, v17, 1, v18")
        self.col_offset("s69")
        a("buffer_load_ushort v19, v18, s[52:55], s69 offen")
        a("v_mov_b32 v20, %d" % OOB)
        a("v_bfe_u32 v21, v0, 3, 1")
        a("v_cmp_eq_u32 vcc, 0, v21")
        a("v_mul_u32_u24 v21, %d, v21" % HREP_STRIDE)
        a("v_lshl_add_u32 v21, v16, 5, v21")
        a("v_cndmask_b32 v18, v20, v18, vcc")
        a("v_cmp_eq_u32 vcc, 0, v17")
        a("s_add_u32 s70, s69, %d" % WS_H)
        a("s_nop 0")
        a("v_cndmask_b32 v21, v20, v21, vcc")
        self.srd(44, 34, None, 3584)
        self.flags_check()
        a("v_lshlrev_b32 v19, 16, v19")
        a("s_cmp_eq_u32 s63, 0")
        a("s_cbranch_scc0 L_S3_NOEP")
        a("v_mov_b32 v6, 0")
        a("v_mov_b32 v7, s68")
        a("s_mov_b64 exec, 1")
        a("buffer_store_dword v7, v6, s[48:51], 0 offen sc1")
        a("s_mov_b64 exec, -1")
        a.label("L_S3_NOEP")
        a("s_lshl_b32 s56, s63, 13")
        a("s_add_u32 s56, s56, %d" % WS_A)
        a("s_add_u32 s57, s56, 4096")
        a("s_mul_i32 s58, s63, %d" % (NF * 128))
        a("s_add_u32 s58, s58, %d" % WS_C)
        a("s_add_u32 s59, s58, 4096")
        self.stamp(1)
        self.wait_flag("v2", F_OS, 4, "v24", sleep=1)
        self.stamp(2)
        self.inbox_reduce(8, "v4", ("s56", "s57"), L, T, "v22")
        a("v_cvt_pk_bf16_f32 v22, v22, v22")
        a("v_lshlrev_b32 v22, 16, v22")
        a("v_add_f32 v22, v19, v22")
        a("s_nop 1")
        a("v_mov_b32_dpp v23, v22 quad_perm:[1,0,3,2] row_mask:0xf bank_mask:0xf")
        a("v_cvt_pk_bf16_f32 v24, v22, v23")
        a("v_min_u32 v24, -2, v24")
        a("s_nop 1")
        a("v_mov_b32_dpp v25, v24 row_shl:2 row_mask:0xf bank_mask:0xf")
        a("v_mov_b32_dpp v26, v24 row_shl:4 row_mask:0xf bank_mask:0xf")
        a("v_mov_b32_dpp v27, v24 row_shl:6 row_mask:0xf bank_mask:0xf")
        for k in range(c.hrep // 2):
            a("buffer_store_dwordx4 v[24:27], v21, s[48:51], s70 offen sc1")
            if k + 1 < c.hrep // 2:
                a("s_add_u32 s70, s70, %d" % (2 * HREP_STRIDE))
        a("v_lshlrev_b32 v28, 16, v24")
        self.stamp(3)
        self.inbox_reduce(7, "v4", ("s58", "s59"), L, T, "v22")
        a("v_cvt_pk_bf16_f32 v22, v22, v22")
        a("v_lshlrev_b32 v22, 16, v22")
        a("v_add_f32 v22, v28, v22")
        a("v_cvt_pk_bf16_f32 v22, v22, v22")
        a("buffer_store_short v22, v18, s[44:47], s69 offen")
        self.stamp(4)
        self.finish()

    def softmax(self):
        a, c = self.a, self.c
        F = 32
        a.label("L_SOFTMAX")
        a("s_sub_u32 s58, s11, 1")
        a("s_lshl_b32 s56, s10, 12")
        a("s_lshl_b32 s57, s58, 11")
        a("s_add_u32 s56, s56, s57")
        a("s_add_u32 s56, s56, %d" % WS_SC)
        a("s_lshl_b32 s57, s9, 10")
        a("s_add_u32 s59, s56, s57")
        a("s_xor_b32 s57, s57, 1024")
        a("s_add_u32 s60, s56, s57")
        a("s_mul_i32 s14, s58, %d" % PS_STR)
        a("s_add_u32 s14, s14, %d" % PS)
        a("v_add_u32 v6, s14, v4")
        a("s_mov_b32 s61, %s" % f32(0.0625 * LOG2E))
        self.wait_flag("v2", F_SC, 4, "v24", sleep=1)
        self.stamp(2)
        a("s_mov_b32 s13, 0")
        a.label("L_SPOLL")
        a("buffer_load_dwordx4 v[8:11], v4, s[48:51], s59 offen sc1")
        a("buffer_load_dwordx4 v[12:15], v4, s[48:51], s60 offen sc1")
        a("s_waitcnt vmcnt(0)")
        a("v_max3_u32 v16, v8, v9, v10")
        a("v_max3_u32 v17, v11, v12, v13")
        a("v_max3_u32 v16, v16, v14, v15")
        a("v_max_u32 v16, v16, v17")
        a("v_cmp_eq_u32 vcc, -1, v16")
        a("s_cbranch_vccz L_SOK")
        a("s_add_u32 s13, s13, 1")
        a("s_cmp_lt_u32 s13, %d" % c.poll_max)
        a("s_cbranch_scc1 L_SPOLL")
        a.label("L_SOK")
        self.stamp(3)
        for k in range(8):
            a("v_lshlrev_b32 v%d, 16, v%d" % (F + 2 * k, 8 + k))
            a("v_and_b32 v%d, 0xffff0000, v%d" % (F + 2 * k + 1, 8 + k))
        a("v_max_f32 v16, v%d, v%d" % (F, F + 1))
        for k in range(1, 8):
            a("v_max3_f32 v16, v16, v%d, v%d" % (F + 2 * k, F + 2 * k + 1))
        self.wave_reduce1("v_max_f32", "v16")
        a("s_nop 0")
        a("v_readlane_b32 s58, v16, 63")
        a("s_nop 1")
        a("v_mov_b32 v17, s58")
        a("v_mul_f32 v17, s61, v17")
        for k in range(16):
            a("v_fma_f32 v%d, v%d, s61, -v17" % (F + k, F + k))
        for k in range(16):
            a("v_exp_f32 v%d, v%d" % (F + k, F + k))
        a("v_pk_add_f32 v[18:19], v[%d:%d], v[%d:%d]" % (F, F + 1, F + 2, F + 3))
        for k in range(2, 8):
            a("v_pk_add_f32 v[18:19], v[18:19], v[%d:%d]" % (F + 2 * k, F + 2 * k + 1))
        a("v_add_f32 v16, v18, v19")
        self.wave_reduce1("v_add_f32", "v16")
        a("s_nop 0")
        a("v_readlane_b32 s58, v16, 63")
        a("s_nop 1")
        a("v_rcp_f32 v18, s58")
        a("s_nop 0")
        for k in range(4):
            a("v_pk_mul_f32 v[%d:%d], v[%d:%d], v[18:19] op_sel_hi:[1,0]" % (F + 2 * k, F + 2 * k + 1, F + 2 * k, F + 2 * k + 1))
        for k in range(4):
            a("v_cvt_pk_bf16_f32 v%d, v%d, v%d" % (8 + k, F + 2 * k, F + 2 * k + 1))
        a("ds_write_b128 v6, v[8:11]")
        self.signal("v2", F_P, "v3")
        self.stamp(4)
        a("s_cmp_eq_u32 s66, 1")
        a("s_cbranch_scc1 L_FFN")
        self.finish()

    def ffn(self):
        a, c = self.a, self.c
        GF, DF, HF = 48, 104, 136
        a.label("L_FFN")
        a("v_lshrrev_b32 v22, 4, v0")
        a("v_bfe_u32 v23, v0, 2, 2")
        a("v_lshl_add_u32 v24, v22, 3, v23")
        a("v_lshlrev_b32 v20, 6, v24")
        a("v_and_b32 v24, 1, v0")
        a("v_lshl_add_u32 v20, v24, 3, v20")
        a("v_and_b32 v24, 1, v22")
        a("v_and_b32 v25, 2, v0")
        a("v_xor_b32 v24, v24, v25")
        a("v_xor_b32 v24, s11, v24")
        a("v_lshl_add_u32 v20, v24, 4, v20")
        a("v_mul_u32_u24 v25, %d, v25" % (28672 // 2))
        a("v_add_u32 v20, v20, v25")
        a("v_add_u32 v20, %d, v20" % GT)
        a("s_lshl_b32 s14, s11, 13")
        a("s_add_u32 s12, s14, %d" % DT)
        self.tr_addrs(12, "s12", "v24", "v25", "v26")
        a("v_mul_u32_u24 v21, %d, v23" % XN_STR)
        a("v_lshl_add_u32 v21, v22, 4, v21")
        a("v_add_u32 v21, %d, v21" % XN)
        a("s_mul_i32 s14, s11, %d" % XN_STR)
        a("s_add_u32 s14, s14, %d" % XN)
        a("v_add_u32 v6, s14, v4")
        a("v_lshlrev_b32 v24, 6, v23")
        a("v_lshl_add_u32 v24, v22, 4, v24")
        a("v_add_u32 v24, %d, v24" % ACT)
        a("v_mov_b32 v25, %d" % ZERO)
        a("v_and_b32 v26, 3, v0")
        for n in range(4):
            a("v_cmp_eq_u32 vcc, %d, v26" % n)
            a("s_nop 1")
            a("v_cndmask_b32 v%d, v25, v24, vcc" % (16 + n))
        a("v_and_b32 v24, 15, v0")
        a("v_lshlrev_b32 v7, 6, v22")
        a("v_lshl_add_u32 v7, v24, 1, v7")
        a("s_lshl_b32 s14, s11, 4")
        a("s_add_u32 s14, s14, %d" % ACT)
        a("v_add_u32 v7, s14, v7")
        a("v_mov_b32 v25, %d" % OS)
        a("v_cmp_gt_u32 vcc, 8, v24")
        a("s_nop 1")
        a("v_cndmask_b32 v7, v25, v7, vcc")
        a("v_mul_u32_u24 v25, 14, v22")
        a("v_bfe_u32 v26, v0, 3, 1")
        a("v_add_u32 v25, v25, v26")
        a("v_mul_u32_u24 v25, %d, v25" % (NF * 128))
        a("v_and_b32 v26, 7, v0")
        a("v_lshl_add_u32 v23, v26, 4, v25")
        a("s_mul_i32 s69, s11, %d" % (4 * NF * 128))
        a("s_lshl_b32 s70, s62, 7")
        a("s_add_u32 s69, s69, s70")
        a("s_add_u32 s69, s69, %d" % WS_C)
        a("s_add_u32 s70, s69, %d" % (2 * NF * 128))
        a("s_cmp_eq_u32 s11, 3")
        a("s_cselect_b32 s70, %d, s70" % OOB)
        a("s_and_b32 s60, s4, %d" % (c.hrep - 1))
        a("s_mul_i32 s60, s60, %d" % HREP_STRIDE)
        a("s_add_u32 s60, s60, s67")
        a("s_add_u32 s60, s60, %d" % WS_H)
        a("s_mov_b32 s61, %s" % f32(-LOG2E))
        a("s_waitcnt vmcnt(0)")
        a("s_barrier")
        self.stamp(5)
        for s in range(14):
            for hh in range(2):
                r = GF + 4 * s + 2 * hh
                a("ds_read_b64_tr_b16 v[%d:%d], v20 offset:%d" % (r, r + 1, s * 2048 + hh * 256))
            if s % 4 == 3:
                a("s_waitcnt lgkmcnt(0)")
        a("s_waitcnt lgkmcnt(0)")
        self.tile_reads(DF, 12, 0)
        a("s_waitcnt lgkmcnt(0)")
        self.tile_reads(DF + 16, 12, 4096)
        a("s_waitcnt lgkmcnt(0)")
        self.stamp(6)
        a("s_mov_b32 s13, 0")
        a.label("L_HPOLL")
        a("buffer_load_dwordx4 v[8:11], v5, s[48:51], s60 offen sc1")
        a("s_waitcnt vmcnt(0)")
        a("v_max3_u32 v24, v8, v9, v10")
        a("v_max_u32 v24, v24, v11")
        a("v_cmp_eq_u32 vcc, -1, v24")
        a("s_cbranch_vccz L_HOK")
        a("s_add_u32 s13, s13, 1")
        a("s_cmp_lt_u32 s13, %d" % c.poll_max)
        a("s_cbranch_scc1 L_HPOLL")
        a.label("L_HOK")
        self.stamp(7)
        self.layernorm(8, 24, 32)
        a("s_mov_b32 exec_hi, 0x00ffffff")
        a("ds_write_b128 v6, v[8:11]")
        a("s_mov_b64 exec, -1")
        a("s_waitcnt lgkmcnt(0)")
        a("s_barrier")
        AC = 24
        for s in range(7):
            a("ds_read_b128 v[%d:%d], v21 offset:%d" % (HF + 4 * s, HF + 4 * s + 3, s * 64))
        for s in range(14):
            a("s_waitcnt lgkmcnt(%d)" % (6 if s < 7 else 13 - s))
            self.mfma(AC, HF + 4 * (s % 7), GF + 4 * s, s == 0)
            if s < 7:
                a("ds_read_b128 v[%d:%d], v21 offset:%d" % (HF + 4 * s, HF + 4 * s + 3, (s + 7) * 64))
        a("s_nop 7")
        a("v_cvt_pk_bf16_f32 v28, v24, v24")
        a("v_lshlrev_b32 v28, 16, v28")
        a("v_mul_f32 v29, s61, v28")
        a("v_exp_f32 v29, v29")
        a("v_mov_b32_dpp v30, v28 row_ror:8 row_mask:0xf bank_mask:0xf")
        a("v_add_f32 v29, 1.0, v29")
        a("v_rcp_f32 v29, v29")
        a("s_nop 0")
        a("v_mul_f32 v29, v28, v29")
        a("v_cvt_pk_bf16_f32 v29, v29, v29")
        a("v_lshlrev_b32 v29, 16, v29")
        a("v_mul_f32 v29, v29, v30")
        a("v_cvt_pk_bf16_f32 v29, v29, v29")
        a("ds_write_b16 v7, v29")
        a("s_waitcnt lgkmcnt(0)")
        a("s_barrier")
        for n in range(4):
            a("ds_read_b128 v[%d:%d], v%d" % (HF + 4 * n, HF + 4 * n + 3, 16 + n))
        for pp in range(2):
            for n in range(4):
                if pp == 0:
                    a("s_waitcnt lgkmcnt(%d)" % (3 - n))
                self.mfma(24 + 4 * pp, HF + 4 * n, DF + 16 * pp + 4 * n, n == 0)
        a("s_nop 3")
        for k in range(4):
            a("v_min_u32 v%d, -2, v%d" % (24 + k, 24 + k))
        a("buffer_store_dwordx4 v[24:27], v23, s[48:51], s69 offen sc1")
        for k in range(4):
            a("v_min_u32 v%d, -2, v%d" % (28 + k, 28 + k))
        a("buffer_store_dwordx4 v[28:31], v23, s[48:51], s70 offen sc1")
        self.stamp(8)
        self.finish()


HEADER = """; Fused pre-LN decode block: sliding-window GQA attention + SwiGLU FFN in one launch (generated by gen_kernel.py).
"""


def generate(cfg):
    body = Gen(cfg).build()
    return f"""{HEADER}; @launch grid=(256,1,1) block=(768,1,1) lds={LDS_TOTAL}
.amdgcn_target "amdgcn-amd-amdhsa--gfx950"
.text
.globl {NAME}
.p2align 8
.type {NAME},@function
{NAME}:
{body}
.section .rodata,"a"
.p2align 6
.amdhsa_kernel {NAME}
  .amdhsa_next_free_vgpr 168
  .amdhsa_next_free_sgpr 96
  .amdhsa_accum_offset 168
  .amdhsa_group_segment_fixed_size 0
  .amdhsa_kernarg_size 96
  .amdhsa_user_sgpr_count 2
  .amdhsa_user_sgpr_kernarg_segment_ptr 1
  .amdhsa_system_sgpr_workgroup_id_x 1
  .amdhsa_float_denorm_mode_32 3
.end_amdhsa_kernel
"""


if __name__ == "__main__":
    cfg = Cfg()
    out = sys.argv[1]
    for kv in sys.argv[2:]:
        k, v = kv.split("=")
        cur = getattr(cfg, k)
        setattr(cfg, k, (v == "1") if isinstance(cur, bool) else type(cur)(v))
    open(out, "w").write(generate(cfg))
```

```python
import sys
from asmgen import Asm, NAME

WS_EPOCH = 0x0
WS_FLAGS = 0x1000
WS_GFL = 0x14000
WS_Q = 0x2000
WS_SC = 0x20000
WS_H = 0x40000
WS_A = 0x80000
WS_C = 0x100000
WS_TS = 0x180000
WS_SIZE = 0x200000
NF = 56
HREP_STRIDE = 8192
OOB = 0x40000000

RINGK = 0
RINGO = 32768
BIG = 65536
GT = BIG
UT = BIG + 28672
DT = BIG + 57344
SH = 151552
XN = SH
XN_STR = 960
QS = SH + 3840
QS_STR = 576
PS = SH + 4992
PS_STR = 1088
OS = SH + 7168
OS_STR = 320
ACT = SH + 8448
ZERO = SH + 8704
FL = SH + 8768
LDS_TOTAL = SH + 8832
F_TAG, F_XN, F_Q, F_SC, F_P, F_OS, F_KISS = 0, 4, 8, 12, 16, 20, 24

LOG2E = 1.4426950408889634


def f32(x):
    import struct
    return "0x%08x" % struct.unpack("<I", struct.pack("<f", x))[0]


class Cfg:
    diag = False
    dbg = False
    pol_kv = "nt"
    pol_wq = ""
    pol_wo = ""
    pol_ffn = ""
    kiss_batch = 1
    hrep = 2
    poll_max = 1 << 20
    ffn_thr = 8
    dbg_slots = [(0, 1, 3), (0, 3, 4), (0, 4, 5), (4, 1, 6), (4, 3, 7), (1, 4, 8), (4, 5, 9), (8, 2, 10), (8, 4, 11), (3, 3, 12), (0, 7, 13), (0, 8, 14), (2, 1, 15)]
    ffn_early = 14


class Gen:
    def __init__(self, cfg):
        self.c = cfg
        self.a = Asm()
        self.uid = 0

    def lbl(self, base):
        self.uid += 1
        return "L_%s_%d" % (base, self.uid)

    def stamp(self, k):
        if self.c.diag:
            a = self.a
            a("s_memrealtime s[%d:%d]" % (72 + 2 * k, 73 + 2 * k))
            a("s_waitcnt lgkmcnt(0)")

    def stamps_init(self):
        if self.c.diag:
            for k in range(12):
                self.a("s_mov_b32 s%d, 0" % (72 + 2 * k))

    def finish(self):
        a = self.a
        if self.c.diag:
            a("s_branch L_DIAG_END")
        else:
            a("s_endpgm")

    def srd(self, d, ptr, off_sreg, nrec):
        a = self.a
        if off_sreg is None:
            a("s_mov_b32 s%d, s%d" % (d, ptr))
            a("s_mov_b32 s%d, s%d" % (d + 1, ptr + 1))
        else:
            a("s_add_u32 s%d, s%d, %s" % (d, ptr, off_sreg))
            a("s_addc_u32 s%d, s%d, 0" % (d + 1, ptr + 1))
        a("s_mov_b32 s%d, %d" % (d + 2, nrec))
        a("s_mov_b32 s%d, 0x20000" % (d + 3))

    def dma(self, voff, srd, soff, m0, pol):
        a = self.a
        if isinstance(m0, tuple):
            a("s_add_u32 m0, %s, %d" % m0)
        else:
            a("s_mov_b32 m0, %d" % m0)
        if isinstance(soff, tuple):
            a("s_add_u32 s15, %s, %d" % soff)
        else:
            a("s_mov_b32 s15, %d" % soff)
        a("buffer_load_dwordx4 %s, s[%d:%d], s15 offen%s lds" % (voff, srd, srd + 3, (" " + pol) if pol else ""))

    def wait_flag(self, vfl, off, n, vt, sleep=0):
        a = self.a
        l = self.lbl("wf")
        a.label(l)
        if sleep:
            a("s_sleep %d" % sleep)
        a("ds_read_b32 %s, %s offset:%d" % (vt, vfl, off))
        a("s_waitcnt lgkmcnt(0)")
        a("v_readfirstlane_b32 s14, %s" % vt)
        a("s_cmp_ge_u32 s14, %d" % n)
        a("s_cbranch_scc0 %s" % l)

    def signal(self, vfl, off, vone):
        a = self.a
        a("s_mov_b64 exec, 1")
        a("ds_add_u32 %s, %s offset:%d" % (vfl, vone, off))
        a("s_mov_b64 exec, -1")

    def tr_addrs(self, dst, base_sreg_or_int, t0, t1, t2):
        a = self.a
        a("v_lshrrev_b32 %s, 2, v0" % t0)
        a("v_bfe_u32 %s, v0, 3, 2" % t1)
        a("v_and_b32 %s, 3, v0" % t2)
        a("v_lshlrev_b32 %s, 7, %s" % (t0, t0))
        a("v_lshl_add_u32 %s, %s, 3, %s" % (t0, t2, t0))
        a("v_add_u32 %s, %s, %s" % (t0, base_sreg_or_int, t0))
        for n in range(4):
            a("v_xor_b32 %s, %d, %s" % (t2, n, t1))
            a("v_lshl_add_u32 v%d, %s, 5, %s" % (dst + n, t2, t0))

    def tile_reads(self, dst, addr0, off):
        a = self.a
        for n in range(4):
            for hh in range(2):
                r = dst + 4 * n + 2 * hh
                a("ds_read_b64_tr_b16 v[%d:%d], v%d offset:%d" % (r, r + 1, addr0 + n, off + hh * 2048))

    def mfma(self, d, A, B, first):
        self.a("v_mfma_f32_16x16x32_bf16 v[%d:%d], v[%d:%d], v[%d:%d], %s" % (
            d, d + 3, A, A + 3, B, B + 3, "0" if first else "v[%d:%d]" % (d, d + 3)))

    def wave_reduce2(self, op, x, y):
        a = self.a
        for ctl in ("row_shr:1", "row_shr:2", "row_shr:4", "row_shr:8"):
            a("s_nop 0")
            for r in (x, y):
                a("%s_dpp %s, %s, %s %s row_mask:0xf bank_mask:0xf" % (op, r, r, r, ctl))
        for ctl in ("row_bcast:15 row_mask:0xa", "row_bcast:31 row_mask:0xc"):
            a("s_nop 0")
            for r in (x, y):
                a("%s_dpp %s, %s, %s %s bank_mask:0xf" % (op, r, r, r, ctl))

    def wave_reduce1(self, op, x):
        a = self.a
        for ctl in ("row_shr:1", "row_shr:2", "row_shr:4", "row_shr:8"):
            a("s_nop 1")
            a("%s_dpp %s, %s, %s %s row_mask:0xf bank_mask:0xf" % (op, x, x, x, ctl))
        for ctl in ("row_bcast:15 row_mask:0xa", "row_bcast:31 row_mask:0xc"):
            a("s_nop 1")
            a("%s_dpp %s, %s, %s %s bank_mask:0xf" % (op, x, x, x, ctl))

    def layernorm(self, src, f, t):
        a = self.a
        for k in range(4):
            a("v_lshlrev_b32 v%d, 16, v%d" % (f + 2 * k, src + k))
            a("v_and_b32 v%d, 0xffff0000, v%d" % (f + 2 * k + 1, src + k))
        a("v_readfirstlane_b32 s56, v%d" % f)
        a("v_mov_b32 v%d, 0" % (t + 8))
        a("v_mov_b32 v%d, 0" % (t + 9))
        a("s_mov_b32 exec_hi, 0x00ffffff")
        for k in range(4):
            a("v_pk_add_f32 v[%d:%d], v[%d:%d], s[56:57] op_sel_hi:[1,0] neg_lo:[0,1] neg_hi:[0,1]" % (
                t + 2 * k, t + 2 * k + 1, f + 2 * k, f + 2 * k + 1))
        a("v_pk_mul_f32 v[%d:%d], v[%d:%d], v[%d:%d]" % (t + 10, t + 11, t, t + 1, t, t + 1))
        for k in range(1, 4):
            a("v_pk_fma_f32 v[%d:%d], v[%d:%d], v[%d:%d], v[%d:%d]" % (
                t + 10, t + 11, t + 2 * k, t + 2 * k + 1, t + 2 * k, t + 2 * k + 1, t + 10, t + 11))
        a("v_pk_add_f32 v[%d:%d], v[%d:%d], v[%d:%d]" % (t, t + 1, t, t + 1, t + 2, t + 3))
        a("v_pk_add_f32 v[%d:%d], v[%d:%d], v[%d:%d]" % (t + 4, t + 5, t + 4, t + 5, t + 6, t + 7))
        a("v_pk_add_f32 v[%d:%d], v[%d:%d], v[%d:%d]" % (t, t + 1, t, t + 1, t + 4, t + 5))
        a("v_add_f32 v%d, v%d, v%d" % (t + 9, t + 10, t + 11))
        a("v_add_f32 v%d, v%d, v%d" % (t + 8, t, t + 1))
        a("s_mov_b64 exec, -1")
        S, Q = "v%d" % (t + 8), "v%d" % (t + 9)
        a("s_nop 0")
        self.wave_reduce2("v_add_f32", Q, S)
        a("s_nop 0")
        a("v_readlane_b32 s58, %s, 63" % Q)
        a("v_readlane_b32 s57, %s, 63" % S)
        a("v_mov_b32 v%d, %s" % (t + 2, f32(1.0 / 448)))
        a("v_mul_f32 v%d, s58, v%d" % (t + 1, t + 2))
        a("v_mul_f32 v%d, s57, v%d" % (t, t + 2))
        a("v_fma_f32 v%d, -v%d, v%d, v%d" % (t + 1, t, t, t + 1))
        a("v_add_f32 v%d, s56, v%d" % (t, t))
        a("v_max_f32 v%d, 0, v%d" % (t + 1, t + 1))
        a("v_cvt_pk_bf16_f32 v%d, v%d, v%d" % (t + 2, t, t + 1))
        a("v_and_b32 v%d, 0xffff0000, v%d" % (t + 1, t + 2))
        a("v_lshlrev_b32 v%d, 16, v%d" % (t, t + 2))
        a("v_add_f32 v%d, %s, v%d" % (t + 1, f32(1e-5), t + 1))
        a("v_cvt_pk_bf16_f32 v%d, v%d, v%d" % (t + 1, t + 1, t + 1))
        a("v_lshlrev_b32 v%d, 16, v%d" % (t + 1, t + 1))
        a("v_sqrt_f32 v%d, v%d" % (t + 1, t + 1))
        for k in range(4):
            a("v_pk_add_f32 v[%d:%d], v[%d:%d], v[%d:%d] op_sel_hi:[1,0] neg_lo:[0,1] neg_hi:[0,1]" % (
                f + 2 * k, f + 2 * k + 1, f + 2 * k, f + 2 * k + 1, t, t + 1))
        a("v_cvt_pk_bf16_f32 v%d, v%d, v%d" % (t + 2, t + 1, t + 1))
        a("v_lshlrev_b32 v%d, 16, v%d" % (t + 2, t + 2))
        a("v_rcp_f32 v%d, v%d" % (t + 2, t + 2))
        for k in range(4):
            a("v_cvt_pk_bf16_f32 v%d, v%d, v%d" % (src + k, f + 2 * k, f + 2 * k + 1))
        for k in range(4):
            a("v_lshlrev_b32 v%d, 16, v%d" % (f + 2 * k, src + k))
            a("v_and_b32 v%d, 0xffff0000, v%d" % (f + 2 * k + 1, src + k))
        for k in range(4):
            a("v_pk_mul_f32 v[%d:%d], v[%d:%d], v[%d:%d] op_sel_hi:[1,0]" % (
                f + 2 * k, f + 2 * k + 1, f + 2 * k, f + 2 * k + 1, t + 2, t + 3))
        for k in range(4):
            a("v_cvt_pk_bf16_f32 v%d, v%d, v%d" % (src + k, f + 2 * k, f + 2 * k + 1))

    def inbox_reduce(self, nl, voff, soff, L, T, out):
        a = self.a
        top, ok, chk = self.lbl("rp"), self.lbl("rok"), self.lbl("rchk")
        a("s_mov_b32 s13, 0")
        a.label(top)
        for i in range(nl):
            if i < 4:
                a("buffer_load_dwordx4 v[%d:%d], %s, s[48:51], %s offen offset:%d sc1" % (L + 4 * i, L + 4 * i + 3, voff, soff[0], i * 1024))
            else:
                a("buffer_load_dwordx4 v[%d:%d], %s, s[48:51], %s offen offset:%d sc1" % (L + 4 * i, L + 4 * i + 3, voff, soff[1], (i - 4) * 1024))

        def padd(d, x, y):
            for h in (0, 2):
                a("v_pk_add_f32 v[%d:%d], v[%d:%d], v[%d:%d]" % (d + h, d + h + 1, x + h, x + h + 1, y + h, y + h + 1))
        for k in range(nl // 2):
            a("s_waitcnt vmcnt(%d)" % (nl - 2 - 2 * k))
            padd(T + 4 * k, L + 8 * k, L + 8 * k + 4)
        padd(T, T, T + 4)
        if nl == 8:
            padd(T + 8, T + 8, T + 12)
        else:
            a("s_waitcnt vmcnt(0)")
            padd(T + 8, T + 8, L + 24)
        padd(T, T, T + 8)
        a("s_nop 1")
        a("v_permlane16_swap_b32 v%d, v%d" % (T, T + 1))
        a("v_permlane16_swap_b32 v%d, v%d" % (T + 2, T + 3))
        a("v_add_f32 v%d, v%d, v%d" % (T, T, T + 1))
        a("v_add_f32 v%d, v%d, v%d" % (T + 2, T + 2, T + 3))
        a("s_nop 1")
        a("v_permlane32_swap_b32 v%d, v%d" % (T, T + 2))
        a("v_add_f32 v%d, v%d, v%d" % (T, T, T + 2))
        a("s_nop 1")
        a("v_add_f32_dpp %s, v%d, v%d row_ror:8 row_mask:0xf bank_mask:0xf" % (out, T, T))
        a("v_cmp_u_f32 vcc, %s, %s" % (out, out))
        a("s_cbranch_vccz %s" % ok)
        a("s_add_u32 s13, s13, 1")
        a("s_and_b32 s14, s13, 15")
        a("s_cbranch_scc1 %s" % top)
        regs = [L + i for i in range(4 * nl)]
        a("v_max_u32 v%d, v%d, v%d" % (T + 4, regs[0], regs[1]))
        for i in range(2, 4 * nl, 2):
            a("v_max3_u32 v%d, v%d, v%d, v%d" % (T + 4, T + 4, regs[i], regs[i + 1]))
        a("v_cmp_eq_u32 vcc, -1, v%d" % (T + 4))
        a("s_cbranch_vccz %s" % ok)
        a("s_cmp_lt_u32 s13, %d" % self.c.poll_max)
        a("s_cbranch_scc1 %s" % top)
        a.label(ok)

    def build(self):
        a, c = self.a, self.c
        a("s_cmp_ge_u32 s2, 256")
        a("s_cbranch_scc1 L_END")
        a("s_load_dwordx16 s[16:31], s[0:1], 0")
        a("s_load_dwordx8 s[32:39], s[0:1], 64")
        self.stamps_init()
        if c.diag:
            a("s_memrealtime s[72:73]")
        a("v_lshrrev_b32 v1, 6, v0")
        a("v_and_b32 v0, 63, v0")
        a("v_readfirstlane_b32 s3, v1")
        a("s_and_b32 s4, s2, 7")
        a("s_lshr_b32 s5, s2, 3")
        a("s_lshr_b32 s6, s2, 6")
        a("s_and_b32 s7, s5, 7")
        a("s_lshr_b32 s8, s7, 1")
        a("s_and_b32 s9, s7, 1")
        a("s_lshl_b32 s10, s6, 3")
        a("s_add_u32 s10, s10, s4")
        a("s_and_b32 s11, s3, 3")
        a("s_cmp_lt_u32 s3, 4")
        a("s_cbranch_scc1 L_SROLE")
        a("s_cmp_ge_u32 s3, 8")
        a("s_cbranch_scc1 L_OROLE")
        self.k_role()
        self.o_role()
        self.s_role()
        if c.diag:
            a.label("L_DIAG_END")
            a("s_memrealtime s[94:95]")
            a("s_waitcnt lgkmcnt(0)")
            a("s_mov_b64 exec, -1")
            for k in range(12):
                a("v_mov_b32 v%d, s%d" % (4 + k, 72 + 2 * k))
            a("s_mul_i32 s14, s2, 12")
            a("s_add_u32 s14, s14, s3")
            a("s_lshl_b32 s14, s14, 6")
            a("s_add_u32 s14, s14, %d" % WS_TS)
            a("v_mov_b32 v1, 0")
            a("s_mov_b64 exec, 1")
            for k in range(3):
                a("buffer_store_dwordx4 v[%d:%d], v1, s[48:51], s14 offen offset:%d" % (4 + 4 * k, 7 + 4 * k, 16 * k))
            if c.dbg:
                self.srd(52, 36, None, 256)
                a("v_not_b32 v4, v4")
                a("buffer_atomic_umax v4, v1, s[52:55], 0 offen")
                a("buffer_atomic_umax v15, v1, s[52:55], 0 offen offset:4")
                a("v_not_b32 v4, v4")
                a("buffer_atomic_umax v4, v1, s[52:55], 0 offen offset:8")
                for (w, k, slot) in c.dbg_slots:
                    l = self.lbl("dbg")
                    a("s_cmp_lg_u32 s3, %d" % w)
                    a("s_cbranch_scc1 %s" % l)
                    a("buffer_atomic_umax v%d, v1, s[52:55], 0 offen offset:%d" % (4 + k, 4 * slot))
                    a.label(l)
            a("s_waitcnt vmcnt(0)")
        a.label("L_END")
        a("s_endpgm")
        return a.text()

    def k_issue(self, b):
        c = self.c
        for k in range(4):
            m0 = ("s12", (b & 1) * 4096 + k * 1024)
            if b < 4:
                i = 4 * b + k
                u, dseg, half = i >> 3, (i >> 1) & 3, i & 1
                self.dma("v2" if half else "v1", 40, u * 8192 + dseg * 128, m0, c.pol_kv)
            else:
                i = 4 * (b - 4) + k
                self.dma("v3", 44, i * 4096, m0, c.pol_kv)

    def k_role(self):
        a, c = self.a, self.c
        KF, VF, QF, SA = 16, 80, 144, 160
        a("v_lshrrev_b32 v13, 3, v0")
        a("v_and_b32 v14, 7, v0")
        a("v_lshrrev_b32 v15, 1, v13")
        a("v_xor_b32 v1, v14, v15")
        a("v_lshlrev_b32 v1, 4, v1")
        a("v_lshl_add_u32 v1, v13, 9, v1")
        a("v_xor_b32 v2, 64, v1")
        a("v_add_u32 v2, 4096, v2")
        a("v_lshlrev_b32 v3, 1, v15")
        a("v_xor_b32 v3, v14, v3")
        a("v_lshlrev_b32 v3, 4, v3")
        a("v_lshl_add_u32 v3, v13, 9, v3")
        a("s_lshl_b32 s12, s11, 13")
        a("s_lshl_b32 s56, s10, 21")
        a("s_add_u32 s56, s56, 0x180000")
        a("s_lshl_b32 s57, s7, 16")
        a("s_lshl_b32 s58, s11, 14")
        a("s_add_u32 s57, s57, s58")
        a("s_add_u32 s57, s57, s56")
        a("s_lshl_b32 s58, s9, 18")
        a("s_lshl_b32 s59, s11, 16")
        a("s_add_u32 s58, s58, s59")
        a("s_lshl_b32 s59, s8, 7")
        a("s_add_u32 s58, s58, s59")
        a("s_add_u32 s58, s58, s56")
        a("s_waitcnt lgkmcnt(0)")
        self.srd(40, 18, "s57", 16384)
        self.srd(44, 20, "s58", 127 * 512 + 128)
        self.k_issue(0)
        self.k_issue(1)
        self.srd(48, 38, None, WS_SIZE)
        a("v_and_b32 v13, 15, v0")
        a("v_lshrrev_b32 v14, 4, v0")
        a("v_lshrrev_b32 v15, 1, v13")
        a("v_xor_b32 v4, v14, v15")
        a("v_lshlrev_b32 v4, 4, v4")
        a("v_lshl_add_u32 v4, v13, 7, v4")
        a("v_add_u32 v4, s12, v4")
        a("v_xor_b32 v5, 64, v4")
        a("v_and_b32 v13, 1, v0")
        a("v_mul_u32_u24 v10, %d, v13" % QS_STR)
        a("v_lshl_add_u32 v10, v14, 4, v10")
        a("v_add_u32 v10, %d, v10" % QS)
        a("v_lshlrev_b32 v12, 11, v13")
        a("v_lshl_add_u32 v12, v14, 4, v12")
        self.tr_addrs(6, "s12", "v13", "v14", "v15")
        a("v_mov_b32 v13, %d" % FL)
        a("v_mov_b32 v14, 1")
        a("s_lshl_b32 s59, s10, 12")
        a("s_lshl_b32 s58, s7, 8")
        a("s_add_u32 s59, s59, s58")
        a("s_lshl_b32 s58, s11, 6")
        a("s_add_u32 s59, s59, s58")
        a("s_add_u32 s59, s59, %d" % WS_SC)
        a("s_mov_b32 s60, 0")
        a("s_barrier")
        for b in range(7):
            a("s_waitcnt vmcnt(4)")
            if b < 4:
                for pp in range(2):
                    for tt in range(2):
                        fi = (b >> 1) * 8 + 2 * (2 * (b & 1) + pp) + tt
                        r = KF + 4 * fi
                        a("ds_read_b128 v[%d:%d], v%d offset:%d" % (r, r + 3, 4 + tt, (b & 1) * 4096 + pp * 2048))
            else:
                self.tile_reads(VF + 16 * (b - 4), 6, (b & 1) * 4096)
            if b >= 3:
                a("ds_read_b32 v11, v13 offset:%d" % F_Q)
            a("s_waitcnt lgkmcnt(0)")
            if b + 2 <= 7:
                self.k_issue(b + 2)
            if b == c.kiss_batch:
                self.signal("v13", F_KISS, "v14")
            if b == 3:
                self.stamp(1)
            if 3 <= b <= 5:
                a("s_cmp_lg_u32 s60, 0")
                a("s_cbranch_scc1 L_KRET%d" % b)
                a("v_readfirstlane_b32 s14, v11")
                a("s_mov_b32 s61, %d" % b)
                a("s_cmp_lg_u32 s14, 0")
                a("s_cbranch_scc1 L_SCORES")
                a.label("L_KRET%d" % b)
            if b == 6:
                a("s_cmp_lg_u32 s60, 0")
                a("s_cbranch_scc1 L_KRET6")
                self.wait_flag("v13", F_Q, 1, "v11")
                a("s_mov_b32 s61, 6")
        a.label("L_SCORES")
        self.stamp(2)
        for t in range(4):
            a("ds_read_b128 v[%d:%d], v10 offset:%d" % (QF + 4 * t, QF + 4 * t + 3, t * 64))
        for tp in range(4):
            a("s_waitcnt lgkmcnt(%d)" % (2 if tp < 3 else 0))
            for t in (2 * tp, 2 * tp + 1):
                for u in range(2):
                    self.mfma(SA + 4 * u, KF + 4 * (u * 8 + t), QF + 4 * (t & 3), t == 0)
            if tp < 2:
                for t in (2 * tp + 4, 2 * tp + 5):
                    a("ds_read_b128 v[%d:%d], v10 offset:%d" % (QF + 4 * (t & 3), QF + 4 * (t & 3) + 3, t * 64))
        a("s_nop 7")
        for k in range(4):
            a("v_cvt_pk_bf16_f32 v%d, v%d, v%d" % (QF + k, SA + 2 * k, SA + 2 * k + 1))
        for k in range(4):
            a("v_min_u32 v%d, -2, v%d" % (QF + k, QF + k))
        a("s_mov_b32 exec_lo, 0x00030003")
        a("s_mov_b32 exec_hi, 0x00030003")
        a("buffer_store_dwordx4 v[%d:%d], v12, s[48:51], s59 offen sc1" % (QF, QF + 3))
        self.signal("v13", F_SC, "v14")
        self.stamp(3)
        a("s_mov_b32 s60, 1")
        for b in (3, 4, 5):
            a("s_cmp_eq_u32 s61, %d" % b)
            a("s_cbranch_scc1 L_KRET%d" % b)
        a.label("L_KRET6")
        PF, AC, PK = 16, 32, 48
        a("v_and_b32 v15, 1, v0")
        a("v_mul_u32_u24 v10, %d, v15" % PS_STR)
        a("v_lshrrev_b32 v11, 4, v0")
        a("v_lshl_add_u32 v10, v11, 4, v10")
        a("s_lshl_b32 s14, s11, 8")
        a("s_add_u32 s14, s14, %d" % PS)
        a("v_add_u32 v10, s14, v10")
        a("v_lshlrev_b32 v12, 7, v15")
        a("v_lshl_add_u32 v12, v11, 5, v12")
        a("s_mul_i32 s14, s11, %d" % OS_STR)
        a("s_add_u32 s14, s14, %d" % OS)
        a("v_add_u32 v12, s14, v12")
        self.wait_flag("v13", F_P, 2, "v11")
        self.stamp(4)
        for s in range(4):
            a("ds_read_b128 v[%d:%d], v10 offset:%d" % (PF + 4 * s, PF + 4 * s + 3, s * 64))
        for s in range(3):
            a("s_waitcnt lgkmcnt(%d)" % (3 - s))
            for n in range(4):
                self.mfma(AC + 4 * n, VF + 16 * s + 4 * n, PF + 4 * s, s == 0)
        a("s_waitcnt vmcnt(0)")
        self.stamp(5)
        self.tile_reads(VF + 48, 6, 4096)
        for n in range(4):
            a("s_waitcnt lgkmcnt(%d)" % (6 - 2 * n))
            self.mfma(AC + 4 * n, VF + 48 + 4 * n, PF + 12, False)
        a("s_nop 4")
        for n in range(4):
            if n == 3:
                a("s_nop 1")
            a("v_cvt_pk_bf16_f32 v%d, v%d, v%d" % (PK + 2 * n, AC + 4 * n, AC + 4 * n + 1))
            a("v_cvt_pk_bf16_f32 v%d, v%d, v%d" % (PK + 2 * n + 1, AC + 4 * n + 2, AC + 4 * n + 3))
        a("s_mov_b32 exec_lo, 0x00030003")
        a("s_mov_b32 exec_hi, 0x00030003")
        a("ds_write_b128 v12, v[%d:%d]" % (PK, PK + 3))
        a("ds_write_b128 v12, v[%d:%d] offset:16" % (PK + 4, PK + 7))
        self.signal("v13", F_OS, "v14")
        self.finish()

    def o_issue(self, b):
        pp, s = b >> 2, b & 3
        for ii in range(4):
            rows = 16 * (ii >> 1) + 4 * (ii & 1) + 8 * (s & 1) + 256 * (s >> 1)
            self.dma("v1", 40, ("s57" if pp else "s56", rows * 896), ("s12", (b & 1) * 4096 + ii * 1024), self.c.pol_wo)

    def o_role(self):
        a, c = self.a, self.c
        AF, WF, AC0, AC1, O0, O1 = 8, 24, 152, 24, 40, 44
        a.label("L_OROLE")
        a("v_lshrrev_b32 v8, 3, v0")
        a("v_and_b32 v9, 7, v0")
        a("v_bfe_u32 v10, v0, 4, 2")
        a("v_lshlrev_b32 v10, 1, v10")
        a("v_xor_b32 v9, v9, v10")
        a("v_lshlrev_b32 v9, 4, v9")
        a("v_lshrrev_b32 v10, 2, v8")
        a("v_lshlrev_b32 v10, 5, v10")
        a("v_and_b32 v8, 3, v8")
        a("v_add_u32 v8, v8, v10")
        a("v_mul_u32_u24 v8, 896, v8")
        a("v_add_u32 v1, v8, v9")
        a("s_lshl_b32 s12, s11, 13")
        a("s_add_u32 s12, s12, %d" % RINGO)
        self.tr_addrs(2, "s12", "v8", "v9", "v10")
        a("v_and_b32 v8, 3, v0")
        a("v_mul_u32_u24 v6, %d, v8" % OS_STR)
        a("v_lshrrev_b32 v9, 4, v0")
        a("v_lshl_add_u32 v6, v9, 4, v6")
        a("v_add_u32 v6, %d, v6" % OS)
        a("v_bfe_u32 v8, v0, 3, 1")
        a("v_lshlrev_b32 v7, 13, v8")
        a("v_and_b32 v8, 7, v0")
        a("v_lshl_add_u32 v7, v8, 4, v7")
        a("v_mov_b32 v8, %d" % OOB)
        a("v_cmp_gt_u32 vcc, 16, v0")
        a("s_lshl_b32 s58, s4, 9")
        a("s_lshl_b32 s59, s8, 6")
        a("v_cndmask_b32 v7, v8, v7, vcc")
        a("s_add_u32 s58, s58, s59")
        a("s_mul_i32 s58, s58, 896")
        a("s_lshl_b32 s56, s11, 8")
        a("s_add_u32 s57, s56, 128")
        a("s_mul_i32 s59, s6, 14")
        a("s_lshl_b32 s60, s11, 2")
        a("s_add_u32 s59, s59, s60")
        a("s_lshl_b32 s59, s59, 13")
        a("s_lshl_b32 s60, s4, 3")
        a("s_add_u32 s60, s60, s7")
        a("s_lshl_b32 s60, s60, 7")
        a("s_add_u32 s59, s59, s60")
        a("s_add_u32 s59, s59, %d" % WS_A)
        a("s_add_u32 s60, s59, 16384")
        a("s_cmp_eq_u32 s11, 3")
        a("s_cselect_b32 s57, %d, s57" % OOB)
        a("s_cselect_b32 s60, %d, s60" % OOB)
        a("v_mov_b32 v167, %d" % FL)
        a("s_waitcnt lgkmcnt(0)")
        self.srd(40, 24, "s58", 320 * 896)
        self.srd(48, 38, None, WS_SIZE)
        a("s_barrier")
        self.wait_flag("v167", F_KISS, 4, "v8", sleep=2)
        self.stamp(1)
        self.o_issue(0)
        self.o_issue(1)
        for b in range(8):
            a("s_waitcnt vmcnt(%d)" % (4 if b < 7 else 0))
            self.tile_reads(WF + 16 * b, 2, (b & 1) * 4096)
            a("s_waitcnt lgkmcnt(0)")
            if b + 2 <= 7:
                self.o_issue(b + 2)
        self.stamp(2)
        self.wait_flag("v167", F_OS, 4, "v8")
        self.stamp(3)
        for s in range(4):
            a("ds_read_b128 v[%d:%d], v6 offset:%d" % (AF + 4 * s, AF + 4 * s + 3, s * 64))
        for n in range(4):
            for s in range(4):
                if n == 0:
                    a("s_waitcnt lgkmcnt(%d)" % (3 - s))
                self.mfma(AC0 + 4 * n, AF + 4 * s, WF + 16 * s + 4 * n, s == 0)

        def epi(acc, out, n):
            r = acc + 4 * n
            return ["v_pk_add_f32 v[%d:%d], v[%d:%d], v[%d:%d]" % (r, r + 1, r, r + 1, r + 2, r + 3),
                    "v_add_f32 v%d, v%d, v%d" % (out + n, r, r + 1),
                    "v_min_u32 v%d, -2, v%d" % (out + n, out + n)]
        fill = []
        for n in range(4):
            fill += epi(AC0, O0, n)
        fill.append("buffer_store_dwordx4 v[%d:%d], v7, s[48:51], s59 offen sc1" % (O0, O0 + 3))
        k = 0
        for n in range(4):
            for s in range(4):
                self.mfma(AC1 + 4 * n, AF + 4 * s, WF + 64 + 16 * s + 4 * n, s == 0)
                idx = 4 * n + s
                if idx >= 2 and k < len(fill):
                    a(fill[k]); k += 1
        assert k == len(fill)
        for n in range(3):
            for ins in epi(AC1, O1, n):
                a(ins)
        for ins in epi(AC1, O1, 3):
            a(ins)
        a("buffer_store_dwordx4 v[%d:%d], v7, s[48:51], s60 offen sc1" % (O1, O1 + 3))
        self.stamp(4)
        self.finish()

    def ffn_gu_issue(self, i):
        c = self.c
        self.dma("v20", 40, i * 16 * 3584, GT + i * 1024, c.pol_ffn)
        self.dma("v21", 44, i * 16 * 3584, UT + i * 1024, c.pol_ffn)

    def ffn_gu_setup(self):
        a = self.a
        a("v_lshrrev_b32 v22, 2, v0")
        a("v_mul_u32_u24 v20, 3584, v22")
        a("v_and_b32 v23, 3, v0")
        a("v_lshrrev_b32 v22, 5, v0")
        a("v_xor_b32 v23, v23, v22")
        a("v_lshl_add_u32 v20, v23, 4, v20")
        a("v_xor_b32 v21, 32, v20")
        a("s_lshl_b32 s56, s62, 6")
        self.srd(40, 28, "s56", 447 * 3584 + 64)
        self.srd(44, 30, "s56", 447 * 3584 + 64)

    def s_role(self):
        a, c = self.a, self.c
        a.label("L_SROLE")
        a("s_setprio 2")
        a("v_mov_b32 v2, %d" % FL)
        a("v_mov_b32 v3, 1")
        a("v_lshlrev_b32 v4, 4, v0")
        a("v_mov_b32 v5, %d" % OOB)
        a("v_cmp_gt_u32 vcc, 56, v0")
        a("s_mul_i32 s62, s4, 7")
        a("s_add_u32 s62, s62, s5")
        a("s_sub_u32 s62, s62, 16")
        a("v_cndmask_b32 v5, v5, v4, vcc")
        a("s_sub_u32 s63, s2, 192")
        a("s_mul_i32 s64, s63, 4682")
        a("s_lshr_b32 s64, s64, 16")
        a("s_mul_i32 s65, s64, 14")
        a("s_sub_u32 s65, s63, s65")
        a("s_mov_b32 s66, 3")
        a("s_cmp_lt_u32 s5, 31")
        a("s_cselect_b32 s66, 2, s66")
        a("s_cmp_lt_u32 s5, 24")
        a("s_cselect_b32 s66, 3, s66")
        a("s_cmp_lt_u32 s5, 23")
        a("s_cselect_b32 s66, 1, s66")
        a("s_cmp_lt_u32 s5, 16")
        a("s_cselect_b32 s66, 0, s66")
        a("s_mul_i32 s67, s11, 896")
        a("s_waitcnt lgkmcnt(0)")
        self.srd(48, 38, None, WS_SIZE)
        self.srd(52, 16, None, 3584)
        a("s_cmp_lg_u32 s66, 0")
        a("s_cbranch_scc1 L_S_NOX")
        a("buffer_load_dwordx4 v[8:11], v5, s[52:55], s67 offen")
        a.label("L_S_NOX")
        a("s_cmp_eq_u32 s11, 1")
        a("s_cbranch_scc1 L_S1")
        a("s_cmp_eq_u32 s11, 2")
        a("s_cbranch_scc1 L_S2")
        a("s_cmp_eq_u32 s11, 3")
        a("s_cbranch_scc1 L_S3")
        self.s0()
        self.s1()
        self.s2()
        self.s3()
        self.softmax()
        self.ffn()

    def ln1(self, vm):
        a = self.a
        skip = self.lbl("ln1skip")
        a("s_cmp_lg_u32 s66, 0")
        a("s_cbranch_scc1 %s" % skip)
        a("s_waitcnt vmcnt(%d)" % vm)
        self.layernorm(8, 24, 32)
        a("s_mul_i32 s14, s11, %d" % XN_STR)
        a("s_add_u32 s14, s14, %d" % XN)
        a("v_add_u32 v6, s14, v4")
        a("s_mov_b32 exec_hi, 0x00ffffff")
        a("ds_write_b128 v6, v[8:11]")
        self.signal("v2", F_XN, "v3")
        a.label(skip)

    def s0(self):
        a, c = self.a, self.c
        XF, WF, AC = 48, 104, 136
        a("s_cmp_eq_u32 s66, 1")
        a("s_cbranch_scc1 L_S0_FFN")
        a("s_cmp_lg_u32 s66, 0")
        a("s_cbranch_scc1 L_S0_BAR")
        a("v_lshrrev_b32 v22, 2, v0")
        a("v_lshlrev_b32 v20, 13, v22")
        a("v_and_b32 v23, 3, v0")
        a("v_lshrrev_b32 v22, 5, v0")
        a("v_lshlrev_b32 v22, 1, v22")
        a("v_xor_b32 v23, v23, v22")
        a("v_lshl_add_u32 v20, v23, 4, v20")
        a("s_lshl_b32 s56, s4, 10")
        a("s_lshl_b32 s57, s5, 6")
        a("s_add_u32 s56, s56, s57")
        self.srd(40, 22, "s56", 447 * 8192 + 64)
        for i in range(28):
            self.dma("v20", 40, i * 16 * 8192, BIG + i * 1024, c.pol_wq)
            if i == 5:
                a("s_barrier")
        self.stamp(1)
        self.ln1(28)
        a("v_lshrrev_b32 v22, 4, v0")
        a("v_bfe_u32 v23, v0, 2, 2")
        a("v_lshl_add_u32 v23, v22, 3, v23")
        a("v_lshlrev_b32 v20, 6, v23")
        a("v_and_b32 v23, 3, v0")
        a("v_lshl_add_u32 v20, v23, 3, v20")
        a("v_and_b32 v21, 1, v22")
        a("v_lshl_add_u32 v20, v21, 5, v20")
        a("v_add_u32 v20, %d, v20" % BIG)
        a("v_xor_b32 v21, 32, v20")
        a("v_mul_u32_u24 v6, %d, v23" % XN_STR)
        a("v_lshl_add_u32 v6, v22, 4, v6")
        a("v_add_u32 v6, %d, v6" % XN)
        a("v_lshlrev_b32 v7, 14, v23")
        a("v_bfe_u32 v24, v0, 2, 1")
        a("v_lshl_add_u32 v7, v24, 6, v7")
        a("v_lshl_add_u32 v7, v22, 4, v7")
        a("v_cmp_eq_u32 s[58:59], 1, v24")
        a("s_lshl_b32 s56, s4, 11")
        a("s_lshl_b32 s57, s5, 7")
        a("s_add_u32 s56, s56, s57")
        a("s_add_u32 s56, s56, %d" % WS_Q)
        self.wait_flag("v2", F_XN, 4, "v24")
        for s in range(14):
            a("ds_read_b128 v[%d:%d], v6 offset:%d" % (XF + 4 * s, XF + 4 * s + 3, s * 64))
        self.wait_flag("v2", F_TAG, 1, "v24")
        a("s_mov_b32 s68, s14")
        self.stamp(2)
        for sp in range(7):
            a("s_waitcnt vmcnt(%d)" % (24 - 4 * sp))
            base = WF + 16 * (sp & 1)
            for ss in range(2):
                s = 2 * sp + ss
                for n in range(2):
                    for hh in range(2):
                        r = base + 8 * ss + 4 * n + 2 * hh
                        a("ds_read_b64_tr_b16 v[%d:%d], v%d offset:%d" % (r, r + 1, 20 + n, s * 2048 + hh * 256))
            for ss in range(2):
                s = 2 * sp + ss
                for n in range(2):
                    a("s_waitcnt lgkmcnt(%d)" % (6 - 4 * ss - 2 * n))
                    self.mfma(AC + 4 * n, base + 8 * ss + 4 * n, XF + 4 * s, s == 0)
        a("v_mov_b32 v13, s68")
        a("v_mov_b32 v15, s68")
        a("s_nop 5")
        a("v_cvt_pk_bf16_f32 v12, v%d, v%d" % (AC, AC + 1))
        a("v_cvt_pk_bf16_f32 v14, v%d, v%d" % (AC + 2, AC + 3))
        a("v_cvt_pk_bf16_f32 v16, v%d, v%d" % (AC + 4, AC + 5))
        a("v_cvt_pk_bf16_f32 v17, v%d, v%d" % (AC + 6, AC + 7))
        a("v_cndmask_b32 v12, v12, v16, s[58:59]")
        a("v_cndmask_b32 v14, v14, v17, s[58:59]")
        a("s_mov_b32 exec_lo, 0x00ff00ff")
        a("s_mov_b32 exec_hi, 0x00ff00ff")
        a("buffer_store_dwordx4 v[12:15], v7, s[48:51], s56 offen sc1")
        a("s_mov_b64 exec, -1")
        self.stamp(3)
        a("s_branch L_S0_GATHER")
        a.label("L_S0_FFN")
        self.ffn_gu_setup()
        a("s_barrier")
        for i in range(c.ffn_early):
            self.ffn_gu_issue(i)
        a("s_branch L_S0_TAG")
        a.label("L_S0_BAR")
        a("s_barrier")
        a.label("L_S0_TAG")
        self.wait_flag("v2", F_KISS, 4, "v24", sleep=2)
        self.wait_flag("v2", F_TAG, 1, "v24")
        a("s_mov_b32 s68, s14")
        a.label("L_S0_GATHER")
        a("s_lshl_b32 s56, s10, 11")
        a("s_add_u32 s56, s56, %d" % WS_Q)
        a("s_lshl_b32 s57, s10, 7")
        a("s_add_u32 s57, s57, %d" % WS_GFL)
        a("v_and_b32 v6, 7, v0")
        a("v_lshlrev_b32 v6, 2, v6")
        a("v_lshlrev_b32 v7, 3, v0")
        a("v_add_u32 v7, %d, v7" % QS)
        a("s_mov_b32 s13, 0")
        a.label("L_QPOLL")
        a("buffer_load_dwordx4 v[8:11], v4, s[48:51], s56 offen sc1")
        a("buffer_load_dwordx4 v[12:15], v4, s[48:51], s56 offen offset:1024 sc1")
        a("buffer_load_dword v16, v6, s[48:51], s57 offen sc1")
        a("s_waitcnt vmcnt(0)")
        a("v_xor_b32 v9, s68, v9")
        a("v_xor_b32 v11, s68, v11")
        a("v_xor_b32 v13, s68, v13")
        a("v_xor_b32 v15, s68, v15")
        a("v_xor_b32 v16, s68, v16")
        a("v_or3_b32 v9, v9, v11, v13")
        a("v_or3_b32 v9, v9, v15, v16")
        a("v_cmp_ne_u32 vcc, 0, v9")
        a("s_cbranch_vccz L_QOK")
        a("s_add_u32 s13, s13, 1")
        a("s_cmp_lt_u32 s13, %d" % c.poll_max)
        a("s_cbranch_scc1 L_QPOLL")
        a.label("L_QOK")
        a("v_mov_b32 v9, v10")
        a("v_mov_b32 v13, v14")
        a("ds_write_b64 v7, v[8:9]")
        a("ds_write_b64 v7, v[12:13] offset:%d" % QS_STR)
        self.signal("v2", F_Q, "v3")
        self.stamp(4)
        a("s_cmp_eq_u32 s66, 1")
        a("s_cbranch_scc1 L_FFN")
        self.finish()

    def s1(self):
        a = self.a
        a.label("L_S1")
        a("s_barrier")
        self.ln1(0)
        a("s_branch L_SOFTMAX")

    def s2(self):
        a, c = self.a, self.c
        a.label("L_S2")
        a("v_mov_b32 v19, 0")
        a("buffer_load_dword v7, v19, s[48:51], 0 offen sc1")
        for k in range(4):
            a("v_mov_b32 v%d, -1" % (12 + k))
        a("v_bfe_u32 v16, v0, 4, 1")
        a("v_lshlrev_b32 v16, 11, v16")
        a("v_and_b32 v17, 15, v0")
        a("v_lshl_add_u32 v16, v17, 4, v16")
        a("s_lshl_b32 s56, s10, 12")
        a("s_lshl_b32 s57, s7, 8")
        a("s_add_u32 s56, s56, s57")
        a("s_add_u32 s56, s56, %d" % WS_SC)
        a("s_mov_b32 exec_hi, 0")
        a("buffer_store_dwordx4 v[12:15], v16, s[48:51], s56 offen sc1")
        a("s_mov_b64 exec, -1")
        a("v_lshrrev_b32 v17, 3, v0")
        a("v_and_b32 v18, 7, v0")
        a("v_lshlrev_b32 v18, 4, v18")
        a("v_lshl_add_u32 v16, v17, 13, v18")
        a("s_mul_i32 s56, s6, %d" % (14 * 8192))
        a("s_lshl_b32 s57, s4, 3")
        a("s_add_u32 s57, s57, s7")
        a("s_lshl_b32 s57, s57, 7")
        a("s_add_u32 s56, s56, s57")
        a("s_add_u32 s56, s56, %d" % WS_A)
        a("buffer_store_dwordx4 v[12:15], v16, s[48:51], s56 offen sc1")
        a("s_add_u32 s56, s56, %d" % (8 * 8192))
        a("s_mov_b32 exec_hi, 0x0000ffff")
        a("buffer_store_dwordx4 v[12:15], v16, s[48:51], s56 offen sc1")
        a("s_mov_b64 exec, -1")
        a("s_cmp_eq_u32 s66, 1")
        a("s_cbranch_scc0 L_S2_NOC")
        a("v_mul_u32_u24 v16, %d, v17" % (NF * 128))
        a("v_add_u32 v16, v16, v18")
        a("s_lshl_b32 s56, s62, 7")
        a("s_add_u32 s56, s56, %d" % WS_C)
        for k in range(7):
            a("buffer_store_dwordx4 v[12:15], v16, s[48:51], s56 offen sc1")
            a("s_add_u32 s56, s56, %d" % (8 * NF * 128))
        a.label("L_S2_NOC")
        a("s_cmp_eq_u32 s66, 2")
        a("s_cbranch_scc0 L_S2_NOH")
        a("v_lshrrev_b32 v17, 2, v0")
        a("v_mul_u32_u24 v16, %d, v17" % HREP_STRIDE)
        a("v_and_b32 v17, 3, v0")
        a("v_lshl_add_u32 v16, v17, 4, v16")
        a("s_lshl_b32 s56, s63, 7")
        a("s_add_u32 s56, s56, %d" % WS_H)
        a("s_mov_b32 exec_lo, 0x%x" % ((1 << (4 * c.hrep)) - 1))
        a("s_mov_b32 exec_hi, 0")
        a("buffer_store_dwordx4 v[12:15], v16, s[48:51], s56 offen sc1")
        a("s_mov_b64 exec, -1")
        a.label("L_S2_NOH")
        a("s_barrier")
        a("s_waitcnt vmcnt(3)")
        a("v_readfirstlane_b32 s68, v7")
        a("s_or_b32 s68, s68, 1")
        a("s_mul_i32 s68, s68, 0x9E3779B1")
        a("s_add_u32 s68, s68, 0x85EBCA6A")
        a("v_mov_b32 v7, s68")
        a("s_mov_b64 exec, 1")
        a("ds_write_b32 v2, v7 offset:%d" % F_TAG)
        a("s_mov_b64 exec, -1")
        self.ln1(3)
        a("s_lshl_b32 s56, s10, 5")
        a("s_lshl_b32 s57, s7, 2")
        a("s_add_u32 s56, s56, s57")
        a("s_add_u32 s56, s56, %d" % WS_FLAGS)
        a("s_lshl_b32 s58, s10, 7")
        a("s_add_u32 s57, s57, s58")
        a("s_add_u32 s57, s57, %d" % WS_GFL)
        a("s_waitcnt vmcnt(0)")
        a("s_mov_b64 exec, 1")
        a("buffer_store_dword v7, v19, s[48:51], s57 offen sc1")
        a("buffer_store_dword v7, v19, s[48:51], s56 offen sc1")
        a("s_mov_b64 exec, -1")
        self.stamp(1)
        a("s_branch L_SOFTMAX")

    def col_offset(self, d):
        a = self.a
        a("s_mul_i32 %s, s64, 896" % d)
        a("s_lshr_b32 s14, s65, 1")
        a("s_lshl_b32 s14, s14, 7")
        a("s_add_u32 %s, %s, s14" % (d, d))
        a("s_and_b32 s14, s65, 1")
        a("s_lshl_b32 s14, s14, 4")
        a("s_add_u32 %s, %s, s14" % (d, d))

    def flags_check(self):
        a, c = self.a, self.c
        top, ok = self.lbl("fc"), self.lbl("fcok")
        self.wait_flag("v2", F_TAG, 1, "v24", sleep=1)
        a("s_mov_b32 s68, s14")
        a("s_mov_b32 s13, 0")
        a("s_mov_b32 s56, %d" % WS_FLAGS)
        a.label(top)
        a("buffer_load_dwordx4 v[12:15], v4, s[48:51], s56 offen sc1")
        a("s_waitcnt vmcnt(0)")
        for k in range(4):
            a("v_xor_b32 v%d, s68, v%d" % (12 + k, 12 + k))
        a("v_or3_b32 v12, v12, v13, v14")
        a("v_or_b32 v12, v12, v15")
        a("v_cmp_ne_u32 vcc, 0, v12")
        a("s_cbranch_vccz %s" % ok)
        a("s_sleep 8")
        a("s_add_u32 s13, s13, 1")
        a("s_cmp_lt_u32 s13, %d" % c.poll_max)
        a("s_cbranch_scc1 %s" % top)
        a.label(ok)

    def s3(self):
        a, c = self.a, self.c
        a.label("L_S3")
        a("v_and_b32 v6, 31, v0")
        a("v_lshlrev_b32 v6, 2, v6")
        a("v_add_u32 v6, %d, v6" % ZERO)
        a("v_mov_b32 v7, 0")
        a("ds_write_b32 v6, v7")
        a("s_waitcnt lgkmcnt(0)")
        a("s_barrier")
        self.ln1(0)
        a("s_cmp_eq_u32 s66, 1")
        a("s_cbranch_scc1 L_S3_FFN")
        a("s_cmp_eq_u32 s66, 2")
        a("s_cbranch_scc1 L_S3_RED")
        self.finish()
        a.label("L_S3_FFN")
        self.ffn_gu_setup()
        a("v_lshrrev_b32 v16, 3, v0")
        a("v_and_b32 v17, 7, v0")
        a("v_bfe_u32 v18, v0, 4, 2")
        a("v_lshlrev_b32 v18, 1, v18")
        a("v_xor_b32 v17, v17, v18")
        a("v_lshlrev_b32 v17, 4, v17")
        a("v_lshrrev_b32 v18, 2, v16")
        a("v_lshlrev_b32 v18, 3, v18")
        a("v_and_b32 v16, 3, v16")
        a("v_add_u32 v16, v16, v18")
        a("v_mul_u32_u24 v16, 896, v16")
        a("v_add_u32 v19, v16, v17")
        a("s_mul_i32 s56, s62, %d" % (32 * 896))
        self.srd(52, 32, "s56", 32 * 896)
        self.wait_flag("v2", F_SC, 4, "v24", sleep=2)
        n = 0
        for i in range(c.ffn_early, 28):
            self.ffn_gu_issue(i)
            n += 2
            if n >= c.ffn_thr:
                a("s_waitcnt vmcnt(%d)" % (c.ffn_thr - 2))
        for P in range(7):
            for ii in range(4):
                rows = 16 * (ii & 1) + 4 * (ii >> 1)
                self.dma("v19", 52, P * 128 + rows * 896, DT + P * 4096 + ii * 1024, c.pol_ffn)
            a("s_waitcnt vmcnt(%d)" % c.ffn_thr)
        self.flags_check()
        a("s_branch L_FFN")
        a.label("L_S3_RED")
        L, T = 32, 64
        a("v_lshrrev_b32 v16, 4, v0")
        a("v_and_b32 v17, 7, v0")
        a("v_lshlrev_b32 v18, 5, v16")
        a("v_lshl_add_u32 v18, v17, 1, v18")
        self.col_offset("s69")
        a("buffer_load_ushort v19, v18, s[52:55], s69 offen")
        a("v_mov_b32 v20, %d" % OOB)
        a("v_bfe_u32 v21, v0, 3, 1")
        a("v_cmp_eq_u32 vcc, 0, v21")
        a("v_mul_u32_u24 v21, %d, v21" % HREP_STRIDE)
        a("v_lshl_add_u32 v21, v16, 4, v21")
        a("v_cndmask_b32 v18, v20, v18, vcc")
        a("v_cmp_eq_u32 vcc, 0, v17")
        a("s_lshl_b32 s70, s63, 7")
        a("s_add_u32 s70, s70, %d" % WS_H)
        a("v_cndmask_b32 v21, v20, v21, vcc")
        self.srd(44, 34, None, 3584)
        self.wait_flag("v2", F_SC, 4, "v24", sleep=2)
        self.flags_check()
        a("v_lshlrev_b32 v19, 16, v19")
        a("s_cmp_eq_u32 s63, 0")
        a("s_cbranch_scc0 L_S3_NOEP")
        a("v_mov_b32 v6, 0")
        a("v_mov_b32 v7, s68")
        a("s_mov_b64 exec, 1")
        a("buffer_store_dword v7, v6, s[48:51], 0 offen sc1")
        a("s_mov_b64 exec, -1")
        a.label("L_S3_NOEP")
        a("s_lshl_b32 s56, s63, 13")
        a("s_add_u32 s56, s56, %d" % WS_A)
        a("s_add_u32 s57, s56, 4096")
        a("s_mul_i32 s58, s63, %d" % (NF * 128))
        a("s_add_u32 s58, s58, %d" % WS_C)
        a("s_add_u32 s59, s58, 4096")
        self.stamp(1)
        self.wait_flag("v2", F_OS, 4, "v24", sleep=1)
        self.stamp(2)
        self.inbox_reduce(8, "v4", ("s56", "s57"), L, T, "v22")
        a("v_cvt_pk_bf16_f32 v22, v22, v22")
        a("v_lshlrev_b32 v22, 16, v22")
        a("v_add_f32 v22, v19, v22")
        a("s_nop 1")
        a("v_mov_b32_dpp v23, v22 quad_perm:[1,0,3,2] row_mask:0xf bank_mask:0xf")
        a("v_cvt_pk_bf16_f32 v24, v22, v23")
        a("v_min_u32 v24, -2, v24")
        a("s_nop 1")
        a("v_mov_b32_dpp v25, v24 row_shl:2 row_mask:0xf bank_mask:0xf")
        a("v_mov_b32_dpp v26, v24 row_shl:4 row_mask:0xf bank_mask:0xf")
        a("v_mov_b32_dpp v27, v24 row_shl:6 row_mask:0xf bank_mask:0xf")
        for k in range(c.hrep // 2):
            a("buffer_store_dwordx4 v[24:27], v21, s[48:51], s70 offen sc1")
            if k + 1 < c.hrep // 2:
                a("s_add_u32 s70, s70, %d" % (2 * HREP_STRIDE))
        a("v_lshlrev_b32 v28, 16, v24")
        self.stamp(3)
        self.inbox_reduce(7, "v4", ("s58", "s59"), L, T, "v22")
        a("v_cvt_pk_bf16_f32 v22, v22, v22")
        a("v_lshlrev_b32 v22, 16, v22")
        a("v_add_f32 v22, v28, v22")
        a("v_cvt_pk_bf16_f32 v22, v22, v22")
        a("buffer_store_short v22, v18, s[44:47], s69 offen")
        self.stamp(4)
        self.finish()

    def softmax(self):
        a, c = self.a, self.c
        F = 32
        a.label("L_SOFTMAX")
        a("s_sub_u32 s58, s11, 1")
        a("s_lshl_b32 s56, s10, 12")
        a("s_lshl_b32 s57, s58, 11")
        a("s_add_u32 s56, s56, s57")
        a("s_add_u32 s56, s56, %d" % WS_SC)
        a("s_lshl_b32 s57, s9, 10")
        a("s_add_u32 s59, s56, s57")
        a("s_xor_b32 s57, s57, 1024")
        a("s_add_u32 s60, s56, s57")
        a("s_mul_i32 s14, s58, %d" % PS_STR)
        a("s_add_u32 s14, s14, %d" % PS)
        a("v_add_u32 v6, s14, v4")
        a("s_mov_b32 s61, %s" % f32(0.0625 * LOG2E))
        self.wait_flag("v2", F_SC, 4, "v24", sleep=1)
        self.stamp(2)
        a("s_mov_b32 s13, 0")
        a.label("L_SPOLL")
        a("buffer_load_dwordx4 v[8:11], v4, s[48:51], s59 offen sc1")
        a("buffer_load_dwordx4 v[12:15], v4, s[48:51], s60 offen sc1")
        a("s_waitcnt vmcnt(0)")
        a("v_max3_u32 v16, v8, v9, v10")
        a("v_max3_u32 v17, v11, v12, v13")
        a("v_max3_u32 v16, v16, v14, v15")
        a("v_max_u32 v16, v16, v17")
        a("v_cmp_eq_u32 vcc, -1, v16")
        a("s_cbranch_vccz L_SOK")
        a("s_add_u32 s13, s13, 1")
        a("s_cmp_lt_u32 s13, %d" % c.poll_max)
        a("s_cbranch_scc1 L_SPOLL")
        a.label("L_SOK")
        self.stamp(3)
        for k in range(8):
            a("v_lshlrev_b32 v%d, 16, v%d" % (F + 2 * k, 8 + k))
            a("v_and_b32 v%d, 0xffff0000, v%d" % (F + 2 * k + 1, 8 + k))
        a("v_max_f32 v16, v%d, v%d" % (F, F + 1))
        for k in range(1, 8):
            a("v_max3_f32 v16, v16, v%d, v%d" % (F + 2 * k, F + 2 * k + 1))
        self.wave_reduce1("v_max_f32", "v16")
        a("s_nop 0")
        a("v_readlane_b32 s58, v16, 63")
        a("s_nop 1")
        a("v_mov_b32 v17, s58")
        a("v_mul_f32 v17, s61, v17")
        for k in range(16):
            a("v_fma_f32 v%d, v%d, s61, -v17" % (F + k, F + k))
        for k in range(16):
            a("v_exp_f32 v%d, v%d" % (F + k, F + k))
        a("v_pk_add_f32 v[18:19], v[%d:%d], v[%d:%d]" % (F, F + 1, F + 2, F + 3))
        for k in range(2, 8):
            a("v_pk_add_f32 v[18:19], v[18:19], v[%d:%d]" % (F + 2 * k, F + 2 * k + 1))
        a("v_add_f32 v16, v18, v19")
        self.wave_reduce1("v_add_f32", "v16")
        a("s_nop 0")
        a("v_readlane_b32 s58, v16, 63")
        a("s_nop 1")
        a("v_rcp_f32 v18, s58")
        a("s_nop 0")
        for k in range(4):
            a("v_pk_mul_f32 v[%d:%d], v[%d:%d], v[18:19] op_sel_hi:[1,0]" % (F + 2 * k, F + 2 * k + 1, F + 2 * k, F + 2 * k + 1))
        for k in range(4):
            a("v_cvt_pk_bf16_f32 v%d, v%d, v%d" % (8 + k, F + 2 * k, F + 2 * k + 1))
        a("ds_write_b128 v6, v[8:11]")
        self.signal("v2", F_P, "v3")
        self.stamp(4)
        a("s_cmp_eq_u32 s66, 1")
        a("s_cbranch_scc1 L_FFN")
        self.finish()

    def ffn(self):
        a, c = self.a, self.c
        GF, DF, HF = 48, 104, 136
        a.label("L_FFN")
        a("v_lshrrev_b32 v22, 4, v0")
        a("v_bfe_u32 v23, v0, 2, 2")
        a("v_lshl_add_u32 v24, v22, 3, v23")
        a("v_lshlrev_b32 v20, 6, v24")
        a("v_and_b32 v24, 1, v0")
        a("v_lshl_add_u32 v20, v24, 3, v20")
        a("v_and_b32 v24, 1, v22")
        a("v_and_b32 v25, 2, v0")
        a("v_xor_b32 v24, v24, v25")
        a("v_xor_b32 v24, s11, v24")
        a("v_lshl_add_u32 v20, v24, 4, v20")
        a("v_mul_u32_u24 v25, %d, v25" % (28672 // 2))
        a("v_add_u32 v20, v20, v25")
        a("v_add_u32 v20, %d, v20" % GT)
        a("s_lshl_b32 s14, s11, 13")
        a("s_add_u32 s12, s14, %d" % DT)
        self.tr_addrs(12, "s12", "v24", "v25", "v26")
        a("v_mul_u32_u24 v21, %d, v23" % XN_STR)
        a("v_lshl_add_u32 v21, v22, 4, v21")
        a("v_add_u32 v21, %d, v21" % XN)
        a("s_mul_i32 s14, s11, %d" % XN_STR)
        a("s_add_u32 s14, s14, %d" % XN)
        a("v_lshrrev_b32 v24, 3, v0")
        a("v_lshlrev_b32 v6, 7, v24")
        a("v_and_b32 v24, 3, v0")
        a("v_lshl_add_u32 v6, v24, 5, v6")
        a("v_bfe_u32 v25, v0, 2, 1")
        a("v_lshl_add_u32 v6, v25, 4, v6")
        a("v_add_u32 v6, s14, v6")
        a("v_lshrrev_b32 v25, 2, v0")
        a("v_lshlrev_b32 v25, 7, v25")
        a("v_lshl_add_u32 v25, v24, 4, v25")
        a("v_max_u32 v5, v5, v25")
        a("v_lshlrev_b32 v24, 6, v23")
        a("v_lshl_add_u32 v24, v22, 4, v24")
        a("v_add_u32 v24, %d, v24" % ACT)
        a("v_mov_b32 v25, %d" % ZERO)
        a("v_and_b32 v26, 3, v0")
        for n in range(4):
            a("v_cmp_eq_u32 vcc, %d, v26" % n)
            a("s_nop 1")
            a("v_cndmask_b32 v%d, v25, v24, vcc" % (16 + n))
        a("v_and_b32 v24, 15, v0")
        a("v_lshlrev_b32 v7, 6, v22")
        a("v_lshl_add_u32 v7, v24, 1, v7")
        a("s_lshl_b32 s14, s11, 4")
        a("s_add_u32 s14, s14, %d" % ACT)
        a("v_add_u32 v7, s14, v7")
        a("v_mov_b32 v25, %d" % OS)
        a("v_cmp_gt_u32 vcc, 8, v24")
        a("s_nop 1")
        a("v_cndmask_b32 v7, v25, v7, vcc")
        a("v_mul_u32_u24 v25, 14, v22")
        a("v_bfe_u32 v26, v0, 3, 1")
        a("v_add_u32 v25, v25, v26")
        a("v_mul_u32_u24 v25, %d, v25" % (NF * 128))
        a("v_and_b32 v26, 7, v0")
        a("v_lshl_add_u32 v23, v26, 4, v25")
        a("s_mul_i32 s69, s11, %d" % (4 * NF * 128))
        a("s_lshl_b32 s70, s62, 7")
        a("s_add_u32 s69, s69, s70")
        a("s_add_u32 s69, s69, %d" % WS_C)
        a("s_add_u32 s70, s69, %d" % (2 * NF * 128))
        a("s_cmp_eq_u32 s11, 3")
        a("s_cselect_b32 s70, %d, s70" % OOB)
        a("s_and_b32 s60, s4, %d" % (c.hrep - 1))
        a("s_mul_i32 s60, s60, %d" % HREP_STRIDE)
        a("s_lshl_b32 s14, s67, 1")
        a("s_add_u32 s60, s60, s14")
        a("s_add_u32 s60, s60, %d" % WS_H)
        a("s_mov_b32 s61, %s" % f32(-LOG2E))
        a("s_waitcnt vmcnt(0)")
        a("s_barrier")
        self.stamp(5)
        for s in range(14):
            for hh in range(2):
                r = GF + 4 * s + 2 * hh
                a("ds_read_b64_tr_b16 v[%d:%d], v20 offset:%d" % (r, r + 1, s * 2048 + hh * 256))
            if s % 4 == 3:
                a("s_waitcnt lgkmcnt(0)")
        a("s_waitcnt lgkmcnt(0)")
        self.tile_reads(DF, 12, 0)
        a("s_waitcnt lgkmcnt(0)")
        self.tile_reads(DF + 16, 12, 4096)
        a("s_waitcnt lgkmcnt(0)")
        self.stamp(6)
        a("s_mov_b32 s13, 0")
        a.label("L_HPOLL")
        a("buffer_load_dwordx4 v[8:11], v5, s[48:51], s60 offen sc1")
        a("s_waitcnt vmcnt(0)")
        a("v_max3_u32 v24, v8, v9, v10")
        a("v_max_u32 v24, v24, v11")
        a("v_cmp_eq_u32 vcc, -1, v24")
        a("s_cbranch_vccz L_HOK")
        a("s_add_u32 s13, s13, 1")
        a("s_cmp_lt_u32 s13, %d" % c.poll_max)
        a("s_cbranch_scc1 L_HPOLL")
        a.label("L_HOK")
        self.stamp(7)
        self.layernorm(8, 24, 32)
        a("s_mov_b32 exec_hi, 0x00ffffff")
        a("ds_write_b128 v6, v[8:11]")
        a("s_mov_b64 exec, -1")
        a("s_waitcnt lgkmcnt(0)")
        a("s_barrier")
        AC = 24
        for s in range(7):
            a("ds_read_b128 v[%d:%d], v21 offset:%d" % (HF + 4 * s, HF + 4 * s + 3, s * 64))
        for s in range(14):
            a("s_waitcnt lgkmcnt(%d)" % (6 if s < 7 else 13 - s))
            self.mfma(AC, HF + 4 * (s % 7), GF + 4 * s, s == 0)
            if s < 7:
                a("ds_read_b128 v[%d:%d], v21 offset:%d" % (HF + 4 * s, HF + 4 * s + 3, (s + 7) * 64))
        a("s_nop 7")
        a("v_cvt_pk_bf16_f32 v28, v24, v24")
        a("v_lshlrev_b32 v28, 16, v28")
        a("v_mul_f32 v29, s61, v28")
        a("v_exp_f32 v29, v29")
        a("v_mov_b32_dpp v30, v28 row_ror:8 row_mask:0xf bank_mask:0xf")
        a("v_add_f32 v29, 1.0, v29")
        a("v_rcp_f32 v29, v29")
        a("s_nop 0")
        a("v_mul_f32 v29, v28, v29")
        a("v_cvt_pk_bf16_f32 v29, v29, v29")
        a("v_lshlrev_b32 v29, 16, v29")
        a("v_mul_f32 v29, v29, v30")
        a("v_cvt_pk_bf16_f32 v29, v29, v29")
        a("ds_write_b16 v7, v29")
        a("s_waitcnt lgkmcnt(0)")
        a("s_barrier")
        for n in range(4):
            a("ds_read_b128 v[%d:%d], v%d" % (HF + 4 * n, HF + 4 * n + 3, 16 + n))
        for pp in range(2):
            for n in range(4):
                if pp == 0:
                    a("s_waitcnt lgkmcnt(%d)" % (3 - n))
                self.mfma(24 + 4 * pp, HF + 4 * n, DF + 16 * pp + 4 * n, n == 0)
        a("s_nop 3")
        for k in range(4):
            a("v_min_u32 v%d, -2, v%d" % (24 + k, 24 + k))
        a("buffer_store_dwordx4 v[24:27], v23, s[48:51], s69 offen sc1")
        for k in range(4):
            a("v_min_u32 v%d, -2, v%d" % (28 + k, 28 + k))
        a("buffer_store_dwordx4 v[28:31], v23, s[48:51], s70 offen sc1")
        self.stamp(8)
        self.finish()


HEADER = """; Fused pre-LN decode block: sliding-window GQA attention + SwiGLU FFN in one launch (generated by gen_kernel.py).
"""


def generate(cfg):
    body = Gen(cfg).build()
    return f"""{HEADER}; @launch grid=(256,1,1) block=(768,1,1) lds={LDS_TOTAL}
.amdgcn_target "amdgcn-amd-amdhsa--gfx950"
.text
.globl {NAME}
.p2align 8
.type {NAME},@function
{NAME}:
{body}
.section .rodata,"a"
.p2align 6
.amdhsa_kernel {NAME}
  .amdhsa_next_free_vgpr 168
  .amdhsa_next_free_sgpr 96
  .amdhsa_accum_offset 168
  .amdhsa_group_segment_fixed_size 0
  .amdhsa_kernarg_size 96
  .amdhsa_user_sgpr_count 2
  .amdhsa_user_sgpr_kernarg_segment_ptr 1
  .amdhsa_system_sgpr_workgroup_id_x 1
  .amdhsa_float_denorm_mode_32 3
.end_amdhsa_kernel
"""


if __name__ == "__main__":
    cfg = Cfg()
    out = sys.argv[1]
    for kv in sys.argv[2:]:
        k, v = kv.split("=")
        cur = getattr(cfg, k)
        setattr(cfg, k, (v == "1") if isinstance(cur, bool) else type(cur)(v))
    open(out, "w").write(generate(cfg))
```

```python
import sys
from asmgen import Asm, NAME

WS_EPOCH = 0x0
WS_FLAGS = 0x1000
WS_GFL = 0x14000
WS_Q = 0x2000
WS_SC = 0x20000
WS_H = 0x40000
WS_A = 0x80000
WS_C = 0x100000
WS_TS = 0x180000
WS_SIZE = 0x200000
NF = 56
HREP_STRIDE = 8192
OOB = 0x40000000

RINGK = 0
RINGO = 32768
BIG = 65536
GT = BIG
UT = BIG + 28672
DT = BIG + 57344
SH = 151552
XN = SH
XN_STR = 960
QS = SH + 3840
QS_STR = 576
PS = SH + 4992
PS_STR = 1088
OS = SH + 7168
OS_STR = 320
ACT = SH + 8448
ZERO = SH + 8704
FL = SH + 8768
LDS_TOTAL = SH + 8832
F_TAG, F_XN, F_Q, F_SC, F_P, F_OS, F_KISS = 0, 4, 8, 12, 16, 20, 24

LOG2E = 1.4426950408889634


def f32(x):
    import struct
    return "0x%08x" % struct.unpack("<I", struct.pack("<f", x))[0]


class Cfg:
    diag = False
    dbg = False
    pol_kv = "nt"
    pol_wq = ""
    pol_wo = ""
    pol_ffn = ""
    kiss_batch = 1
    hrep = 2
    poll_max = 1 << 20
    ffn_thr = 8
    dbg_slots = [(0,0,0),(0,0,1),(0,0,3),(0,0,4),(0,4,1),(0,4,3),(0,4,5),(0,8,2),(0,8,4),(192,3,0),(192,3,3),(192,3,4),(128,0,7),(128,0,8),(4,0,0),(4,8,4)]
    ffn_early = 14


class Gen:
    def __init__(self, cfg):
        self.c = cfg
        self.a = Asm()
        self.uid = 0

    def lbl(self, base):
        self.uid += 1
        return "L_%s_%d" % (base, self.uid)

    def stamp(self, k):
        if self.c.diag:
            a = self.a
            a("s_memrealtime s[%d:%d]" % (72 + 2 * k, 73 + 2 * k))
            a("s_waitcnt lgkmcnt(0)")

    def stamps_init(self):
        if self.c.diag:
            for k in range(12):
                self.a("s_mov_b32 s%d, 0" % (72 + 2 * k))

    def finish(self):
        a = self.a
        if self.c.diag:
            a("s_branch L_DIAG_END")
        else:
            a("s_endpgm")

    def srd(self, d, ptr, off_sreg, nrec):
        a = self.a
        if off_sreg is None:
            a("s_mov_b32 s%d, s%d" % (d, ptr))
            a("s_mov_b32 s%d, s%d" % (d + 1, ptr + 1))
        else:
            a("s_add_u32 s%d, s%d, %s" % (d, ptr, off_sreg))
            a("s_addc_u32 s%d, s%d, 0" % (d + 1, ptr + 1))
        a("s_mov_b32 s%d, %d" % (d + 2, nrec))
        a("s_mov_b32 s%d, 0x20000" % (d + 3))

    def dma(self, voff, srd, soff, m0, pol):
        a = self.a
        if isinstance(m0, tuple):
            a("s_add_u32 m0, %s, %d" % m0)
        else:
            a("s_mov_b32 m0, %d" % m0)
        if isinstance(soff, tuple):
            a("s_add_u32 s15, %s, %d" % soff)
        else:
            a("s_mov_b32 s15, %d" % soff)
        a("buffer_load_dwordx4 %s, s[%d:%d], s15 offen%s lds" % (voff, srd, srd + 3, (" " + pol) if pol else ""))

    def wait_flag(self, vfl, off, n, vt, sleep=0):
        a = self.a
        l = self.lbl("wf")
        a.label(l)
        if sleep:
            a("s_sleep %d" % sleep)
        a("ds_read_b32 %s, %s offset:%d" % (vt, vfl, off))
        a("s_waitcnt lgkmcnt(0)")
        a("v_readfirstlane_b32 s14, %s" % vt)
        a("s_cmp_ge_u32 s14, %d" % n)
        a("s_cbranch_scc0 %s" % l)

    def signal(self, vfl, off, vone):
        a = self.a
        a("s_mov_b64 exec, 1")
        a("ds_add_u32 %s, %s offset:%d" % (vfl, vone, off))
        a("s_mov_b64 exec, -1")

    def tr_addrs(self, dst, base_sreg_or_int, t0, t1, t2):
        a = self.a
        a("v_lshrrev_b32 %s, 2, v0" % t0)
        a("v_bfe_u32 %s, v0, 3, 2" % t1)
        a("v_and_b32 %s, 3, v0" % t2)
        a("v_lshlrev_b32 %s, 7, %s" % (t0, t0))
        a("v_lshl_add_u32 %s, %s, 3, %s" % (t0, t2, t0))
        a("v_add_u32 %s, %s, %s" % (t0, base_sreg_or_int, t0))
        for n in range(4):
            a("v_xor_b32 %s, %d, %s" % (t2, n, t1))
            a("v_lshl_add_u32 v%d, %s, 5, %s" % (dst + n, t2, t0))

    def tile_reads(self, dst, addr0, off):
        a = self.a
        for n in range(4):
            for hh in range(2):
                r = dst + 4 * n + 2 * hh
                a("ds_read_b64_tr_b16 v[%d:%d], v%d offset:%d" % (r, r + 1, addr0 + n, off + hh * 2048))

    def mfma(self, d, A, B, first):
        self.a("v_mfma_f32_16x16x32_bf16 v[%d:%d], v[%d:%d], v[%d:%d], %s" % (
            d, d + 3, A, A + 3, B, B + 3, "0" if first else "v[%d:%d]" % (d, d + 3)))

    def wave_reduce2(self, op, x, y):
        a = self.a
        for ctl in ("row_shr:1", "row_shr:2", "row_shr:4", "row_shr:8"):
            a("s_nop 0")
            for r in (x, y):
                a("%s_dpp %s, %s, %s %s row_mask:0xf bank_mask:0xf" % (op, r, r, r, ctl))
        for ctl in ("row_bcast:15 row_mask:0xa", "row_bcast:31 row_mask:0xc"):
            a("s_nop 0")
            for r in (x, y):
                a("%s_dpp %s, %s, %s %s bank_mask:0xf" % (op, r, r, r, ctl))

    def wave_reduce1(self, op, x):
        a = self.a
        for ctl in ("row_shr:1", "row_shr:2", "row_shr:4", "row_shr:8"):
            a("s_nop 1")
            a("%s_dpp %s, %s, %s %s row_mask:0xf bank_mask:0xf" % (op, x, x, x, ctl))
        for ctl in ("row_bcast:15 row_mask:0xa", "row_bcast:31 row_mask:0xc"):
            a("s_nop 1")
            a("%s_dpp %s, %s, %s %s bank_mask:0xf" % (op, x, x, x, ctl))

    def layernorm(self, src, f, t):
        a = self.a
        for k in range(4):
            a("v_lshlrev_b32 v%d, 16, v%d" % (f + 2 * k, src + k))
            a("v_and_b32 v%d, 0xffff0000, v%d" % (f + 2 * k + 1, src + k))
        a("v_readfirstlane_b32 s56, v%d" % f)
        a("v_mov_b32 v%d, 0" % (t + 8))
        a("v_mov_b32 v%d, 0" % (t + 9))
        a("s_mov_b32 exec_hi, 0x00ffffff")
        for k in range(4):
            a("v_pk_add_f32 v[%d:%d], v[%d:%d], s[56:57] op_sel_hi:[1,0] neg_lo:[0,1] neg_hi:[0,1]" % (
                t + 2 * k, t + 2 * k + 1, f + 2 * k, f + 2 * k + 1))
        a("v_pk_mul_f32 v[%d:%d], v[%d:%d], v[%d:%d]" % (t + 10, t + 11, t, t + 1, t, t + 1))
        for k in range(1, 4):
            a("v_pk_fma_f32 v[%d:%d], v[%d:%d], v[%d:%d], v[%d:%d]" % (
                t + 10, t + 11, t + 2 * k, t + 2 * k + 1, t + 2 * k, t + 2 * k + 1, t + 10, t + 11))
        a("v_pk_add_f32 v[%d:%d], v[%d:%d], v[%d:%d]" % (t, t + 1, t, t + 1, t + 2, t + 3))
        a("v_pk_add_f32 v[%d:%d], v[%d:%d], v[%d:%d]" % (t + 4, t + 5, t + 4, t + 5, t + 6, t + 7))
        a("v_pk_add_f32 v[%d:%d], v[%d:%d], v[%d:%d]" % (t, t + 1, t, t + 1, t + 4, t + 5))
        a("v_add_f32 v%d, v%d, v%d" % (t + 9, t + 10, t + 11))
        a("v_add_f32 v%d, v%d, v%d" % (t + 8, t, t + 1))
        a("s_mov_b64 exec, -1")
        S, Q = "v%d" % (t + 8), "v%d" % (t + 9)
        a("s_nop 0")
        self.wave_reduce2("v_add_f32", Q, S)
        a("s_nop 0")
        a("v_readlane_b32 s58, %s, 63" % Q)
        a("v_readlane_b32 s57, %s, 63" % S)
        a("v_mov_b32 v%d, %s" % (t + 2, f32(1.0 / 448)))
        a("v_mul_f32 v%d, s58, v%d" % (t + 1, t + 2))
        a("v_mul_f32 v%d, s57, v%d" % (t, t + 2))
        a("v_fma_f32 v%d, -v%d, v%d, v%d" % (t + 1, t, t, t + 1))
        a("v_add_f32 v%d, s56, v%d" % (t, t))
        a("v_max_f32 v%d, 0, v%d" % (t + 1, t + 1))
        a("v_cvt_pk_bf16_f32 v%d, v%d, v%d" % (t + 2, t, t + 1))
        a("v_and_b32 v%d, 0xffff0000, v%d" % (t + 1, t + 2))
        a("v_lshlrev_b32 v%d, 16, v%d" % (t, t + 2))
        a("v_add_f32 v%d, %s, v%d" % (t + 1, f32(1e-5), t + 1))
        a("v_cvt_pk_bf16_f32 v%d, v%d, v%d" % (t + 1, t + 1, t + 1))
        a("v_lshlrev_b32 v%d, 16, v%d" % (t + 1, t + 1))
        a("v_sqrt_f32 v%d, v%d" % (t + 1, t + 1))
        for k in range(4):
            a("v_pk_add_f32 v[%d:%d], v[%d:%d], v[%d:%d] op_sel_hi:[1,0] neg_lo:[0,1] neg_hi:[0,1]" % (
                f + 2 * k, f + 2 * k + 1, f + 2 * k, f + 2 * k + 1, t, t + 1))
        a("v_cvt_pk_bf16_f32 v%d, v%d, v%d" % (t + 2, t + 1, t + 1))
        a("v_lshlrev_b32 v%d, 16, v%d" % (t + 2, t + 2))
        a("v_rcp_f32 v%d, v%d" % (t + 2, t + 2))
        for k in range(4):
            a("v_cvt_pk_bf16_f32 v%d, v%d, v%d" % (src + k, f + 2 * k, f + 2 * k + 1))
        for k in range(4):
            a("v_lshlrev_b32 v%d, 16, v%d" % (f + 2 * k, src + k))
            a("v_and_b32 v%d, 0xffff0000, v%d" % (f + 2 * k + 1, src + k))
        for k in range(4):
            a("v_pk_mul_f32 v[%d:%d], v[%d:%d], v[%d:%d] op_sel_hi:[1,0]" % (
                f + 2 * k, f + 2 * k + 1, f + 2 * k, f + 2 * k + 1, t + 2, t + 3))
        for k in range(4):
            a("v_cvt_pk_bf16_f32 v%d, v%d, v%d" % (src + k, f + 2 * k, f + 2 * k + 1))

    def inbox_reduce(self, nl, voff, soff, L, T, out):
        a = self.a
        top, ok, chk = self.lbl("rp"), self.lbl("rok"), self.lbl("rchk")
        a("s_mov_b32 s13, 0")
        a.label(top)
        for i in range(nl):
            if i < 4:
                a("buffer_load_dwordx4 v[%d:%d], %s, s[48:51], %s offen offset:%d sc1" % (L + 4 * i, L + 4 * i + 3, voff, soff[0], i * 1024))
            else:
                a("buffer_load_dwordx4 v[%d:%d], %s, s[48:51], %s offen offset:%d sc1" % (L + 4 * i, L + 4 * i + 3, voff, soff[1], (i - 4) * 1024))

        def padd(d, x, y):
            for h in (0, 2):
                a("v_pk_add_f32 v[%d:%d], v[%d:%d], v[%d:%d]" % (d + h, d + h + 1, x + h, x + h + 1, y + h, y + h + 1))
        for k in range(nl // 2):
            a("s_waitcnt vmcnt(%d)" % (nl - 2 - 2 * k))
            padd(T + 4 * k, L + 8 * k, L + 8 * k + 4)
        padd(T, T, T + 4)
        if nl == 8:
            padd(T + 8, T + 8, T + 12)
        else:
            a("s_waitcnt vmcnt(0)")
            padd(T + 8, T + 8, L + 24)
        padd(T, T, T + 8)
        a("s_nop 1")
        a("v_permlane16_swap_b32 v%d, v%d" % (T, T + 1))
        a("v_permlane16_swap_b32 v%d, v%d" % (T + 2, T + 3))
        a("v_add_f32 v%d, v%d, v%d" % (T, T, T + 1))
        a("v_add_f32 v%d, v%d, v%d" % (T + 2, T + 2, T + 3))
        a("s_nop 1")
        a("v_permlane32_swap_b32 v%d, v%d" % (T, T + 2))
        a("v_add_f32 v%d, v%d, v%d" % (T, T, T + 2))
        a("s_nop 1")
        a("v_add_f32_dpp %s, v%d, v%d row_ror:8 row_mask:0xf bank_mask:0xf" % (out, T, T))
        a("v_cmp_u_f32 vcc, %s, %s" % (out, out))
        a("s_cbranch_vccz %s" % ok)
        a("s_add_u32 s13, s13, 1")
        a("s_and_b32 s14, s13, 15")
        a("s_cbranch_scc1 %s" % top)
        regs = [L + i for i in range(4 * nl)]
        a("v_max_u32 v%d, v%d, v%d" % (T + 4, regs[0], regs[1]))
        for i in range(2, 4 * nl, 2):
            a("v_max3_u32 v%d, v%d, v%d, v%d" % (T + 4, T + 4, regs[i], regs[i + 1]))
        a("v_cmp_eq_u32 vcc, -1, v%d" % (T + 4))
        a("s_cbranch_vccz %s" % ok)
        a("s_cmp_lt_u32 s13, %d" % self.c.poll_max)
        a("s_cbranch_scc1 %s" % top)
        a.label(ok)

    def build(self):
        a, c = self.a, self.c
        a("s_cmp_ge_u32 s2, 256")
        a("s_cbranch_scc1 L_END")
        a("s_load_dwordx16 s[16:31], s[0:1], 0")
        a("s_load_dwordx8 s[32:39], s[0:1], 64")
        self.stamps_init()
        if c.diag:
            a("s_memrealtime s[72:73]")
        a("v_lshrrev_b32 v1, 6, v0")
        a("v_and_b32 v0, 63, v0")
        a("v_readfirstlane_b32 s3, v1")
        a("s_and_b32 s4, s2, 7")
        a("s_lshr_b32 s5, s2, 3")
        a("s_lshr_b32 s6, s2, 6")
        a("s_and_b32 s7, s5, 7")
        a("s_lshr_b32 s8, s7, 1")
        a("s_and_b32 s9, s7, 1")
        a("s_lshl_b32 s10, s6, 3")
        a("s_add_u32 s10, s10, s4")
        a("s_and_b32 s11, s3, 3")
        a("s_cmp_lt_u32 s3, 4")
        a("s_cbranch_scc1 L_SROLE")
        a("s_cmp_ge_u32 s3, 8")
        a("s_cbranch_scc1 L_OROLE")
        self.k_role()
        self.o_role()
        self.s_role()
        if c.diag:
            a.label("L_DIAG_END")
            a("s_memrealtime s[94:95]")
            a("s_waitcnt lgkmcnt(0)")
            a("s_mov_b64 exec, -1")
            for k in range(12):
                a("v_mov_b32 v%d, s%d" % (4 + k, 72 + 2 * k))
            a("s_mul_i32 s14, s2, 12")
            a("s_add_u32 s14, s14, s3")
            a("s_lshl_b32 s14, s14, 6")
            a("s_add_u32 s14, s14, %d" % WS_TS)
            a("v_mov_b32 v1, 0")
            a("s_mov_b64 exec, 1")
            for k in range(3):
                a("buffer_store_dwordx4 v[%d:%d], v1, s[48:51], s14 offen offset:%d" % (4 + 4 * k, 7 + 4 * k, 16 * k))
            if c.dbg:
                self.srd(52, 36, None, 256)
                a("s_lshl_b32 s14, s2, 4")
                a("s_add_u32 s14, s14, s3")
                for slot, (wg, w, k) in enumerate(c.dbg_slots):
                    l = self.lbl("dbg")
                    a("s_cmp_lg_u32 s14, %d" % (wg * 16 + w))
                    a("s_cbranch_scc1 %s" % l)
                    a("buffer_store_dword v%d, v1, s[52:55], 0 offen offset:%d" % (4 + k, 4 * slot))
                    a.label(l)
            a("s_waitcnt vmcnt(0)")
        a.label("L_END")
        a("s_endpgm")
        return a.text()

    def k_issue(self, b):
        c = self.c
        for k in range(4):
            m0 = ("s12", (b & 1) * 4096 + k * 1024)
            if b < 4:
                i = 4 * b + k
                u, dseg, half = i >> 3, (i >> 1) & 3, i & 1
                self.dma("v2" if half else "v1", 40, u * 8192 + dseg * 128, m0, c.pol_kv)
            else:
                i = 4 * (b - 4) + k
                self.dma("v3", 44, i * 4096, m0, c.pol_kv)

    def k_role(self):
        a, c = self.a, self.c
        KF, VF, QF, SA = 16, 80, 144, 160
        a("v_lshrrev_b32 v13, 3, v0")
        a("v_and_b32 v14, 7, v0")
        a("v_lshrrev_b32 v15, 1, v13")
        a("v_xor_b32 v1, v14, v15")
        a("v_lshlrev_b32 v1, 4, v1")
        a("v_lshl_add_u32 v1, v13, 9, v1")
        a("v_xor_b32 v2, 64, v1")
        a("v_add_u32 v2, 4096, v2")
        a("v_lshlrev_b32 v3, 1, v15")
        a("v_xor_b32 v3, v14, v3")
        a("v_lshlrev_b32 v3, 4, v3")
        a("v_lshl_add_u32 v3, v13, 9, v3")
        a("s_lshl_b32 s12, s11, 13")
        a("s_lshl_b32 s56, s10, 21")
        a("s_add_u32 s56, s56, 0x180000")
        a("s_lshl_b32 s57, s7, 16")
        a("s_lshl_b32 s58, s11, 14")
        a("s_add_u32 s57, s57, s58")
        a("s_add_u32 s57, s57, s56")
        a("s_lshl_b32 s58, s9, 18")
        a("s_lshl_b32 s59, s11, 16")
        a("s_add_u32 s58, s58, s59")
        a("s_lshl_b32 s59, s8, 7")
        a("s_add_u32 s58, s58, s59")
        a("s_add_u32 s58, s58, s56")
        a("s_waitcnt lgkmcnt(0)")
        self.srd(40, 18, "s57", 16384)
        self.srd(44, 20, "s58", 127 * 512 + 128)
        self.k_issue(0)
        self.k_issue(1)
        self.srd(48, 38, None, WS_SIZE)
        a("v_and_b32 v13, 15, v0")
        a("v_lshrrev_b32 v14, 4, v0")
        a("v_lshrrev_b32 v15, 1, v13")
        a("v_xor_b32 v4, v14, v15")
        a("v_lshlrev_b32 v4, 4, v4")
        a("v_lshl_add_u32 v4, v13, 7, v4")
        a("v_add_u32 v4, s12, v4")
        a("v_xor_b32 v5, 64, v4")
        a("v_and_b32 v13, 1, v0")
        a("v_mul_u32_u24 v10, %d, v13" % QS_STR)
        a("v_lshl_add_u32 v10, v14, 4, v10")
        a("v_add_u32 v10, %d, v10" % QS)
        a("v_lshlrev_b32 v12, 11, v13")
        a("v_lshl_add_u32 v12, v14, 4, v12")
        self.tr_addrs(6, "s12", "v13", "v14", "v15")
        a("v_mov_b32 v13, %d" % FL)
        a("v_mov_b32 v14, 1")
        a("s_lshl_b32 s59, s10, 12")
        a("s_lshl_b32 s58, s7, 8")
        a("s_add_u32 s59, s59, s58")
        a("s_lshl_b32 s58, s11, 6")
        a("s_add_u32 s59, s59, s58")
        a("s_add_u32 s59, s59, %d" % WS_SC)
        a("s_mov_b32 s60, 0")
        a("s_barrier")
        for b in range(7):
            a("s_waitcnt vmcnt(4)")
            if b < 4:
                for pp in range(2):
                    for tt in range(2):
                        fi = (b >> 1) * 8 + 2 * (2 * (b & 1) + pp) + tt
                        r = KF + 4 * fi
                        a("ds_read_b128 v[%d:%d], v%d offset:%d" % (r, r + 3, 4 + tt, (b & 1) * 4096 + pp * 2048))
            else:
                self.tile_reads(VF + 16 * (b - 4), 6, (b & 1) * 4096)
            if b >= 3:
                a("ds_read_b32 v11, v13 offset:%d" % F_Q)
            a("s_waitcnt lgkmcnt(0)")
            if b + 2 <= 7:
                self.k_issue(b + 2)
            if b == c.kiss_batch:
                self.signal("v13", F_KISS, "v14")
            if b == 3:
                self.stamp(1)
            if 3 <= b <= 5:
                a("s_cmp_lg_u32 s60, 0")
                a("s_cbranch_scc1 L_KRET%d" % b)
                a("v_readfirstlane_b32 s14, v11")
                a("s_mov_b32 s61, %d" % b)
                a("s_cmp_lg_u32 s14, 0")
                a("s_cbranch_scc1 L_SCORES")
                a.label("L_KRET%d" % b)
            if b == 6:
                a("s_cmp_lg_u32 s60, 0")
                a("s_cbranch_scc1 L_KRET6")
                self.wait_flag("v13", F_Q, 1, "v11")
                a("s_mov_b32 s61, 6")
        a.label("L_SCORES")
        self.stamp(2)
        for t in range(4):
            a("ds_read_b128 v[%d:%d], v10 offset:%d" % (QF + 4 * t, QF + 4 * t + 3, t * 64))
        for tp in range(4):
            a("s_waitcnt lgkmcnt(%d)" % (2 if tp < 3 else 0))
            for t in (2 * tp, 2 * tp + 1):
                for u in range(2):
                    self.mfma(SA + 4 * u, KF + 4 * (u * 8 + t), QF + 4 * (t & 3), t == 0)
            if tp < 2:
                for t in (2 * tp + 4, 2 * tp + 5):
                    a("ds_read_b128 v[%d:%d], v10 offset:%d" % (QF + 4 * (t & 3), QF + 4 * (t & 3) + 3, t * 64))
        a("s_nop 7")
        for k in range(4):
            a("v_cvt_pk_bf16_f32 v%d, v%d, v%d" % (QF + k, SA + 2 * k, SA + 2 * k + 1))
        for k in range(4):
            a("v_min_u32 v%d, -2, v%d" % (QF + k, QF + k))
        a("s_mov_b32 exec_lo, 0x00030003")
        a("s_mov_b32 exec_hi, 0x00030003")
        a("buffer_store_dwordx4 v[%d:%d], v12, s[48:51], s59 offen sc1" % (QF, QF + 3))
        self.signal("v13", F_SC, "v14")
        self.stamp(3)
        a("s_mov_b32 s60, 1")
        for b in (3, 4, 5):
            a("s_cmp_eq_u32 s61, %d" % b)
            a("s_cbranch_scc1 L_KRET%d" % b)
        a.label("L_KRET6")
        PF, AC, PK = 16, 32, 48
        a("v_and_b32 v15, 1, v0")
        a("v_mul_u32_u24 v10, %d, v15" % PS_STR)
        a("v_lshrrev_b32 v11, 4, v0")
        a("v_lshl_add_u32 v10, v11, 4, v10")
        a("s_lshl_b32 s14, s11, 8")
        a("s_add_u32 s14, s14, %d" % PS)
        a("v_add_u32 v10, s14, v10")
        a("v_lshlrev_b32 v12, 7, v15")
        a("v_lshl_add_u32 v12, v11, 5, v12")
        a("s_mul_i32 s14, s11, %d" % OS_STR)
        a("s_add_u32 s14, s14, %d" % OS)
        a("v_add_u32 v12, s14, v12")
        self.wait_flag("v13", F_P, 2, "v11")
        self.stamp(4)
        for s in range(4):
            a("ds_read_b128 v[%d:%d], v10 offset:%d" % (PF + 4 * s, PF + 4 * s + 3, s * 64))
        for s in range(3):
            a("s_waitcnt lgkmcnt(%d)" % (3 - s))
            for n in range(4):
                self.mfma(AC + 4 * n, VF + 16 * s + 4 * n, PF + 4 * s, s == 0)
        a("s_waitcnt vmcnt(0)")
        self.stamp(5)
        self.tile_reads(VF + 48, 6, 4096)
        for n in range(4):
            a("s_waitcnt lgkmcnt(%d)" % (6 - 2 * n))
            self.mfma(AC + 4 * n, VF + 48 + 4 * n, PF + 12, False)
        a("s_nop 4")
        for n in range(4):
            if n == 3:
                a("s_nop 1")
            a("v_cvt_pk_bf16_f32 v%d, v%d, v%d" % (PK + 2 * n, AC + 4 * n, AC + 4 * n + 1))
            a("v_cvt_pk_bf16_f32 v%d, v%d, v%d" % (PK + 2 * n + 1, AC + 4 * n + 2, AC + 4 * n + 3))
        a("s_mov_b32 exec_lo, 0x00030003")
        a("s_mov_b32 exec_hi, 0x00030003")
        a("ds_write_b128 v12, v[%d:%d]" % (PK, PK + 3))
        a("ds_write_b128 v12, v[%d:%d] offset:16" % (PK + 4, PK + 7))
        self.signal("v13", F_OS, "v14")
        self.finish()

    def o_issue(self, b):
        pp, s = b >> 2, b & 3
        for ii in range(4):
            rows = 16 * (ii >> 1) + 4 * (ii & 1) + 8 * (s & 1) + 256 * (s >> 1)
            self.dma("v1", 40, ("s57" if pp else "s56", rows * 896), ("s12", (b & 1) * 4096 + ii * 1024), self.c.pol_wo)

    def o_role(self):
        a, c = self.a, self.c
        AF, WF, AC0, AC1, O0, O1 = 8, 24, 152, 24, 40, 44
        a.label("L_OROLE")
        a("v_lshrrev_b32 v8, 3, v0")
        a("v_and_b32 v9, 7, v0")
        a("v_bfe_u32 v10, v0, 4, 2")
        a("v_lshlrev_b32 v10, 1, v10")
        a("v_xor_b32 v9, v9, v10")
        a("v_lshlrev_b32 v9, 4, v9")
        a("v_lshrrev_b32 v10, 2, v8")
        a("v_lshlrev_b32 v10, 5, v10")
        a("v_and_b32 v8, 3, v8")
        a("v_add_u32 v8, v8, v10")
        a("v_mul_u32_u24 v8, 896, v8")
        a("v_add_u32 v1, v8, v9")
        a("s_lshl_b32 s12, s11, 13")
        a("s_add_u32 s12, s12, %d" % RINGO)
        self.tr_addrs(2, "s12", "v8", "v9", "v10")
        a("v_and_b32 v8, 3, v0")
        a("v_mul_u32_u24 v6, %d, v8" % OS_STR)
        a("v_lshrrev_b32 v9, 4, v0")
        a("v_lshl_add_u32 v6, v9, 4, v6")
        a("v_add_u32 v6, %d, v6" % OS)
        a("v_bfe_u32 v8, v0, 3, 1")
        a("v_lshlrev_b32 v7, 13, v8")
        a("v_and_b32 v8, 7, v0")
        a("v_lshl_add_u32 v7, v8, 4, v7")
        a("v_mov_b32 v8, %d" % OOB)
        a("v_cmp_gt_u32 vcc, 16, v0")
        a("s_lshl_b32 s58, s4, 9")
        a("s_lshl_b32 s59, s8, 6")
        a("v_cndmask_b32 v7, v8, v7, vcc")
        a("s_add_u32 s58, s58, s59")
        a("s_mul_i32 s58, s58, 896")
        a("s_lshl_b32 s56, s11, 8")
        a("s_add_u32 s57, s56, 128")
        a("s_mul_i32 s59, s6, 14")
        a("s_lshl_b32 s60, s11, 2")
        a("s_add_u32 s59, s59, s60")
        a("s_lshl_b32 s59, s59, 13")
        a("s_lshl_b32 s60, s4, 3")
        a("s_add_u32 s60, s60, s7")
        a("s_lshl_b32 s60, s60, 7")
        a("s_add_u32 s59, s59, s60")
        a("s_add_u32 s59, s59, %d" % WS_A)
        a("s_add_u32 s60, s59, 16384")
        a("s_cmp_eq_u32 s11, 3")
        a("s_cselect_b32 s57, %d, s57" % OOB)
        a("s_cselect_b32 s60, %d, s60" % OOB)
        a("v_mov_b32 v167, %d" % FL)
        a("s_waitcnt lgkmcnt(0)")
        self.srd(40, 24, "s58", 320 * 896)
        self.srd(48, 38, None, WS_SIZE)
        a("s_barrier")
        self.wait_flag("v167", F_KISS, 4, "v8", sleep=2)
        self.stamp(1)
        self.o_issue(0)
        self.o_issue(1)
        for b in range(8):
            a("s_waitcnt vmcnt(%d)" % (4 if b < 7 else 0))
            self.tile_reads(WF + 16 * b, 2, (b & 1) * 4096)
            a("s_waitcnt lgkmcnt(0)")
            if b + 2 <= 7:
                self.o_issue(b + 2)
        self.stamp(2)
        self.wait_flag("v167", F_OS, 4, "v8")
        self.stamp(3)
        for s in range(4):
            a("ds_read_b128 v[%d:%d], v6 offset:%d" % (AF + 4 * s, AF + 4 * s + 3, s * 64))
        for n in range(4):
            for s in range(4):
                if n == 0:
                    a("s_waitcnt lgkmcnt(%d)" % (3 - s))
                self.mfma(AC0 + 4 * n, AF + 4 * s, WF + 16 * s + 4 * n, s == 0)

        def epi(acc, out, n):
            r = acc + 4 * n
            return ["v_pk_add_f32 v[%d:%d], v[%d:%d], v[%d:%d]" % (r, r + 1, r, r + 1, r + 2, r + 3),
                    "v_add_f32 v%d, v%d, v%d" % (out + n, r, r + 1),
                    "v_min_u32 v%d, -2, v%d" % (out + n, out + n)]
        fill = []
        for n in range(4):
            fill += epi(AC0, O0, n)
        fill.append("buffer_store_dwordx4 v[%d:%d], v7, s[48:51], s59 offen sc1" % (O0, O0 + 3))
        k = 0
        for n in range(4):
            for s in range(4):
                self.mfma(AC1 + 4 * n, AF + 4 * s, WF + 64 + 16 * s + 4 * n, s == 0)
                idx = 4 * n + s
                if idx >= 2 and k < len(fill):
                    a(fill[k]); k += 1
        assert k == len(fill)
        for n in range(3):
            for ins in epi(AC1, O1, n):
                a(ins)
        for ins in epi(AC1, O1, 3):
            a(ins)
        a("buffer_store_dwordx4 v[%d:%d], v7, s[48:51], s60 offen sc1" % (O1, O1 + 3))
        self.stamp(4)
        self.finish()

    def ffn_gu_issue(self, i):
        c = self.c
        self.dma("v20", 40, i * 16 * 3584, GT + i * 1024, c.pol_ffn)
        self.dma("v21", 44, i * 16 * 3584, UT + i * 1024, c.pol_ffn)

    def ffn_gu_setup(self):
        a = self.a
        a("v_lshrrev_b32 v22, 2, v0")
        a("v_mul_u32_u24 v20, 3584, v22")
        a("v_and_b32 v23, 3, v0")
        a("v_lshrrev_b32 v22, 5, v0")
        a("v_xor_b32 v23, v23, v22")
        a("v_lshl_add_u32 v20, v23, 4, v20")
        a("v_xor_b32 v21, 32, v20")
        a("s_lshl_b32 s56, s62, 6")
        self.srd(40, 28, "s56", 447 * 3584 + 64)
        self.srd(44, 30, "s56", 447 * 3584 + 64)

    def s_role(self):
        a, c = self.a, self.c
        a.label("L_SROLE")
        a("s_setprio 2")
        a("v_mov_b32 v2, %d" % FL)
        a("v_mov_b32 v3, 1")
        a("v_lshlrev_b32 v4, 4, v0")
        a("v_mov_b32 v5, %d" % OOB)
        a("v_cmp_gt_u32 vcc, 56, v0")
        a("s_mul_i32 s62, s4, 7")
        a("s_add_u32 s62, s62, s5")
        a("s_sub_u32 s62, s62, 16")
        a("v_cndmask_b32 v5, v5, v4, vcc")
        a("s_sub_u32 s63, s2, 192")
        a("s_mul_i32 s64, s63, 4682")
        a("s_lshr_b32 s64, s64, 16")
        a("s_mul_i32 s65, s64, 14")
        a("s_sub_u32 s65, s63, s65")
        a("s_mov_b32 s66, 3")
        a("s_cmp_lt_u32 s5, 31")
        a("s_cselect_b32 s66, 2, s66")
        a("s_cmp_lt_u32 s5, 24")
        a("s_cselect_b32 s66, 3, s66")
        a("s_cmp_lt_u32 s5, 23")
        a("s_cselect_b32 s66, 1, s66")
        a("s_cmp_lt_u32 s5, 16")
        a("s_cselect_b32 s66, 0, s66")
        a("s_mul_i32 s67, s11, 896")
        a("s_waitcnt lgkmcnt(0)")
        self.srd(48, 38, None, WS_SIZE)
        self.srd(52, 16, None, 3584)
        a("s_cmp_lg_u32 s66, 0")
        a("s_cbranch_scc1 L_S_NOX")
        a("buffer_load_dwordx4 v[8:11], v5, s[52:55], s67 offen")
        a.label("L_S_NOX")
        a("s_cmp_eq_u32 s11, 1")
        a("s_cbranch_scc1 L_S1")
        a("s_cmp_eq_u32 s11, 2")
        a("s_cbranch_scc1 L_S2")
        a("s_cmp_eq_u32 s11, 3")
        a("s_cbranch_scc1 L_S3")
        self.s0()
        self.s1()
        self.s2()
        self.s3()
        self.softmax()
        self.ffn()

    def ln1(self, vm):
        a = self.a
        skip = self.lbl("ln1skip")
        a("s_cmp_lg_u32 s66, 0")
        a("s_cbranch_scc1 %s" % skip)
        a("s_waitcnt vmcnt(%d)" % vm)
        self.layernorm(8, 24, 32)
        a("s_mul_i32 s14, s11, %d" % XN_STR)
        a("s_add_u32 s14, s14, %d" % XN)
        a("v_add_u32 v6, s14, v4")
        a("s_mov_b32 exec_hi, 0x00ffffff")
        a("ds_write_b128 v6, v[8:11]")
        self.signal("v2", F_XN, "v3")
        a.label(skip)

    def s0(self):
        a, c = self.a, self.c
        XF, WF, AC = 48, 104, 136
        a("s_cmp_eq_u32 s66, 1")
        a("s_cbranch_scc1 L_S0_FFN")
        a("s_cmp_lg_u32 s66, 0")
        a("s_cbranch_scc1 L_S0_BAR")
        a("v_lshrrev_b32 v22, 2, v0")
        a("v_lshlrev_b32 v20, 13, v22")
        a("v_and_b32 v23, 3, v0")
        a("v_lshrrev_b32 v22, 5, v0")
        a("v_lshlrev_b32 v22, 1, v22")
        a("v_xor_b32 v23, v23, v22")
        a("v_lshl_add_u32 v20, v23, 4, v20")
        a("s_lshl_b32 s56, s4, 10")
        a("s_lshl_b32 s57, s5, 6")
        a("s_add_u32 s56, s56, s57")
        self.srd(40, 22, "s56", 447 * 8192 + 64)
        for i in range(28):
            self.dma("v20", 40, i * 16 * 8192, BIG + i * 1024, c.pol_wq)
            if i == 5:
                a("s_barrier")
        self.stamp(1)
        self.ln1(28)
        a("v_lshrrev_b32 v22, 4, v0")
        a("v_bfe_u32 v23, v0, 2, 2")
        a("v_lshl_add_u32 v23, v22, 3, v23")
        a("v_lshlrev_b32 v20, 6, v23")
        a("v_and_b32 v23, 3, v0")
        a("v_lshl_add_u32 v20, v23, 3, v20")
        a("v_and_b32 v21, 1, v22")
        a("v_lshl_add_u32 v20, v21, 5, v20")
        a("v_add_u32 v20, %d, v20" % BIG)
        a("v_xor_b32 v21, 32, v20")
        a("v_mul_u32_u24 v6, %d, v23" % XN_STR)
        a("v_lshl_add_u32 v6, v22, 4, v6")
        a("v_add_u32 v6, %d, v6" % XN)
        a("v_lshlrev_b32 v7, 14, v23")
        a("v_bfe_u32 v24, v0, 2, 1")
        a("v_lshl_add_u32 v7, v24, 6, v7")
        a("v_lshl_add_u32 v7, v22, 4, v7")
        a("v_cmp_eq_u32 s[58:59], 1, v24")
        a("s_lshl_b32 s56, s4, 11")
        a("s_lshl_b32 s57, s5, 7")
        a("s_add_u32 s56, s56, s57")
        a("s_add_u32 s56, s56, %d" % WS_Q)
        self.wait_flag("v2", F_XN, 4, "v24")
        for s in range(14):
            a("ds_read_b128 v[%d:%d], v6 offset:%d" % (XF + 4 * s, XF + 4 * s + 3, s * 64))
        self.wait_flag("v2", F_TAG, 1, "v24")
        a("s_mov_b32 s68, s14")
        self.stamp(2)
        for sp in range(7):
            a("s_waitcnt vmcnt(%d)" % (24 - 4 * sp))
            base = WF + 16 * (sp & 1)
            for ss in range(2):
                s = 2 * sp + ss
                for n in range(2):
                    for hh in range(2):
                        r = base + 8 * ss + 4 * n + 2 * hh
                        a("ds_read_b64_tr_b16 v[%d:%d], v%d offset:%d" % (r, r + 1, 20 + n, s * 2048 + hh * 256))
            for ss in range(2):
                s = 2 * sp + ss
                for n in range(2):
                    a("s_waitcnt lgkmcnt(%d)" % (6 - 4 * ss - 2 * n))
                    self.mfma(AC + 4 * n, base + 8 * ss + 4 * n, XF + 4 * s, s == 0)
        a("v_mov_b32 v13, s68")
        a("v_mov_b32 v15, s68")
        a("s_nop 5")
        a("v_cvt_pk_bf16_f32 v12, v%d, v%d" % (AC, AC + 1))
        a("v_cvt_pk_bf16_f32 v14, v%d, v%d" % (AC + 2, AC + 3))
        a("v_cvt_pk_bf16_f32 v16, v%d, v%d" % (AC + 4, AC + 5))
        a("v_cvt_pk_bf16_f32 v17, v%d, v%d" % (AC + 6, AC + 7))
        a("v_cndmask_b32 v12, v12, v16, s[58:59]")
        a("v_cndmask_b32 v14, v14, v17, s[58:59]")
        a("s_mov_b32 exec_lo, 0x00ff00ff")
        a("s_mov_b32 exec_hi, 0x00ff00ff")
        a("buffer_store_dwordx4 v[12:15], v7, s[48:51], s56 offen sc1")
        a("s_mov_b64 exec, -1")
        self.stamp(3)
        a("s_branch L_S0_GATHER")
        a.label("L_S0_FFN")
        self.ffn_gu_setup()
        a("s_barrier")
        for i in range(c.ffn_early):
            self.ffn_gu_issue(i)
        a("s_branch L_S0_TAG")
        a.label("L_S0_BAR")
        a("s_barrier")
        a.label("L_S0_TAG")
        self.wait_flag("v2", F_KISS, 4, "v24", sleep=2)
        self.wait_flag("v2", F_TAG, 1, "v24")
        a("s_mov_b32 s68, s14")
        a.label("L_S0_GATHER")
        a("s_lshl_b32 s56, s10, 11")
        a("s_add_u32 s56, s56, %d" % WS_Q)
        a("s_lshl_b32 s57, s10, 7")
        a("s_add_u32 s57, s57, %d" % WS_GFL)
        a("v_and_b32 v6, 7, v0")
        a("v_lshlrev_b32 v6, 2, v6")
        a("v_lshlrev_b32 v7, 3, v0")
        a("v_add_u32 v7, %d, v7" % QS)
        a("s_mov_b32 s13, 0")
        a.label("L_QPOLL")
        a("buffer_load_dwordx4 v[8:11], v4, s[48:51], s56 offen sc1")
        a("buffer_load_dwordx4 v[12:15], v4, s[48:51], s56 offen offset:1024 sc1")
        a("buffer_load_dword v16, v6, s[48:51], s57 offen sc1")
        a("s_waitcnt vmcnt(0)")
        a("v_xor_b32 v9, s68, v9")
        a("v_xor_b32 v11, s68, v11")
        a("v_xor_b32 v13, s68, v13")
        a("v_xor_b32 v15, s68, v15")
        a("v_xor_b32 v16, s68, v16")
        a("v_or3_b32 v9, v9, v11, v13")
        a("v_or3_b32 v9, v9, v15, v16")
        a("v_cmp_ne_u32 vcc, 0, v9")
        a("s_cbranch_vccz L_QOK")
        a("s_add_u32 s13, s13, 1")
        a("s_cmp_lt_u32 s13, %d" % c.poll_max)
        a("s_cbranch_scc1 L_QPOLL")
        a.label("L_QOK")
        a("v_mov_b32 v9, v10")
        a("v_mov_b32 v13, v14")
        a("ds_write_b64 v7, v[8:9]")
        a("ds_write_b64 v7, v[12:13] offset:%d" % QS_STR)
        self.signal("v2", F_Q, "v3")
        self.stamp(4)
        a("s_cmp_eq_u32 s66, 1")
        a("s_cbranch_scc1 L_FFN")
        self.finish()

    def s1(self):
        a = self.a
        a.label("L_S1")
        a("s_barrier")
        self.ln1(0)
        a("s_branch L_SOFTMAX")

    def s2(self):
        a, c = self.a, self.c
        a.label("L_S2")
        a("v_mov_b32 v19, 0")
        a("buffer_load_dword v7, v19, s[48:51], 0 offen sc1")
        for k in range(4):
            a("v_mov_b32 v%d, -1" % (12 + k))
        a("v_bfe_u32 v16, v0, 4, 1")
        a("v_lshlrev_b32 v16, 11, v16")
        a("v_and_b32 v17, 15, v0")
        a("v_lshl_add_u32 v16, v17, 4, v16")
        a("s_lshl_b32 s56, s10, 12")
        a("s_lshl_b32 s57, s7, 8")
        a("s_add_u32 s56, s56, s57")
        a("s_add_u32 s56, s56, %d" % WS_SC)
        a("s_mov_b32 exec_hi, 0")
        a("buffer_store_dwordx4 v[12:15], v16, s[48:51], s56 offen sc1")
        a("s_mov_b64 exec, -1")
        a("v_lshrrev_b32 v17, 3, v0")
        a("v_and_b32 v18, 7, v0")
        a("v_lshlrev_b32 v18, 4, v18")
        a("v_lshl_add_u32 v16, v17, 13, v18")
        a("s_mul_i32 s56, s6, %d" % (14 * 8192))
        a("s_lshl_b32 s57, s4, 3")
        a("s_add_u32 s57, s57, s7")
        a("s_lshl_b32 s57, s57, 7")
        a("s_add_u32 s56, s56, s57")
        a("s_add_u32 s56, s56, %d" % WS_A)
        a("buffer_store_dwordx4 v[12:15], v16, s[48:51], s56 offen sc1")
        a("s_add_u32 s56, s56, %d" % (8 * 8192))
        a("s_mov_b32 exec_hi, 0x0000ffff")
        a("buffer_store_dwordx4 v[12:15], v16, s[48:51], s56 offen sc1")
        a("s_mov_b64 exec, -1")
        a("s_cmp_eq_u32 s66, 1")
        a("s_cbranch_scc0 L_S2_NOC")
        a("v_mul_u32_u24 v16, %d, v17" % (NF * 128))
        a("v_add_u32 v16, v16, v18")
        a("s_lshl_b32 s56, s62, 7")
        a("s_add_u32 s56, s56, %d" % WS_C)
        for k in range(7):
            a("buffer_store_dwordx4 v[12:15], v16, s[48:51], s56 offen sc1")
            a("s_add_u32 s56, s56, %d" % (8 * NF * 128))
        a.label("L_S2_NOC")
        a("s_cmp_eq_u32 s66, 2")
        a("s_cbranch_scc0 L_S2_NOH")
        a("v_lshrrev_b32 v17, 2, v0")
        a("v_mul_u32_u24 v16, %d, v17" % HREP_STRIDE)
        a("v_and_b32 v17, 3, v0")
        a("v_lshl_add_u32 v16, v17, 4, v16")
        a("s_lshl_b32 s56, s63, 7")
        a("s_add_u32 s56, s56, %d" % WS_H)
        a("s_mov_b32 exec_lo, 0x%x" % ((1 << (4 * c.hrep)) - 1))
        a("s_mov_b32 exec_hi, 0")
        a("buffer_store_dwordx4 v[12:15], v16, s[48:51], s56 offen sc1")
        a("s_mov_b64 exec, -1")
        a.label("L_S2_NOH")
        a("s_barrier")
        a("s_waitcnt vmcnt(3)")
        a("v_readfirstlane_b32 s68, v7")
        a("s_or_b32 s68, s68, 1")
        a("s_mul_i32 s68, s68, 0x9E3779B1")
        a("s_add_u32 s68, s68, 0x85EBCA6A")
        a("v_mov_b32 v7, s68")
        a("s_mov_b64 exec, 1")
        a("ds_write_b32 v2, v7 offset:%d" % F_TAG)
        a("s_mov_b64 exec, -1")
        self.ln1(3)
        a("s_lshl_b32 s56, s10, 5")
        a("s_lshl_b32 s57, s7, 2")
        a("s_add_u32 s56, s56, s57")
        a("s_add_u32 s56, s56, %d" % WS_FLAGS)
        a("s_lshl_b32 s58, s10, 7")
        a("s_add_u32 s57, s57, s58")
        a("s_add_u32 s57, s57, %d" % WS_GFL)
        a("s_waitcnt vmcnt(0)")
        a("s_mov_b64 exec, 1")
        a("buffer_store_dword v7, v19, s[48:51], s57 offen sc1")
        a("buffer_store_dword v7, v19, s[48:51], s56 offen sc1")
        a("s_mov_b64 exec, -1")
        self.stamp(1)
        a("s_branch L_SOFTMAX")

    def col_offset(self, d):
        a = self.a
        a("s_mul_i32 %s, s64, 896" % d)
        a("s_lshr_b32 s14, s65, 1")
        a("s_lshl_b32 s14, s14, 7")
        a("s_add_u32 %s, %s, s14" % (d, d))
        a("s_and_b32 s14, s65, 1")
        a("s_lshl_b32 s14, s14, 4")
        a("s_add_u32 %s, %s, s14" % (d, d))

    def flags_check(self):
        a, c = self.a, self.c
        top, ok = self.lbl("fc"), self.lbl("fcok")
        self.wait_flag("v2", F_TAG, 1, "v24", sleep=1)
        a("s_mov_b32 s68, s14")
        a("s_mov_b32 s13, 0")
        a("s_mov_b32 s56, %d" % WS_FLAGS)
        a.label(top)
        a("buffer_load_dwordx4 v[12:15], v4, s[48:51], s56 offen sc1")
        a("s_waitcnt vmcnt(0)")
        for k in range(4):
            a("v_xor_b32 v%d, s68, v%d" % (12 + k, 12 + k))
        a("v_or3_b32 v12, v12, v13, v14")
        a("v_or_b32 v12, v12, v15")
        a("v_cmp_ne_u32 vcc, 0, v12")
        a("s_cbranch_vccz %s" % ok)
        a("s_sleep 8")
        a("s_add_u32 s13, s13, 1")
        a("s_cmp_lt_u32 s13, %d" % c.poll_max)
        a("s_cbranch_scc1 %s" % top)
        a.label(ok)

    def s3(self):
        a, c = self.a, self.c
        a.label("L_S3")
        a("v_and_b32 v6, 31, v0")
        a("v_lshlrev_b32 v6, 2, v6")
        a("v_add_u32 v6, %d, v6" % ZERO)
        a("v_mov_b32 v7, 0")
        a("ds_write_b32 v6, v7")
        a("s_waitcnt lgkmcnt(0)")
        a("s_barrier")
        self.ln1(0)
        a("s_cmp_eq_u32 s66, 1")
        a("s_cbranch_scc1 L_S3_FFN")
        a("s_cmp_eq_u32 s66, 2")
        a("s_cbranch_scc1 L_S3_RED")
        self.finish()
        a.label("L_S3_FFN")
        self.ffn_gu_setup()
        a("v_lshrrev_b32 v16, 3, v0")
        a("v_and_b32 v17, 7, v0")
        a("v_bfe_u32 v18, v0, 4, 2")
        a("v_lshlrev_b32 v18, 1, v18")
        a("v_xor_b32 v17, v17, v18")
        a("v_lshlrev_b32 v17, 4, v17")
        a("v_lshrrev_b32 v18, 2, v16")
        a("v_lshlrev_b32 v18, 3, v18")
        a("v_and_b32 v16, 3, v16")
        a("v_add_u32 v16, v16, v18")
        a("v_mul_u32_u24 v16, 896, v16")
        a("v_add_u32 v19, v16, v17")
        a("s_mul_i32 s56, s62, %d" % (32 * 896))
        self.srd(52, 32, "s56", 32 * 896)
        self.wait_flag("v2", F_SC, 4, "v24", sleep=2)
        n = 0
        for i in range(c.ffn_early, 28):
            self.ffn_gu_issue(i)
            n += 2
            if n >= c.ffn_thr:
                a("s_waitcnt vmcnt(%d)" % (c.ffn_thr - 2))
        for P in range(7):
            for ii in range(4):
                rows = 16 * (ii & 1) + 4 * (ii >> 1)
                self.dma("v19", 52, P * 128 + rows * 896, DT + P * 4096 + ii * 1024, c.pol_ffn)
            a("s_waitcnt vmcnt(%d)" % c.ffn_thr)
        self.flags_check()
        a("s_branch L_FFN")
        a.label("L_S3_RED")
        L, T = 32, 64
        a("v_lshrrev_b32 v16, 4, v0")
        a("v_and_b32 v17, 7, v0")
        a("v_lshlrev_b32 v18, 5, v16")
        a("v_lshl_add_u32 v18, v17, 1, v18")
        self.col_offset("s69")
        a("buffer_load_ushort v19, v18, s[52:55], s69 offen")
        a("v_mov_b32 v20, %d" % OOB)
        a("v_bfe_u32 v21, v0, 3, 1")
        a("v_cmp_eq_u32 vcc, 0, v21")
        a("v_mul_u32_u24 v21, %d, v21" % HREP_STRIDE)
        a("v_lshl_add_u32 v21, v16, 4, v21")
        a("v_cndmask_b32 v18, v20, v18, vcc")
        a("v_cmp_eq_u32 vcc, 0, v17")
        a("s_lshl_b32 s70, s63, 7")
        a("s_add_u32 s70, s70, %d" % WS_H)
        a("v_cndmask_b32 v21, v20, v21, vcc")
        self.srd(44, 34, None, 3584)
        self.wait_flag("v2", F_SC, 4, "v24", sleep=2)
        self.flags_check()
        a("v_lshlrev_b32 v19, 16, v19")
        a("s_cmp_eq_u32 s63, 0")
        a("s_cbranch_scc0 L_S3_NOEP")
        a("v_mov_b32 v6, 0")
        a("v_mov_b32 v7, s68")
        a("s_mov_b64 exec, 1")
        a("buffer_store_dword v7, v6, s[48:51], 0 offen sc1")
        a("s_mov_b64 exec, -1")
        a.label("L_S3_NOEP")
        a("s_lshl_b32 s56, s63, 13")
        a("s_add_u32 s56, s56, %d" % WS_A)
        a("s_add_u32 s57, s56, 4096")
        a("s_mul_i32 s58, s63, %d" % (NF * 128))
        a("s_add_u32 s58, s58, %d" % WS_C)
        a("s_add_u32 s59, s58, 4096")
        self.stamp(1)
        self.wait_flag("v2", F_OS, 4, "v24", sleep=1)
        self.stamp(2)
        self.inbox_reduce(8, "v4", ("s56", "s57"), L, T, "v22")
        a("v_cvt_pk_bf16_f32 v22, v22, v22")
        a("v_lshlrev_b32 v22, 16, v22")
        a("v_add_f32 v22, v19, v22")
        a("s_nop 1")
        a("v_mov_b32_dpp v23, v22 quad_perm:[1,0,3,2] row_mask:0xf bank_mask:0xf")
        a("v_cvt_pk_bf16_f32 v24, v22, v23")
        a("v_min_u32 v24, -2, v24")
        a("s_nop 1")
        a("v_mov_b32_dpp v25, v24 row_shl:2 row_mask:0xf bank_mask:0xf")
        a("v_mov_b32_dpp v26, v24 row_shl:4 row_mask:0xf bank_mask:0xf")
        a("v_mov_b32_dpp v27, v24 row_shl:6 row_mask:0xf bank_mask:0xf")
        for k in range(c.hrep // 2):
            a("buffer_store_dwordx4 v[24:27], v21, s[48:51], s70 offen sc1")
            if k + 1 < c.hrep // 2:
                a("s_add_u32 s70, s70, %d" % (2 * HREP_STRIDE))
        a("v_lshlrev_b32 v28, 16, v24")
        self.stamp(3)
        self.inbox_reduce(7, "v4", ("s58", "s59"), L, T, "v22")
        a("v_cvt_pk_bf16_f32 v22, v22, v22")
        a("v_lshlrev_b32 v22, 16, v22")
        a("v_add_f32 v22, v28, v22")
        a("v_cvt_pk_bf16_f32 v22, v22, v22")
        a("buffer_store_short v22, v18, s[44:47], s69 offen")
        self.stamp(4)
        self.finish()

    def softmax(self):
        a, c = self.a, self.c
        F = 32
        a.label("L_SOFTMAX")
        a("s_sub_u32 s58, s11, 1")
        a("s_lshl_b32 s56, s10, 12")
        a("s_lshl_b32 s57, s58, 11")
        a("s_add_u32 s56, s56, s57")
        a("s_add_u32 s56, s56, %d" % WS_SC)
        a("s_lshl_b32 s57, s9, 10")
        a("s_add_u32 s59, s56, s57")
        a("s_xor_b32 s57, s57, 1024")
        a("s_add_u32 s60, s56, s57")
        a("s_mul_i32 s14, s58, %d" % PS_STR)
        a("s_add_u32 s14, s14, %d" % PS)
        a("v_add_u32 v6, s14, v4")
        a("s_mov_b32 s61, %s" % f32(0.0625 * LOG2E))
        self.wait_flag("v2", F_SC, 4, "v24", sleep=1)
        self.stamp(2)
        a("s_mov_b32 s13, 0")
        a.label("L_SPOLL")
        a("buffer_load_dwordx4 v[8:11], v4, s[48:51], s59 offen sc1")
        a("buffer_load_dwordx4 v[12:15], v4, s[48:51], s60 offen sc1")
        a("s_waitcnt vmcnt(0)")
        a("v_max3_u32 v16, v8, v9, v10")
        a("v_max3_u32 v17, v11, v12, v13")
        a("v_max3_u32 v16, v16, v14, v15")
        a("v_max_u32 v16, v16, v17")
        a("v_cmp_eq_u32 vcc, -1, v16")
        a("s_cbranch_vccz L_SOK")
        a("s_add_u32 s13, s13, 1")
        a("s_cmp_lt_u32 s13, %d" % c.poll_max)
        a("s_cbranch_scc1 L_SPOLL")
        a.label("L_SOK")
        self.stamp(3)
        for k in range(8):
            a("v_lshlrev_b32 v%d, 16, v%d" % (F + 2 * k, 8 + k))
            a("v_and_b32 v%d, 0xffff0000, v%d" % (F + 2 * k + 1, 8 + k))
        a("v_max_f32 v16, v%d, v%d" % (F, F + 1))
        for k in range(1, 8):
            a("v_max3_f32 v16, v16, v%d, v%d" % (F + 2 * k, F + 2 * k + 1))
        self.wave_reduce1("v_max_f32", "v16")
        a("s_nop 0")
        a("v_readlane_b32 s58, v16, 63")
        a("s_nop 1")
        a("v_mov_b32 v17, s58")
        a("v_mul_f32 v17, s61, v17")
        for k in range(16):
            a("v_fma_f32 v%d, v%d, s61, -v17" % (F + k, F + k))
        for k in range(16):
            a("v_exp_f32 v%d, v%d" % (F + k, F + k))
        a("v_pk_add_f32 v[18:19], v[%d:%d], v[%d:%d]" % (F, F + 1, F + 2, F + 3))
        for k in range(2, 8):
            a("v_pk_add_f32 v[18:19], v[18:19], v[%d:%d]" % (F + 2 * k, F + 2 * k + 1))
        a("v_add_f32 v16, v18, v19")
        self.wave_reduce1("v_add_f32", "v16")
        a("s_nop 0")
        a("v_readlane_b32 s58, v16, 63")
        a("s_nop 1")
        a("v_rcp_f32 v18, s58")
        a("s_nop 0")
        for k in range(4):
            a("v_pk_mul_f32 v[%d:%d], v[%d:%d], v[18:19] op_sel_hi:[1,0]" % (F + 2 * k, F + 2 * k + 1, F + 2 * k, F + 2 * k + 1))
        for k in range(4):
            a("v_cvt_pk_bf16_f32 v%d, v%d, v%d" % (8 + k, F + 2 * k, F + 2 * k + 1))
        a("ds_write_b128 v6, v[8:11]")
        self.signal("v2", F_P, "v3")
        self.stamp(4)
        a("s_cmp_eq_u32 s66, 1")
        a("s_cbranch_scc1 L_FFN")
        self.finish()

    def ffn(self):
        a, c = self.a, self.c
        GF, DF, HF = 48, 104, 136
        a.label("L_FFN")
        a("v_lshrrev_b32 v22, 4, v0")
        a("v_bfe_u32 v23, v0, 2, 2")
        a("v_lshl_add_u32 v24, v22, 3, v23")
        a("v_lshlrev_b32 v20, 6, v24")
        a("v_and_b32 v24, 1, v0")
        a("v_lshl_add_u32 v20, v24, 3, v20")
        a("v_and_b32 v24, 1, v22")
        a("v_and_b32 v25, 2, v0")
        a("v_xor_b32 v24, v24, v25")
        a("v_xor_b32 v24, s11, v24")
        a("v_lshl_add_u32 v20, v24, 4, v20")
        a("v_mul_u32_u24 v25, %d, v25" % (28672 // 2))
        a("v_add_u32 v20, v20, v25")
        a("v_add_u32 v20, %d, v20" % GT)
        a("s_lshl_b32 s14, s11, 13")
        a("s_add_u32 s12, s14, %d" % DT)
        self.tr_addrs(12, "s12", "v24", "v25", "v26")
        a("v_mul_u32_u24 v21, %d, v23" % XN_STR)
        a("v_lshl_add_u32 v21, v22, 4, v21")
        a("v_add_u32 v21, %d, v21" % XN)
        a("s_mul_i32 s14, s11, %d" % XN_STR)
        a("s_add_u32 s14, s14, %d" % XN)
        a("v_lshrrev_b32 v24, 3, v0")
        a("v_lshlrev_b32 v6, 7, v24")
        a("v_and_b32 v24, 3, v0")
        a("v_lshl_add_u32 v6, v24, 5, v6")
        a("v_bfe_u32 v25, v0, 2, 1")
        a("v_lshl_add_u32 v6, v25, 4, v6")
        a("v_add_u32 v6, s14, v6")
        a("v_lshrrev_b32 v25, 2, v0")
        a("v_lshlrev_b32 v25, 7, v25")
        a("v_lshl_add_u32 v25, v24, 4, v25")
        a("v_max_u32 v5, v5, v25")
        a("v_lshlrev_b32 v24, 6, v23")
        a("v_lshl_add_u32 v24, v22, 4, v24")
        a("v_add_u32 v24, %d, v24" % ACT)
        a("v_mov_b32 v25, %d" % ZERO)
        a("v_and_b32 v26, 3, v0")
        for n in range(4):
            a("v_cmp_eq_u32 vcc, %d, v26" % n)
            a("s_nop 1")
            a("v_cndmask_b32 v%d, v25, v24, vcc" % (16 + n))
        a("v_and_b32 v24, 15, v0")
        a("v_lshlrev_b32 v7, 6, v22")
        a("v_lshl_add_u32 v7, v24, 1, v7")
        a("s_lshl_b32 s14, s11, 4")
        a("s_add_u32 s14, s14, %d" % ACT)
        a("v_add_u32 v7, s14, v7")
        a("v_mov_b32 v25, %d" % OS)
        a("v_cmp_gt_u32 vcc, 8, v24")
        a("s_nop 1")
        a("v_cndmask_b32 v7, v25, v7, vcc")
        a("v_mul_u32_u24 v25, 14, v22")
        a("v_bfe_u32 v26, v0, 3, 1")
        a("v_add_u32 v25, v25, v26")
        a("v_mul_u32_u24 v25, %d, v25" % (NF * 128))
        a("v_and_b32 v26, 7, v0")
        a("v_lshl_add_u32 v23, v26, 4, v25")
        a("s_mul_i32 s69, s11, %d" % (4 * NF * 128))
        a("s_lshl_b32 s70, s62, 7")
        a("s_add_u32 s69, s69, s70")
        a("s_add_u32 s69, s69, %d" % WS_C)
        a("s_add_u32 s70, s69, %d" % (2 * NF * 128))
        a("s_cmp_eq_u32 s11, 3")
        a("s_cselect_b32 s70, %d, s70" % OOB)
        a("s_and_b32 s60, s4, %d" % (c.hrep - 1))
        a("s_mul_i32 s60, s60, %d" % HREP_STRIDE)
        a("s_lshl_b32 s14, s67, 1")
        a("s_add_u32 s60, s60, s14")
        a("s_add_u32 s60, s60, %d" % WS_H)
        a("s_mov_b32 s61, %s" % f32(-LOG2E))
        a("s_waitcnt vmcnt(0)")
        a("s_barrier")
        self.stamp(5)
        for s in range(14):
            for hh in range(2):
                r = GF + 4 * s + 2 * hh
                a("ds_read_b64_tr_b16 v[%d:%d], v20 offset:%d" % (r, r + 1, s * 2048 + hh * 256))
            if s % 4 == 3:
                a("s_waitcnt lgkmcnt(0)")
        a("s_waitcnt lgkmcnt(0)")
        self.tile_reads(DF, 12, 0)
        a("s_waitcnt lgkmcnt(0)")
        self.tile_reads(DF + 16, 12, 4096)
        a("s_waitcnt lgkmcnt(0)")
        self.stamp(6)
        a("s_mov_b32 s13, 0")
        a.label("L_HPOLL")
        a("buffer_load_dwordx4 v[8:11], v5, s[48:51], s60 offen sc1")
        a("s_waitcnt vmcnt(0)")
        a("v_max3_u32 v24, v8, v9, v10")
        a("v_max_u32 v24, v24, v11")
        a("v_cmp_eq_u32 vcc, -1, v24")
        a("s_cbranch_vccz L_HOK")
        a("s_add_u32 s13, s13, 1")
        a("s_cmp_lt_u32 s13, %d" % c.poll_max)
        a("s_cbranch_scc1 L_HPOLL")
        a.label("L_HOK")
        self.stamp(7)
        self.layernorm(8, 24, 32)
        a("s_mov_b32 exec_hi, 0x00ffffff")
        a("ds_write_b128 v6, v[8:11]")
        a("s_mov_b64 exec, -1")
        a("s_waitcnt lgkmcnt(0)")
        a("s_barrier")
        AC = 24
        for s in range(7):
            a("ds_read_b128 v[%d:%d], v21 offset:%d" % (HF + 4 * s, HF + 4 * s + 3, s * 64))
        for s in range(14):
            a("s_waitcnt lgkmcnt(%d)" % (6 if s < 7 else 13 - s))
            self.mfma(AC, HF + 4 * (s % 7), GF + 4 * s, s == 0)
            if s < 7:
                a("ds_read_b128 v[%d:%d], v21 offset:%d" % (HF + 4 * s, HF + 4 * s + 3, (s + 7) * 64))
        a("s_nop 7")
        a("v_cvt_pk_bf16_f32 v28, v24, v24")
        a("v_lshlrev_b32 v28, 16, v28")
        a("v_mul_f32 v29, s61, v28")
        a("v_exp_f32 v29, v29")
        a("v_mov_b32_dpp v30, v28 row_ror:8 row_mask:0xf bank_mask:0xf")
        a("v_add_f32 v29, 1.0, v29")
        a("v_rcp_f32 v29, v29")
        a("s_nop 0")
        a("v_mul_f32 v29, v28, v29")
        a("v_cvt_pk_bf16_f32 v29, v29, v29")
        a("v_lshlrev_b32 v29, 16, v29")
        a("v_mul_f32 v29, v29, v30")
        a("v_cvt_pk_bf16_f32 v29, v29, v29")
        a("ds_write_b16 v7, v29")
        a("s_waitcnt lgkmcnt(0)")
        a("s_barrier")
        for n in range(4):
            a("ds_read_b128 v[%d:%d], v%d" % (HF + 4 * n, HF + 4 * n + 3, 16 + n))
        for pp in range(2):
            for n in range(4):
                if pp == 0:
                    a("s_waitcnt lgkmcnt(%d)" % (3 - n))
                self.mfma(24 + 4 * pp, HF + 4 * n, DF + 16 * pp + 4 * n, n == 0)
        a("s_nop 3")
        for k in range(4):
            a("v_min_u32 v%d, -2, v%d" % (24 + k, 24 + k))
        a("buffer_store_dwordx4 v[24:27], v23, s[48:51], s69 offen sc1")
        for k in range(4):
            a("v_min_u32 v%d, -2, v%d" % (28 + k, 28 + k))
        a("buffer_store_dwordx4 v[28:31], v23, s[48:51], s70 offen sc1")
        self.stamp(8)
        self.finish()


HEADER = """; Fused pre-LN decode block: sliding-window GQA attention + SwiGLU FFN in one launch (generated by gen_kernel.py).
"""


def generate(cfg):
    body = Gen(cfg).build()
    return f"""{HEADER}; @launch grid=(256,1,1) block=(768,1,1) lds={LDS_TOTAL}
.amdgcn_target "amdgcn-amd-amdhsa--gfx950"
.text
.globl {NAME}
.p2align 8
.type {NAME},@function
{NAME}:
{body}
.section .rodata,"a"
.p2align 6
.amdhsa_kernel {NAME}
  .amdhsa_next_free_vgpr 168
  .amdhsa_next_free_sgpr 96
  .amdhsa_accum_offset 168
  .amdhsa_group_segment_fixed_size 0
  .amdhsa_kernarg_size 96
  .amdhsa_user_sgpr_count 2
  .amdhsa_user_sgpr_kernarg_segment_ptr 1
  .amdhsa_system_sgpr_workgroup_id_x 1
  .amdhsa_float_denorm_mode_32 3
.end_amdhsa_kernel
"""


if __name__ == "__main__":
    cfg = Cfg()
    out = sys.argv[1]
    for kv in sys.argv[2:]:
        k, v = kv.split("=")
        cur = getattr(cfg, k)
        setattr(cfg, k, (v == "1") if isinstance(cur, bool) else type(cur)(v))
    open(out, "w").write(generate(cfg))
```

```python
import sys
from asmgen import Asm, NAME

WS_EPOCH = 0x0
WS_GOK = 0x1000
WS_Q = 0x2000
WS_FF = 0x1800
WS_QF = 0x1A0000
WS_O = 0x20000
WS_H = 0x60000
WS_FLAGS = 0x70000
WS_ST = 0x78000
WS_A = 0x80000
WS_C = 0x100000
WS_TS = 0x1C0000
WS_SIZE = 0x200000
NF = 56
HREP_STRIDE = 8192
OOB = 0x40000000

RING = 0
BIG = 65536
GT = BIG
UT = BIG + 28672
DT = BIG + 57344
SH = 151552
XN = SH
XN_STR = 960
QS = SH + 3840
QS_STR = 576
SCL = SH + 4992
PS = SH + 5632
PS_STR = 320
ACT = SH + 6272
DUMP = SH + 6528
ZERO = SH + 6592
FL = SH + 6848
LDS_TOTAL = SH + 6912
F_TAG, F_XN, F_Q, F_SC, F_P, F_VD, F_KD, F_CO, F_WO, F_WQ, F_VI = 0, 4, 8, 12, 16, 20, 24, 28, 32, 36, 40

LOG2E = 1.4426950408889634
NWAVES = 8


def f32(x):
    import struct
    return "0x%08x" % struct.unpack("<I", struct.pack("<f", x))[0]


class Cfg:
    diag = False
    pol_kv = "nt"
    pol_wq = "nt"
    pol_wo = "nt"
    pol_ffn = "nt"
    pol_pf = ""
    tkv = 4
    thi = 8
    tkv2 = 6
    ramp_at = 16
    fast_n = 8
    decor = True
    kd_at = 5
    wo_thr = 6
    hrep = 2
    poll_max = 1 << 20
    ffn_n1 = 0
    ffn_thr = 4
    fast = True
    code_pf = True
    wq_pf = True
    wq_pf_n = 0
    ffn_pf = True
    pf_rows = 32
    align = 12


class Gen:
    def __init__(self, cfg):
        self.c = cfg
        self.a = Asm()
        self.uid = 0

    def lbl(self, base):
        self.uid += 1
        return "L_%s_%d" % (base, self.uid)

    def stamp(self, k):
        if self.c.diag:
            a = self.a
            a("s_memrealtime s[%d:%d]" % (72 + 2 * k, 73 + 2 * k))
            a("s_waitcnt lgkmcnt(0)")

    def stamps_init(self):
        if self.c.diag:
            for k in range(12):
                self.a("s_mov_b32 s%d, 0" % (72 + 2 * k))

    def finish(self):
        a = self.a
        if self.c.diag:
            a("s_branch L_DIAG_END")
        else:
            a("s_endpgm")

    def srd(self, d, ptr, off_sreg, nrec):
        a = self.a
        if off_sreg is None:
            a("s_mov_b32 s%d, s%d" % (d, ptr))
            a("s_mov_b32 s%d, s%d" % (d + 1, ptr + 1))
        else:
            a("s_add_u32 s%d, s%d, %s" % (d, ptr, off_sreg))
            a("s_addc_u32 s%d, s%d, 0" % (d + 1, ptr + 1))
        a("s_mov_b32 s%d, %d" % (d + 2, nrec))
        a("s_mov_b32 s%d, 0x20000" % (d + 3))

    def dma(self, voff, srd, soff, m0, pol):
        a = self.a
        if isinstance(m0, tuple):
            a("s_add_u32 m0, %s, %d" % m0)
        else:
            a("s_mov_b32 m0, %d" % m0)
        if isinstance(soff, tuple):
            a("s_add_u32 s15, %s, %d" % soff)
        else:
            a("s_mov_b32 s15, %d" % soff)
        a("buffer_load_dwordx4 %s, s[%d:%d], s15 offen%s lds" % (voff, srd, srd + 3, (" " + pol) if pol else ""))

    def wait_flag(self, vfl, off, n, vt, sleep=0):
        a = self.a
        l = self.lbl("wf")
        a.label(l)
        if sleep:
            a("s_sleep %d" % sleep)
        a("ds_read_b32 %s, %s offset:%d" % (vt, vfl, off))
        a("s_waitcnt lgkmcnt(0)")
        a("v_readfirstlane_b32 s14, %s" % vt)
        a("s_cmp_ge_u32 s14, %d" % n)
        a("s_cbranch_scc0 %s" % l)

    def signal(self, vfl, off, vone):
        a = self.a
        a("s_mov_b64 exec, 1")
        a("ds_add_u32 %s, %s offset:%d" % (vfl, vone, off))
        a("s_mov_b64 exec, -1")

    def tr_addrs(self, dst, base_sreg_or_int, t0, t1, t2):
        a = self.a
        a("v_lshrrev_b32 %s, 2, v0" % t0)
        a("v_bfe_u32 %s, v0, 3, 2" % t1)
        a("v_and_b32 %s, 3, v0" % t2)
        a("v_lshlrev_b32 %s, 7, %s" % (t0, t0))
        a("v_lshl_add_u32 %s, %s, 3, %s" % (t0, t2, t0))
        a("v_add_u32 %s, %s, %s" % (t0, base_sreg_or_int, t0))
        for n in range(4):
            a("v_xor_b32 %s, %d, %s" % (t2, n, t1))
            a("v_lshl_add_u32 v%d, %s, 5, %s" % (dst + n, t2, t0))

    def tile_reads(self, dst, addr0, off):
        a = self.a
        for n in range(4):
            for hh in range(2):
                r = dst + 4 * n + 2 * hh
                a("ds_read_b64_tr_b16 v[%d:%d], v%d offset:%d" % (r, r + 1, addr0 + n, off + hh * 2048))

    def mfma(self, d, A, B, first):
        self.a("v_mfma_f32_16x16x32_bf16 v[%d:%d], v[%d:%d], v[%d:%d], %s" % (
            d, d + 3, A, A + 3, B, B + 3, "0" if first else "v[%d:%d]" % (d, d + 3)))

    def wave_reduce2(self, op, x, y):
        a = self.a
        for ctl in ("row_shr:1", "row_shr:2", "row_shr:4", "row_shr:8"):
            a("s_nop 0")
            for r in (x, y):
                a("%s_dpp %s, %s, %s %s row_mask:0xf bank_mask:0xf" % (op, r, r, r, ctl))
        for ctl in ("row_bcast:15 row_mask:0xa", "row_bcast:31 row_mask:0xc"):
            a("s_nop 0")
            for r in (x, y):
                a("%s_dpp %s, %s, %s %s bank_mask:0xf" % (op, r, r, r, ctl))

    def wave_reduce1(self, op, x):
        a = self.a
        for ctl in ("row_shr:1", "row_shr:2", "row_shr:4", "row_shr:8"):
            a("s_nop 1")
            a("%s_dpp %s, %s, %s %s row_mask:0xf bank_mask:0xf" % (op, x, x, x, ctl))
        for ctl in ("row_bcast:15 row_mask:0xa", "row_bcast:31 row_mask:0xc"):
            a("s_nop 1")
            a("%s_dpp %s, %s, %s %s bank_mask:0xf" % (op, x, x, x, ctl))

    def layernorm(self, src, f, t):
        a = self.a
        for k in range(4):
            a("v_lshlrev_b32 v%d, 16, v%d" % (f + 2 * k, src + k))
            a("v_and_b32 v%d, 0xffff0000, v%d" % (f + 2 * k + 1, src + k))
        a("v_readfirstlane_b32 s56, v%d" % f)
        a("v_mov_b32 v%d, 0" % (t + 8))
        a("v_mov_b32 v%d, 0" % (t + 9))
        a("s_mov_b32 exec_hi, 0x00ffffff")
        for k in range(4):
            a("v_pk_add_f32 v[%d:%d], v[%d:%d], s[56:57] op_sel_hi:[1,0] neg_lo:[0,1] neg_hi:[0,1]" % (
                t + 2 * k, t + 2 * k + 1, f + 2 * k, f + 2 * k + 1))
        a("v_pk_mul_f32 v[%d:%d], v[%d:%d], v[%d:%d]" % (t + 10, t + 11, t, t + 1, t, t + 1))
        for k in range(1, 4):
            a("v_pk_fma_f32 v[%d:%d], v[%d:%d], v[%d:%d], v[%d:%d]" % (
                t + 10, t + 11, t + 2 * k, t + 2 * k + 1, t + 2 * k, t + 2 * k + 1, t + 10, t + 11))
        a("v_pk_add_f32 v[%d:%d], v[%d:%d], v[%d:%d]" % (t, t + 1, t, t + 1, t + 2, t + 3))
        a("v_pk_add_f32 v[%d:%d], v[%d:%d], v[%d:%d]" % (t + 4, t + 5, t + 4, t + 5, t + 6, t + 7))
        a("v_pk_add_f32 v[%d:%d], v[%d:%d], v[%d:%d]" % (t, t + 1, t, t + 1, t + 4, t + 5))
        a("v_add_f32 v%d, v%d, v%d" % (t + 9, t + 10, t + 11))
        a("v_add_f32 v%d, v%d, v%d" % (t + 8, t, t + 1))
        a("s_mov_b64 exec, -1")
        S, Q = "v%d" % (t + 8), "v%d" % (t + 9)
        a("s_nop 0")
        self.wave_reduce2("v_add_f32", Q, S)
        a("s_nop 0")
        a("v_readlane_b32 s58, %s, 63" % Q)
        a("v_readlane_b32 s57, %s, 63" % S)
        a("v_mov_b32 v%d, %s" % (t + 2, f32(1.0 / 448)))
        a("v_mul_f32 v%d, s58, v%d" % (t + 1, t + 2))
        a("v_mul_f32 v%d, s57, v%d" % (t, t + 2))
        a("v_fma_f32 v%d, -v%d, v%d, v%d" % (t + 1, t, t, t + 1))
        a("v_add_f32 v%d, s56, v%d" % (t, t))
        a("v_max_f32 v%d, 0, v%d" % (t + 1, t + 1))
        a("v_cvt_pk_bf16_f32 v%d, v%d, v%d" % (t + 2, t, t + 1))
        a("v_and_b32 v%d, 0xffff0000, v%d" % (t + 1, t + 2))
        a("v_lshlrev_b32 v%d, 16, v%d" % (t, t + 2))
        a("v_add_f32 v%d, %s, v%d" % (t + 1, f32(1e-5), t + 1))
        a("v_cvt_pk_bf16_f32 v%d, v%d, v%d" % (t + 1, t + 1, t + 1))
        a("v_lshlrev_b32 v%d, 16, v%d" % (t + 1, t + 1))
        a("v_sqrt_f32 v%d, v%d" % (t + 1, t + 1))
        for k in range(4):
            a("v_pk_add_f32 v[%d:%d], v[%d:%d], v[%d:%d] op_sel_hi:[1,0] neg_lo:[0,1] neg_hi:[0,1]" % (
                f + 2 * k, f + 2 * k + 1, f + 2 * k, f + 2 * k + 1, t, t + 1))
        a("v_cvt_pk_bf16_f32 v%d, v%d, v%d" % (t + 2, t + 1, t + 1))
        a("v_lshlrev_b32 v%d, 16, v%d" % (t + 2, t + 2))
        a("v_rcp_f32 v%d, v%d" % (t + 2, t + 2))
        for k in range(4):
            a("v_cvt_pk_bf16_f32 v%d, v%d, v%d" % (src + k, f + 2 * k, f + 2 * k + 1))
        for k in range(4):
            a("v_lshlrev_b32 v%d, 16, v%d" % (f + 2 * k, src + k))
            a("v_and_b32 v%d, 0xffff0000, v%d" % (f + 2 * k + 1, src + k))
        for k in range(4):
            a("v_pk_mul_f32 v[%d:%d], v[%d:%d], v[%d:%d] op_sel_hi:[1,0]" % (
                f + 2 * k, f + 2 * k + 1, f + 2 * k, f + 2 * k + 1, t + 2, t + 3))
        for k in range(4):
            a("v_cvt_pk_bf16_f32 v%d, v%d, v%d" % (src + k, f + 2 * k, f + 2 * k + 1))

    def inbox_reduce(self, nl, voff, soff, L, T, out):
        a = self.a
        top, ok, chk = self.lbl("rp"), self.lbl("rok"), self.lbl("rchk")
        a("s_mov_b32 s13, 0")
        a.label(top)
        for i in range(nl):
            if i < 4:
                a("buffer_load_dwordx4 v[%d:%d], %s, s[48:51], %s offen offset:%d sc1" % (L + 4 * i, L + 4 * i + 3, voff, soff[0], i * 1024))
            else:
                a("buffer_load_dwordx4 v[%d:%d], %s, s[48:51], %s offen offset:%d sc1" % (L + 4 * i, L + 4 * i + 3, voff, soff[1], (i - 4) * 1024))

        def padd(d, x, y):
            for h in (0, 2):
                a("v_pk_add_f32 v[%d:%d], v[%d:%d], v[%d:%d]" % (d + h, d + h + 1, x + h, x + h + 1, y + h, y + h + 1))
        for k in range(nl // 2):
            a("s_waitcnt vmcnt(%d)" % (nl - 2 - 2 * k))
            padd(T + 4 * k, L + 8 * k, L + 8 * k + 4)
        padd(T, T, T + 4)
        if nl == 8:
            padd(T + 8, T + 8, T + 12)
            padd(T, T, T + 8)
        elif nl == 7:
            a("s_waitcnt vmcnt(0)")
            padd(T + 8, T + 8, L + 24)
            padd(T, T, T + 8)
        a("s_nop 1")
        a("v_permlane16_swap_b32 v%d, v%d" % (T, T + 1))
        a("v_permlane16_swap_b32 v%d, v%d" % (T + 2, T + 3))
        a("v_add_f32 v%d, v%d, v%d" % (T, T, T + 1))
        a("v_add_f32 v%d, v%d, v%d" % (T + 2, T + 2, T + 3))
        a("s_nop 1")
        a("v_permlane32_swap_b32 v%d, v%d" % (T, T + 2))
        a("v_add_f32 v%d, v%d, v%d" % (T, T, T + 2))
        a("s_nop 1")
        a("v_add_f32_dpp %s, v%d, v%d row_ror:8 row_mask:0xf bank_mask:0xf" % (out, T, T))
        a("v_cmp_u_f32 vcc, %s, %s" % (out, out))
        a("s_cbranch_vccz %s" % ok)
        a("s_add_u32 s13, s13, 1")
        a("s_and_b32 s14, s13, 15")
        a("s_cbranch_scc1 %s" % top)
        regs = [L + i for i in range(4 * nl)]
        a("v_max_u32 v%d, v%d, v%d" % (T + 4, regs[0], regs[1]))
        for i in range(2, 4 * nl, 2):
            a("v_max3_u32 v%d, v%d, v%d, v%d" % (T + 4, T + 4, regs[i], regs[i + 1]))
        a("v_cmp_eq_u32 vcc, -1, v%d" % (T + 4))
        a("s_cbranch_vccz %s" % ok)
        a("s_cmp_lt_u32 s13, %d" % self.c.poll_max)
        a("s_cbranch_scc1 %s" % top)
        a.label(ok)

    def ld(self, voff, srd, pol):
        self.a("buffer_load_dwordx4 %s, s[%d:%d], s15 offen%s lds" % (voff, srd, srd + 3, (" " + pol) if pol else ""))

    def tile_loop(self, voffs, srd, n, step, pol, thr):
        a = self.a
        top = self.lbl("tl")
        a("s_movk_i32 s13, %d" % n)
        a.label(top)
        for v in voffs:
            self.ld(v[0], v[1] if srd is None else srd, pol)
            a("s_addk_i32 m0, %d" % v[2])
            if thr:
                a("s_waitcnt vmcnt(%d)" % (thr - 1))
            else:
                a("s_nop 0")
        a("s_add_u32 s15, s15, %d" % step)
        a("s_sub_u32 s13, s13, 1")
        a("s_cmp_lg_u32 s13, 0")
        a("s_cbranch_scc1 %s" % top)

    def build(self):
        a, c = self.a, self.c
        a("s_cmp_ge_u32 s2, 256")
        a("s_cbranch_scc1 L_END")
        a("v_lshrrev_b32 v1, 6, v0")
        a("v_and_b32 v0, 63, v0")
        a("v_readfirstlane_b32 s3, v1")
        a("s_lshr_b32 s5, s2, 3")
        a("s_cmp_lg_u32 s3, 1")
        a("s_cbranch_scc1 L_NOINIT")
        a("v_min_u32 v6, 39, v0")
        a("v_lshlrev_b32 v6, 3, v6")
        a("v_add_u32 v6, %d, v6" % ZERO)
        a("v_mov_b32 v12, 0")
        a("v_mov_b32 v13, 0")
        a("ds_write_b64 v6, v[12:13]")
        if c.code_pf:
            a("s_getpc_b64 s[56:57]")
            a.label("L_PC")
            a("s_sub_u32 s56, s56, L_PC-%s" % NAME)
            a("s_subb_u32 s57, s57, 0")
            a("v_and_b32 v6, 3, v0")
            a("v_lshl_add_u32 v6, s5, 2, v6")
            a("v_lshlrev_b32 v6, 7, v6")
            a("v_min_u32 v6, L_END-%s, v6" % NAME)
            a("global_load_dword v47, v6, s[56:57]")
        a("s_waitcnt lgkmcnt(0)")
        a.label("L_NOINIT")
        a("s_load_dwordx16 s[16:31], s[0:1], 0")
        a("s_load_dwordx8 s[32:39], s[0:1], 64")
        self.stamps_init()
        if c.diag:
            a("s_memrealtime s[72:73]")
        a("s_barrier")
        a("s_and_b32 s4, s2, 7")
        a("s_lshr_b32 s6, s2, 6")
        a("s_and_b32 s7, s5, 7")
        a("s_lshl_b32 s10, s6, 3")
        a("s_add_u32 s10, s10, s4")
        a("s_lshl_b32 s9, s4, 2")
        a("s_add_u32 s8, s9, s6")
        a("s_and_b32 s11, s3, 3")
        a("s_mov_b32 s66, 2")
        a("s_cmp_lt_u32 s5, 29")
        a("s_cselect_b32 s66, 1, s66")
        a("s_cmp_lt_u32 s5, 22")
        a("s_cselect_b32 s66, 3, s66")
        a("s_cmp_lt_u32 s5, 8")
        a("s_cselect_b32 s66, 0, s66")
        a("s_lshr_b32 s70, s5, 2")
        a("s_add_u32 s70, s70, s4")
        a("s_and_b32 s70, s70, %d" % (3 if c.decor else 0))
        a("s_lshl_b32 s70, s70, 7")
        a("s_cmp_lt_u32 s3, 4")
        a("s_cbranch_scc1 L_SROLE")
        self.k_early()
        self.s_early()
        self.k_main()
        self.k_scores()
        self.s0_late()
        self.s1_late()
        self.s2_late()
        self.stage2()
        self.reducer()
        self.ffn()
        if c.diag:
            a.label("L_DIAG_END")
            a("s_memrealtime s[94:95]")
            a("s_waitcnt lgkmcnt(0)")
            a("s_mov_b64 exec, -1")
            for k in range(12):
                a("v_mov_b32 v%d, s%d" % (4 + k, 72 + 2 * k))
            a("s_mul_i32 s14, s2, 12")
            a("s_add_u32 s14, s14, s3")
            a("s_lshl_b32 s14, s14, 6")
            a("s_add_u32 s14, s14, %d" % WS_TS)
            a("v_mov_b32 v1, 0")
            a("s_mov_b64 exec, 1")
            for k in range(3):
                a("buffer_store_dwordx4 v[%d:%d], v1, s[48:51], s14 offen offset:%d" % (4 + 4 * k, 7 + 4 * k, 16 * k))
            a("s_waitcnt vmcnt(0)")
        a.label("L_END")
        a("s_endpgm")
        return a.text()

    def k_issue(self, i):
        a, c = self.a, self.c
        lo = c.tkv if i < c.ramp_at + c.tkv else c.tkv2
        if i >= lo and lo < c.thi:
            skip = self.lbl("thr")
            a("s_cbranch_vccz %s" % skip)
            a("s_waitcnt vmcnt(%d)" % (lo - 1))
            a.label(skip)
        if i & 15:
            a("s_addk_i32 m0, 1024")
        else:
            a("s_mov_b32 m0, s12")
        if i < 16:
            u, dseg, half = i >> 3, (i >> 1) & 3, i & 1
            a("s_xor_b32 s15, s62, %d" % (u * 8192 + dseg * 128))
            self.ld("v2" if half else "v1", 40, c.pol_kv)
        else:
            a("s_xor_b32 s15, s63, %d" % ((i - 16) * 4096))
            self.ld("v3", 44, c.pol_kv)

    def k_early(self):
        a, c = self.a, self.c
        T = c.tkv
        a("v_lshrrev_b32 v13, 3, v0")
        a("v_and_b32 v14, 7, v0")
        a("v_lshrrev_b32 v15, 1, v13")
        a("v_xor_b32 v1, v14, v15")
        a("v_lshlrev_b32 v1, 4, v1")
        a("v_lshl_add_u32 v1, v13, 9, v1")
        a("v_xor_b32 v2, 64, v1")
        a("v_add_u32 v2, 4096, v2")
        a("v_lshlrev_b32 v3, 1, v15")
        a("v_xor_b32 v3, v14, v3")
        a("v_lshlrev_b32 v3, 4, v3")
        a("v_lshl_add_u32 v3, v13, 9, v3")
        a("v_mov_b32 v13, %d" % FL)
        a("s_lshl_b32 s12, s11, 14")
        a("s_lshl_b32 s56, s10, 21")
        a("s_add_u32 s56, s56, 0x180000")
        a("s_lshl_b32 s57, s7, 16")
        a("s_add_u32 s56, s56, s57")
        a("s_lshl_b32 s63, s4, 1")
        a("s_add_u32 s63, s63, s5")
        a("s_and_b32 s63, s63, %d" % (15 if c.decor else 0))
        a("s_lshl_b32 s63, s63, 12")
        a("s_and_b32 s62, s63, 0x2000")
        a("s_or_b32 s62, s62, s70")
        a("s_and_b32 s57, s63, 0x1000")
        a("v_xor_b32 v1, s57, v1")
        a("v_xor_b32 v2, s57, v2")
        a("s_and_b32 s57, s63, 0xc000")
        a("s_xor_b32 s57, s57, s12")
        a("s_add_u32 s57, s56, s57")
        a("s_lshl_b32 s58, s11, 7")
        a("s_add_u32 s58, s58, s56")
        a("s_waitcnt lgkmcnt(0)")
        self.srd(40, 18, "s57", 16384)
        a("s_cmp_lg_u32 s66, 0")
        a("s_cbranch_scc1 L_K_GO")
        a("v_bfe_u32 v16, v0, 3, 2")
        a("v_lshrrev_b32 v17, 5, v0")
        a("v_lshl_add_u32 v16, v17, 3, v16")
        a("v_and_b32 v17, 0x70, v3")
        a("v_lshl_add_u32 v16, v16, 13, v17")
        a("s_lshl_b32 s56, s4, 10")
        a("s_lshl_b32 s57, s5, 7")
        a("s_add_u32 s56, s56, s57")
        self.srd(52, 22, "s56", 447 * 8192 + 128)
        a("s_lshl_b32 s14, s11, 10")
        a("s_add_u32 m0, s14, %d" % BIG)
        a("s_and_b32 s15, s11, 1")
        a("s_lshl_b32 s15, s15, 17")
        a("s_lshr_b32 s14, s11, 1")
        a("s_lshl_b32 s14, s14, 15")
        a("s_add_u32 s15, s15, s14")
        self.tile_loop([("v16", 52, 4096)], 52, 14, 32 * 8192, c.pol_wq, 0)
        a.label("L_K_GO")
        for i in range(T):
            self.k_issue(i)
        self.stamp(7)
        a("s_branch L_KMAIN")

    def k_main(self):
        a, c = self.a, self.c
        KF, VF, QF, SA = 16, 80, 144, 176
        PF, AC, PK = 16, 48, 56
        T = c.tkv
        a.label("L_KMAIN")
        self.srd(44, 20, "s58", 127 * 512 + 128)
        self.srd(48, 38, None, WS_SIZE)
        a("v_and_b32 v189, 15, v0")
        a("v_lshrrev_b32 v14, 4, v0")
        a("v_lshrrev_b32 v15, 1, v189")
        a("v_xor_b32 v4, v14, v15")
        a("v_lshlrev_b32 v4, 4, v4")
        a("v_lshl_add_u32 v4, v189, 7, v4")
        a("v_add_u32 v4, s12, v4")
        a("v_xor_b32 v5, 64, v4")
        a("v_and_b32 v15, 1, v0")
        a("v_mul_u32_u24 v10, %d, v15" % QS_STR)
        a("v_lshl_add_u32 v10, v14, 4, v10")
        a("v_add_u32 v10, %d, v10" % QS)
        a("v_mul_u32_u24 v11, %d, v15" % PS_STR)
        a("v_lshl_add_u32 v11, v14, 4, v11")
        a("s_lshl_b32 s14, s11, 6")
        a("s_add_u32 s14, s14, %d" % SCL)
        a("v_add_u32 v12, s14, v11")
        a("v_add_u32 v11, %d, v11" % PS)
        a("v_mov_b32 v184, %d" % ZERO)
        a("v_and_b32 v185, 2, v0")
        a("v_cmp_eq_u32 vcc, 0, v185")
        a("v_lshlrev_b32 v188, 13, v15")
        a("v_lshl_add_u32 v188, v14, 9, v188")
        a("v_cndmask_b32 v186, v184, v11, vcc")
        a("v_cndmask_b32 v187, v11, v184, vcc")
        a("v_lshl_add_u32 v188, v185, 7, v188")
        a("v_mov_b32 v184, %d" % OOB)
        a("v_cmp_gt_u32 vcc, 4, v189")
        a("s_lshr_b32 s59, s8, 1")
        a("s_lshl_b32 s59, s59, 14")
        a("v_cndmask_b32 v188, v184, v188, vcc")
        a("s_lshl_b32 s14, s11, 11")
        a("s_add_u32 s59, s59, s14")
        a("s_and_b32 s14, s5, 15")
        a("s_lshl_b32 s14, s14, 4")
        a("s_add_u32 s59, s59, s14")
        a("s_add_u32 s59, s59, %d" % WS_O)
        self.tr_addrs(6, "s12", "v189", "v14", "v15")
        a("v_mov_b32 v14, 1")
        a("s_mov_b32 s60, 0")
        a("s_cmp_lg_u32 s66, 0")
        a("s_cselect_b64 vcc, -1, 0")
        TH = c.thi
        for i in range(T, TH):
            self.k_issue(i)
        a("s_waitcnt vmcnt(%d)" % TH)
        self.signal("v13", F_WQ, "v14")
        nxt = TH
        last_issue = 31 - TH
        block_at = max(15, last_issue | 1)
        for i in range(28):
            grp_end = (i & 1) == 1 if i < 16 else (i & 3) == 3
            if nxt <= 31 or grp_end:
                a("s_waitcnt vmcnt(%d) lgkmcnt(0)" % (nxt - 1 - i))
            if i == 0:
                self.stamp(8)
            if grp_end:
                if i < 16:
                    for tt in range(2):
                        r = KF + 4 * (i - 1 + tt)
                        a("ds_read_b128 v[%d:%d], v%d offset:%d" % (r, r + 3, 4 + tt, (i - 1) * 1024))
                else:
                    s = (i - 16) >> 2
                    self.tile_reads(VF + 16 * s, 6, s * 4096)
            if i == c.kd_at:
                self.signal("v13", F_KD, "v14")
            if i == 15:
                self.stamp(1)
            def check(blocking):
                skip = self.lbl("kchk")
                a("s_cmp_lg_u32 s60, 0")
                a("s_cbranch_scc1 %s" % skip)
                if blocking:
                    self.wait_flag("v13", F_Q, 1, "v15")
                else:
                    a("ds_read_b32 v15, v13 offset:%d" % F_Q)
                    a("s_waitcnt lgkmcnt(0)")
                    a("v_readfirstlane_b32 s14, v15")
                    a("s_cmp_eq_u32 s14, 0")
                    a("s_cbranch_scc1 %s" % skip)
                a("s_call_b64 s[64:65], L_SCORES")
                a.label(skip)
            if 15 <= i <= last_issue:
                check(False)
            if nxt <= 31:
                self.k_issue(nxt)
                nxt += 1
            if i == max(15, last_issue):
                check(True)
        assert nxt == 32
        self.wait_flag("v13", F_CO, 1, "v15")
        a("s_mov_b32 s61, s14")
        self.wait_flag("v13", F_P, 1, "v15")
        self.stamp(4)
        for s in range(4):
            for hv in range(2):
                r = PF + 8 * s + 4 * hv
                a("ds_read_b128 v[%d:%d], v%d offset:%d" % (r, r + 3, 186 + hv, s * 64))
        for s in range(3):
            for n in range(4):
                if n % 2 == 0:
                    a("s_waitcnt lgkmcnt(%d)" % (7 - 2 * s - (n >> 1)))
                self.mfma(AC + 4 * (n & 1), VF + 16 * s + 4 * n, PF + 8 * s + 4 * (n >> 1), s == 0 and n < 2)
        a("s_waitcnt vmcnt(0)")
        self.stamp(5)
        self.tile_reads(VF + 48, 6, 3 * 4096)
        for n in range(4):
            a("s_waitcnt lgkmcnt(%d)" % (6 - 2 * n))
            self.mfma(AC + 4 * (n & 1), VF + 48 + 4 * n, PF + 24 + 4 * (n >> 1), False)
        a("s_cmp_eq_u32 s61, 2")
        a("s_nop 4")
        a("v_cvt_pk_bf16_f32 v%d, v%d, v%d" % (PK, AC, AC + 1))
        a("v_cvt_pk_bf16_f32 v%d, v%d, v%d" % (PK + 1, AC + 2, AC + 3))
        a("v_cvt_pk_bf16_f32 v%d, v%d, v%d" % (PK + 2, AC + 4, AC + 5))
        a("v_cvt_pk_bf16_f32 v%d, v%d, v%d" % (PK + 3, AC + 6, AC + 7))
        for k in range(4):
            a("v_min_u32 v%d, -2, v%d" % (PK + k, PK + k))
        a("s_cbranch_scc0 L_K_SLOWST")
        a("buffer_store_dwordx4 v[%d:%d], v188, s[48:51], s59 offen" % (PK, PK + 3))
        a("s_branch L_K_STDONE")
        a.label("L_K_SLOWST")
        a("buffer_store_dwordx4 v[%d:%d], v188, s[48:51], s59 offen sc1" % (PK, PK + 3))
        a.label("L_K_STDONE")
        self.signal("v13", F_VD, "v14")
        self.stamp(6)
        self.finish()

    def k_scores(self):
        a, c = self.a, self.c
        KF, VF, QF, SA = 16, 80, 144, 176
        a.label("L_SCORES")
        self.stamp(2)
        for t in range(8):
            a("ds_read_b128 v[%d:%d], v10 offset:%d" % (QF + 4 * t, QF + 4 * t + 3, t * 64))
        for t in range(8):
            a("s_waitcnt lgkmcnt(%d)" % (7 - t))
            for u in range(2):
                self.mfma(SA + 4 * u, KF + 4 * (u * 8 + t), QF + 4 * t, t == 0)
        a("s_mov_b32 s60, 1")
        a("s_nop 6")
        for k in range(4):
            a("v_cvt_pk_bf16_f32 v%d, v%d, v%d" % (QF + k, SA + 2 * k, SA + 2 * k + 1))
        a("s_mov_b32 exec_lo, 0x00030003")
        a("s_mov_b32 exec_hi, 0x00030003")
        a("ds_write_b128 v12, v[%d:%d]" % (QF, QF + 3))
        self.signal("v13", F_SC, "v14")
        self.stamp(3)
        a("s_setpc_b64 s[64:65]")

    def s_early(self):
        a, c = self.a, self.c
        a.label("L_SROLE")
        a("s_setprio 2")
        a("v_mov_b32 v2, %d" % FL)
        a("v_mov_b32 v3, 1")
        a("v_lshlrev_b32 v4, 4, v0")
        a("v_mov_b32 v5, %d" % OOB)
        a("v_cmp_gt_u32 vcc, 56, v0")
        a("s_mul_i32 s67, s11, 896")
        a("s_mul_i32 s62, s4, 7")
        a("s_add_u32 s62, s62, s5")
        a("s_sub_u32 s62, s62, 22")
        a("v_cndmask_b32 v5, v5, v4, vcc")
        a("v_and_b32 v17, 7, v0")
        a("v_bfe_u32 v18, v0, 4, 2")
        a("v_lshlrev_b32 v18, 1, v18")
        a("v_xor_b32 v17, v17, v18")
        a("v_lshlrev_b32 v17, 4, v17")
        a("v_bfe_u32 v16, v0, 3, 2")
        a("v_lshrrev_b32 v18, 5, v0")
        a("s_waitcnt lgkmcnt(0)")
        self.srd(48, 38, None, WS_SIZE)
        self.srd(52, 16, None, 3584)
        a("s_cmp_lg_u32 s66, 0")
        a("s_cbranch_scc1 L_S_NOX")
        a("buffer_load_dwordx4 v[8:11], v5, s[52:55], s67 offen")
        a.label("L_S_NOX")
        a("s_cmp_eq_u32 s11, 1")
        a("s_cbranch_scc1 L_S1")
        a("s_cmp_eq_u32 s11, 2")
        a("s_cbranch_scc1 L_S2")
        a("s_cmp_eq_u32 s11, 3")
        a("s_cbranch_scc1 L_S3")
        a("s_cmp_lg_u32 s66, 0")
        a("s_cbranch_scc1 L_S0_TAG")
        a("s_waitcnt vmcnt(0)")
        a("s_call_b64 s[64:65], L_LN1")
        a("s_branch L_S0_GATHER")
        a.label("L_S1")
        if c.wq_pf:
            a("s_cmp_lg_u32 s66, 2")
            a("s_cbranch_scc1 L_S1_NOWQ")
            a("v_lshlrev_b32 v6, 13, v0")
            a("s_sub_u32 s56, s5, 28")
            a("s_lshl_b32 s56, s56, 20")
            a("s_lshl_b32 s57, s4, 10")
            a("s_add_u32 s57, s57, 384")
            self.srd(40, 22, "s57", 447 * 8192 + 128)
            a("buffer_load_dword v12, v6, s[40:43], s56 offen %s" % c.pol_pf)
            a("s_add_u32 s56, s56, %d" % (64 * 8192))
            a("buffer_load_dword v13, v6, s[40:43], s56 offen %s" % c.pol_pf)
            a.label("L_S1_NOWQ")
        a("s_cmp_lg_u32 s66, 0")
        a("s_cbranch_scc1 L_S1_SM")
        a("s_waitcnt vmcnt(0)")
        a("s_call_b64 s[64:65], L_LN1")
        a("s_branch L_S1_SM")
        a.label("L_S2")
        a("v_mov_b32 v19, 0")
        a("buffer_load_dword v7, v19, s[48:51], 0 offen sc1")
        for k in range(4):
            a("v_mov_b32 v%d, -1" % (12 + k))
        a("v_and_b32 v18, 7, v0")
        a("v_lshlrev_b32 v18, 4, v18")
        a("s_lshl_b32 s56, s4, 15")
        a("s_lshl_b32 s57, s5, 10")
        a("s_add_u32 s56, s56, s57")
        a("s_add_u32 s56, s56, %d" % WS_O)
        a("buffer_store_dwordx4 v[12:15], v4, s[48:51], s56 offen sc1")
        a("s_lshl_b32 s56, s8, 10")
        a("s_lshl_b32 s57, s7, 7")
        a("s_add_u32 s56, s56, s57")
        a("s_add_u32 s56, s56, %d" % WS_ST)
        a("s_mov_b64 exec, 1")
        a("buffer_store_dwordx4 v[12:15], v19, s[48:51], s56 offen sc1")
        a("s_cmp_eq_u32 s66, 2")
        a("s_cbranch_scc0 L_S2_K")
        a("buffer_store_dwordx4 v[12:15], v19, s[48:51], s56 offen offset:16 sc1")
        a("s_branch L_S2_CLR")
        a.label("L_S2_K")
        a("s_mov_b64 exec, -1")
        a("s_cmp_eq_u32 s66, 0")
        a("s_cbranch_scc1 L_S2_H")
        a("s_cmp_eq_u32 s66, 1")
        a("s_cbranch_scc1 L_S2_C")
        a("v_lshrrev_b32 v16, 5, v0")
        a("v_mul_u32_u24 v16, 14, v16")
        a("v_bfe_u32 v17, v0, 4, 1")
        a("v_add_u32 v16, v16, v17")
        a("v_lshlrev_b32 v16, 12, v16")
        a("v_and_b32 v17, 15, v0")
        a("v_lshl_add_u32 v16, v17, 4, v16")
        a("s_sub_u32 s57, s5, 8")
        a("s_lshr_b32 s56, s57, 1")
        a("s_lshl_b32 s56, s56, 13")
        a("s_and_b32 s57, s57, 1")
        a("s_lshl_b32 s57, s57, 8")
        a("s_add_u32 s56, s56, s57")
        a("s_lshl_b32 s57, s4, 9")
        a("s_add_u32 s56, s56, s57")
        a("s_add_u32 s56, s56, %d" % WS_A)
        a("buffer_store_dwordx4 v[12:15], v16, s[48:51], s56 offen sc1")
        a("s_add_u32 s56, s56, %d" % (28 * 4096))
        a("buffer_store_dwordx4 v[12:15], v16, s[48:51], s56 offen sc1")
        a("s_branch L_S2_CLR")
        a.label("L_S2_C")
        a("v_lshrrev_b32 v17, 3, v0")
        a("v_mul_u32_u24 v16, %d, v17" % (NF * 128))
        a("v_add_u32 v16, v16, v18")
        a("s_lshl_b32 s56, s62, 7")
        a("s_add_u32 s56, s56, %d" % WS_C)
        for k in range(7):
            a("buffer_store_dwordx4 v[12:15], v16, s[48:51], s56 offen sc1")
            a("s_add_u32 s56, s56, %d" % (8 * NF * 128))
        a("s_branch L_S2_CLR")
        a.label("L_S2_H")
        a("v_lshrrev_b32 v17, 2, v0")
        a("v_mul_u32_u24 v16, %d, v17" % HREP_STRIDE)
        a("v_and_b32 v17, 3, v0")
        a("v_lshl_add_u32 v16, v17, 4, v16")
        a("s_lshl_b32 s56, s2, 7")
        a("s_add_u32 s56, s56, %d" % WS_H)
        a("s_mov_b32 exec_lo, 0x%x" % ((1 << (4 * c.hrep)) - 1))
        a("s_mov_b32 exec_hi, 0")
        a("buffer_store_dwordx4 v[12:15], v16, s[48:51], s56 offen sc1")
        a.label("L_S2_CLR")
        a("s_mov_b64 exec, -1")
        a("s_waitcnt vmcnt(3)")
        a("v_readfirstlane_b32 s68, v7")
        a("s_or_b32 s68, s68, 1")
        a("s_mul_i32 s68, s68, 0x9E3779B1")
        a("s_add_u32 s68, s68, 0x85EBCA6A")
        a("s_getreg_b32 s69, hwreg(HW_REG_XCC_ID)")
        a("s_and_b32 s69, s69, 15")
        a("v_mov_b32 v20, s68")
        a("v_mov_b32 v21, s69")
        a("s_mov_b64 exec, 1")
        a("ds_write_b32 v2, v20 offset:%d" % F_TAG)
        a("s_mov_b64 exec, -1")
        a("s_cmp_lg_u32 s66, 0")
        a("s_cbranch_scc1 L_S2_FLAG")
        a("s_call_b64 s[64:65], L_LN1")
        a("s_waitcnt vmcnt(2)")
        a("s_branch L_S2_FLAG2")
        a.label("L_S3")
        a("s_cmp_eq_u32 s66, 1")
        a("s_cbranch_scc1 L_S3_FFN")
        a("s_cmp_eq_u32 s66, 3")
        a("s_cbranch_scc0 L_S3_Q")
        a("v_lshl_add_u32 v20, v18, 5, v16")
        a("v_mul_u32_u24 v20, 896, v20")
        a("v_add_u32 v20, v20, v17")
        for k, rows in enumerate((4, 16, 20, 8, 12, 24, 28)):
            a("v_add_u32 v%d, %d, v20" % (21 + k, rows * 896))
        a("s_sub_u32 s57, s5, 8")
        a("s_and_b32 s56, s57, 1")
        a("s_lshl_b32 s58, s4, 1")
        a("s_add_u32 s56, s56, s58")
        a("s_mul_i32 s56, s56, %d" % (256 * 896))
        a("s_lshr_b32 s57, s57, 1")
        a("s_lshl_b32 s57, s57, 7")
        a("s_add_u32 s56, s56, s57")
        self.srd(52, 24, "s56", 255 * 896 + 128)
        a("s_mov_b32 m0, %d" % BIG)
        a("s_movk_i32 s15, 0")
        self.tile_loop([("v%d" % (20 + k), 52, 1024) for k in range(8)], 52, 4, 64 * 896, c.pol_wo, c.wo_thr)
        a("s_waitcnt vmcnt(0)")
        self.signal("v2", F_WO, "v3")
        self.stamp(1)
        a("s_branch L_STAGE2")
        a.label("L_S3_Q")
        a("s_cmp_lg_u32 s66, 0")
        a("s_cbranch_scc1 L_S3_PF")
        a("s_waitcnt vmcnt(0)")
        a("s_call_b64 s[64:65], L_LN1")
        a("s_branch L_S3_PF")
        a.label("L_LN1")
        self.layernorm(8, 24, 32)
        a("s_mul_i32 s14, s11, %d" % XN_STR)
        a("s_add_u32 s14, s14, %d" % XN)
        a("v_add_u32 v6, s14, v4")
        a("s_mov_b32 exec_hi, 0x00ffffff")
        a("ds_write_b128 v6, v[8:11]")
        self.signal("v2", F_XN, "v3")
        XF, WF, AC = 48, 104, 160
        a("v_lshrrev_b32 v24, 2, v0")
        a("v_bfe_u32 v25, v0, 3, 2")
        a("v_and_b32 v26, 3, v0")
        a("v_lshlrev_b32 v24, 7, v24")
        a("v_lshl_add_u32 v24, v26, 3, v24")
        a("v_xor_b32 v25, s11, v25")
        a("v_lshl_add_u32 v24, v25, 5, v24")
        a("v_add_u32 v24, %d, v24" % BIG)
        a("v_lshrrev_b32 v25, 4, v0")
        a("v_mul_u32_u24 v6, %d, v26" % XN_STR)
        a("v_lshl_add_u32 v6, v25, 4, v6")
        a("v_add_u32 v6, %d, v6" % XN)
        a("v_lshlrev_b32 v27, 14, v26")
        a("v_lshl_add_u32 v27, v25, 4, v27")
        a("s_lshl_b32 s56, s4, 11")
        a("s_lshl_b32 s57, s5, 8")
        a("s_add_u32 s56, s56, s57")
        a("s_lshl_b32 s57, s11, 6")
        a("s_add_u32 s56, s56, s57")
        a("s_add_u32 s56, s56, %d" % WS_Q)
        a("s_add_u32 s57, s56, %d" % (WS_QF - WS_Q))
        self.wait_flag("v2", F_XN, 4, "v28")
        for s in range(14):
            a("ds_read_b128 v[%d:%d], v6 offset:%d" % (XF + 4 * s, XF + 4 * s + 3, s * 64))
        self.wait_flag("v2", F_TAG, 1, "v28")
        a("v_mov_b32 v9, s14")
        a("v_mov_b32 v11, s14")
        self.stamp(9)
        self.wait_flag("v2", F_WQ, 4, "v28")
        for s in range(14 + 6):
            if s < 14:
                for hh in range(2):
                    r = WF + 4 * s + 2 * hh
                    a("ds_read_b64_tr_b16 v[%d:%d], v24 offset:%d" % (r, r + 1, s * 4096 + hh * 2048))
            p = s - 6
            if p >= 0:
                a("s_waitcnt lgkmcnt(%d)" % (2 * (min(s, 13) - p)))
                self.mfma(AC, WF + 4 * p, XF + 4 * p, p == 0)
        a("s_mov_b32 exec_lo, 0x000f000f")
        a("s_mov_b32 exec_hi, 0x000f000f")
        a("s_nop 5")
        a("v_cvt_pk_bf16_f32 v8, v%d, v%d" % (AC, AC + 1))
        a("v_cvt_pk_bf16_f32 v10, v%d, v%d" % (AC + 2, AC + 3))
        a("buffer_store_dwordx4 v[8:11], v27, s[48:51], s57 offen")
        a("buffer_store_dwordx4 v[8:11], v27, s[48:51], s56 offen sc1")
        a("s_mov_b64 exec, -1")
        self.stamp(10)
        a("s_setpc_b64 s[64:65]")

    def s_next(self):
        a = self.a
        a("s_cmp_eq_u32 s66, 3")
        a("s_cbranch_scc1 L_STAGE2")
        a("s_cmp_eq_u32 s66, 1")
        a("s_cbranch_scc1 L_FFN")
        self.finish()

    def s0_late(self):
        a, c = self.a, self.c
        a.label("L_S0_TAG")
        a.label("L_S0_GATHER")
        self.wait_flag("v2", F_TAG, 1, "v24", sleep=2)
        a("s_mov_b32 s68, s14")
        a("s_lshl_b32 s56, s10, 11")
        a("s_add_u32 s56, s56, %d" % WS_Q)
        a("v_lshlrev_b32 v7, 3, v0")
        a("v_xor_b32 v7, s70, v7")
        a("v_add_u32 v7, %d, v7" % QS)
        self.wait_flag("v2", F_KD, 4, "v24", sleep=1)
        a("s_add_u32 s57, s56, %d" % (WS_QF - WS_Q))
        a("s_mov_b32 s13, 1")
        a.label("L_QPOLL")
        a("s_and_b32 s14, s13, %d" % (c.fast_n - 1))
        a("s_cselect_b32 s58, s57, s56")
        a("buffer_load_dwordx4 v[8:11], v4, s[48:51], s58 offen sc1")
        a("buffer_load_dwordx4 v[12:15], v4, s[48:51], s58 offen offset:1024 sc1")
        a("s_waitcnt vmcnt(0)")
        a("v_xor_b32 v9, s68, v9")
        a("v_xor_b32 v11, s68, v11")
        a("v_xor_b32 v13, s68, v13")
        a("v_xor_b32 v15, s68, v15")
        a("v_or3_b32 v9, v9, v11, v13")
        a("v_or_b32 v9, v9, v15")
        a("v_cmp_ne_u32 vcc, 0, v9")
        a("s_cbranch_vccz L_QOK")
        a("s_add_u32 s13, s13, 1")
        a("s_cmp_lt_u32 s13, %d" % c.poll_max)
        a("s_cbranch_scc1 L_QPOLL")
        a.label("L_QOK")
        a("v_mov_b32 v9, v10")
        a("v_mov_b32 v13, v14")
        a("ds_write_b64 v7, v[8:9]")
        a("ds_write_b64 v7, v[12:13] offset:%d" % QS_STR)
        self.signal("v2", F_Q, "v3")
        self.stamp(4)
        self.s_next()

    def s1_late(self):
        a, c = self.a, self.c
        a.label("L_S1_SM")
        a("v_lshrrev_b32 v6, 5, v0")
        a("v_mul_u32_u24 v6, %d, v6" % PS_STR)
        a("v_and_b32 v7, 31, v0")
        a("v_lshl_add_u32 v6, v7, 3, v6")
        a("v_add_u32 v6, %d, v6" % SCL)
        a("v_cmp_gt_u32 s[58:59], 32, v0")
        a("s_mov_b32 s61, %s" % f32(0.0625 * LOG2E))
        a("s_lshl_b32 s56, s8, 10")
        a("s_lshl_b32 s57, s7, 7")
        a("s_add_u32 s56, s56, s57")
        a("s_add_u32 s56, s56, %d" % WS_ST)
        a("v_mov_b32 v7, 0")
        a("s_waitcnt vmcnt(0)")
        self.wait_flag("v2", F_SC, 4, "v24", sleep=1)
        self.stamp(2)
        a("ds_read_b64 v[8:9], v6")
        a("s_waitcnt lgkmcnt(0)")
        a("v_lshlrev_b32 v12, 16, v8")
        a("v_and_b32 v13, 0xffff0000, v8")
        a("v_lshlrev_b32 v14, 16, v9")
        a("v_and_b32 v15, 0xffff0000, v9")
        a("v_max3_f32 v16, v12, v13, v14")
        a("v_max_f32 v16, v16, v15")

        def half_reduce(op, x):
            for ctl in ("row_shr:1", "row_shr:2", "row_shr:4", "row_shr:8"):
                a("s_nop 1")
                a("%s_dpp %s, %s, %s %s row_mask:0xf bank_mask:0xf" % (op, x, x, x, ctl))
            a("s_nop 1")
            a("%s_dpp %s, %s, %s row_bcast:15 row_mask:0xa bank_mask:0xf" % (op, x, x, x))
            a("s_nop 0")
        half_reduce("v_max_f32", "v16")
        a("v_readlane_b32 s64, v16, 31")
        a("v_readlane_b32 s65, v16, 63")
        a("s_nop 1")
        a("v_mov_b32 v20, s64")
        a("v_mov_b32 v22, s65")
        a("v_mul_f32 v20, s61, v20")
        a("v_mul_f32 v22, s61, v22")
        a("v_cndmask_b32 v17, v22, v20, s[58:59]")
        for k in range(4):
            a("v_fma_f32 v%d, v%d, s61, -v17" % (12 + k, 12 + k))
        for k in range(4):
            a("v_exp_f32 v%d, v%d" % (12 + k, 12 + k))
        a("s_nop 0")
        a("v_cvt_pk_bf16_f32 v8, v12, v13")
        a("v_cvt_pk_bf16_f32 v9, v14, v15")
        a("ds_write_b64 v6, v[8:9] offset:%d" % (PS - SCL))
        self.signal("v2", F_P, "v3")
        self.stamp(3)
        a("v_add_f32 v16, v12, v13")
        a("v_add_f32 v17, v14, v15")
        a("v_add_f32 v16, v16, v17")
        half_reduce("v_add_f32", "v16")
        a("v_readlane_b32 s64, v16, 31")
        a("v_readlane_b32 s65, v16, 63")
        a("s_nop 1")
        a("v_mov_b32 v21, s64")
        a("v_mov_b32 v23, s65")
        for k in range(4):
            a("v_min_u32 v%d, -2, v%d" % (20 + k, 20 + k))
        self.wait_flag("v2", F_CO, 1, "v24")
        a("s_mov_b64 exec, 1")
        a("s_cmp_eq_u32 s14, 2")
        a("s_cbranch_scc0 L_S1_SLOW")
        a("buffer_store_dwordx4 v[20:23], v7, s[48:51], s56 offen")
        a("s_branch L_S1_DONE")
        a.label("L_S1_SLOW")
        a("buffer_store_dwordx4 v[20:23], v7, s[48:51], s56 offen sc1")
        a.label("L_S1_DONE")
        a("s_mov_b64 exec, -1")
        self.stamp(4)
        self.s_next()

    def s2_late(self):
        a, c = self.a, self.c
        a.label("L_S2_FLAG")
        a("s_waitcnt vmcnt(0)")
        a.label("L_S2_FLAG2")
        a("s_lshl_b32 s56, s4, 12")
        a("s_add_u32 s56, s56, %d" % WS_FLAGS)
        a("s_lshl_b32 s57, s5, 7")
        a("s_add_u32 s57, s57, s56")
        a("s_lshl_b32 s58, s4, 8")
        a("s_add_u32 s58, s58, %d" % WS_FF)
        a("s_lshl_b32 s59, s5, 3")
        a("s_add_u32 s59, s59, s58")
        a("s_mov_b64 exec, 1")
        a("buffer_store_dwordx2 v[20:21], v19, s[48:51], s59 offen")
        a("buffer_store_dwordx2 v[20:21], v19, s[48:51], s57 offen sc1")
        a("s_mov_b64 exec, -1")
        self.stamp(1)
        a("v_and_b32 v16, 31, v0")
        a("v_lshlrev_b32 v17, 3, v16")
        a("v_lshlrev_b32 v16, 7, v16")
        self.wait_flag("v2", F_KD, 1, "v24", sleep=2)
        a("s_mov_b32 s13, 1")
        a.label("L_GPOLL")
        a("s_and_b32 s14, s13, %d" % (c.fast_n - 1))
        a("s_cbranch_scc0 L_GSLOW")
        a("buffer_load_dwordx2 v[12:13], v17, s[48:51], s58 offen sc1")
        a("s_branch L_GCHK")
        a.label("L_GSLOW")
        a("buffer_load_dwordx2 v[12:13], v16, s[48:51], s56 offen sc1")
        a.label("L_GCHK")
        a("s_waitcnt vmcnt(0)")
        a("v_cmp_ne_u32 vcc, s68, v12")
        a("s_cbranch_vccz L_GOK")
        a("s_sleep 2")
        a("s_add_u32 s13, s13, 1")
        a("s_cmp_lt_u32 s13, %d" % c.poll_max)
        a("s_cbranch_scc1 L_GPOLL")
        a.label("L_GOK")
        a("v_cmp_ne_u32 vcc, s69, v13")
        a("s_cmp_eq_u64 vcc, 0")
        a("s_cselect_b32 s14, %d, 1" % (2 if c.fast else 1))
        a("v_mov_b32 v21, s14")
        a("s_mov_b64 exec, 1")
        a("ds_write_b32 v2, v21 offset:%d" % F_CO)
        a("s_cmp_eq_u32 s5, 31")
        a("s_cbranch_scc0 L_S2_NOLEAD")
        a("s_lshl_b32 s58, s4, 7")
        a("s_add_u32 s58, s58, %d" % WS_GOK)
        a("buffer_store_dword v20, v19, s[48:51], s58 offen sc1")
        a.label("L_S2_NOLEAD")
        a("s_mov_b64 exec, -1")
        self.stamp(2)
        a("s_cmp_eq_u32 s66, 3")
        a("s_cbranch_scc1 L_STAGE2")
        a("s_cmp_eq_u32 s66, 2")
        a("s_cbranch_scc1 L_RED_END")
        a("v_and_b32 v16, 7, v0")
        a("v_lshlrev_b32 v16, 7, v16")
        a("s_mov_b32 s56, %d" % WS_GOK)
        self.wait_flag("v2", F_P, 1, "v24", sleep=2)
        a("s_mov_b32 s13, 0")
        a.label("L_APOLL")
        a("buffer_load_dword v12, v16, s[48:51], s56 offen sc1")
        a("s_waitcnt vmcnt(0)")
        a("v_cmp_ne_u32 vcc, s68, v12")
        a("s_cbranch_vccz L_AOK")
        a("s_sleep 4")
        a("s_add_u32 s13, s13, 1")
        a("s_cmp_lt_u32 s13, %d" % c.poll_max)
        a("s_cbranch_scc1 L_APOLL")
        a.label("L_AOK")
        a("s_cmp_eq_u32 s66, 1")
        a("s_cbranch_scc1 L_FFN")
        a("s_branch L_RED")

        a.label("L_S3_PF")
        if c.ffn_pf:
            a("s_sub_u32 s58, s5, 21")
            a("s_cmp_lt_u32 s5, 8")
            a("s_cselect_b32 s58, s5, s58")
            a("v_lshrrev_b32 v6, 2, v0")
            a("v_mul_u32_u24 v6, 3584, v6")
            a("v_and_b32 v7, 3, v0")
            a("v_lshl_add_u32 v6, v7, 7, v6")
            a("s_mul_i32 s56, s4, 448")
            a("s_and_b32 s56, s56, 0xffffff80")
            a("v_lshlrev_b32 v7, 7, v0")
            self.srd(40, 28, None, 448 * 3584)
            self.srd(44, 30, None, 448 * 3584)
            a("s_mul_i32 s57, s58, %d" % (c.pf_rows * 3584))
            a("s_add_u32 s56, s56, s57")
            a("s_add_u32 s56, s56, %d" % ((448 - 11 * c.pf_rows) * 3584))
            a("s_mul_i32 s57, s4, %d" % (224 * 896))
            self.srd(52, 32, "s57", 224 * 896)
            a("s_mul_i32 s57, s58, %d" % (3 * 8192))
            self.wait_flag("v2", F_VD, 4, "v24", sleep=1)
            for k in range(c.pf_rows // 16):
                a("buffer_load_dword v%d, v6, s[40:43], s56 offen %s" % (12 + 2 * k, c.pol_pf))
                a("buffer_load_dword v%d, v6, s[44:47], s56 offen %s" % (13 + 2 * k, c.pol_pf))
                a("s_add_u32 s56, s56, %d" % (16 * 3584))
            for k in range(3):
                a("buffer_load_dword v%d, v7, s[52:55], s57 offen %s" % (24 + k, c.pol_pf))
                a("s_add_u32 s57, s57, 8192")
            if c.diag:
                a("s_waitcnt vmcnt(0)")
            self.stamp(1)
        self.finish()
        a.label("L_S3_FFN")
        a("v_lshl_add_u32 v24, v18, 3, v16")
        a("v_mul_u32_u24 v24, 896, v24")
        a("v_add_u32 v24, v24, v17")
        a("v_add_u32 v25, %d, v24" % (16 * 896))
        a("v_add_u32 v26, %d, v24" % (4 * 896))
        a("v_add_u32 v27, %d, v24" % (20 * 896))
        a("v_lshrrev_b32 v22, 2, v0")
        a("v_mul_u32_u24 v20, 3584, v22")
        a("v_and_b32 v23, 3, v0")
        a("v_xor_b32 v23, v23, v18")
        a("v_lshl_add_u32 v20, v23, 4, v20")
        a("v_xor_b32 v21, 32, v20")
        a("s_lshl_b32 s56, s62, 6")
        self.srd(40, 28, "s56", 447 * 3584 + 64)
        self.srd(44, 30, "s56", 447 * 3584 + 64)
        a("s_mul_i32 s56, s62, %d" % (32 * 896))
        self.srd(52, 32, "s56", 32 * 896)
        a("s_mov_b32 m0, %d" % GT)
        a("s_movk_i32 s15, 0")
        gu = [("v20", 40, 28672), ("v21", 44, 1024 - 28672)]
        if c.ffn_n1:
            self.tile_loop(gu, None, c.ffn_n1, 16 * 3584, c.pol_ffn, c.ffn_thr)
        self.stamp(2)
        self.wait_flag("v2", F_VD, 4, "v28", sleep=1)
        self.tile_loop(gu, None, 28 - c.ffn_n1, 16 * 3584, c.pol_ffn, 48)
        a("s_mov_b32 m0, %d" % DT)
        a("s_movk_i32 s15, 0")
        self.tile_loop([("v%d" % (24 + k), 52, 1024) for k in range(4)], 52, 7, 128, c.pol_ffn, 48)
        a("s_waitcnt vmcnt(0)")
        self.stamp(1)
        a("s_branch L_FFN")

    def stage2(self):
        a, c = self.a, self.c
        WF, AF, AC, W = 48, 112, 128, 28
        a.label("L_STAGE2")
        a("s_lshr_b32 s70, s11, 1")
        a("s_and_b32 s71, s11, 1")
        a("s_lshl_b32 s71, s71, 1")
        a("s_sub_u32 s64, s5, 8")
        a("s_and_b32 s65, s64, 1")
        a("s_lshr_b32 s64, s64, 1")
        a("s_lshl_b32 s12, s70, 14")
        a("s_add_u32 s12, s12, %d" % BIG)
        self.tr_addrs(12, "s12", "v24", "v25", "v26")
        a("v_and_b32 v24, 7, v0")
        a("v_lshrrev_b32 v25, 4, v0")
        a("v_bfe_u32 v26, v0, 3, 1")
        a("v_and_b32 v17, 15, v0")
        a("v_lshlrev_b32 v17, 7, v17")
        a("v_lshlrev_b32 v18, 4, v24")
        a("v_lshl_add_u32 v18, v26, 12, v18")
        a("v_lshrrev_b32 v27, 5, v0")
        a("v_mul_u32_u24 v27, %d, v27" % (14 * 4096))
        a("v_add_u32 v18, v18, v27")
        a("v_mov_b32 v26, %d" % OOB)
        a("v_and_b32 v27, 1, v25")
        a("v_cmp_eq_u32 vcc, 0, v27")
        a("v_lshlrev_b32 v19, 4, v25")
        a("s_add_u32 s56, s9, s71")
        a("s_lshl_b32 s57, s56, 10")
        a("v_cndmask_b32 v18, v26, v18, vcc")
        a("s_lshl_b32 s14, s65, 3")
        a("s_add_u32 s57, s57, s14")
        a("s_add_u32 s57, s57, %d" % WS_ST)
        a("s_lshl_b32 s14, s65, 1")
        a("s_add_u32 s14, s14, s70")
        a("s_lshl_b32 s56, s56, 1")
        a("s_add_u32 s56, s56, s14")
        a("s_lshl_b32 s56, s56, 12")
        a("s_add_u32 s56, s56, %d" % WS_O)
        a("s_add_u32 s14, s14, s9")
        a("s_lshl_b32 s14, s14, 7")
        a("s_mul_i32 s60, s71, 14")
        a("s_lshl_b32 s61, s64, 1")
        a("s_add_u32 s60, s60, s61")
        a("s_lshl_b32 s60, s60, 12")
        a("s_add_u32 s60, s60, s14")
        a("s_add_u32 s60, s60, %d" % WS_A)
        self.wait_flag("v2", F_WO, 1, "v24", sleep=1)
        for s in range(4):
            self.tile_reads(WF + 16 * s, 12, s * 4096)
            a("s_waitcnt lgkmcnt(0)")
        self.wait_flag("v2", F_CO, 1, "v24", sleep=1)
        self.wait_flag("v2", F_P, 1, "v24", sleep=1)
        for s in range(4):
            a("buffer_load_dwordx4 v[%d:%d], v4, s[48:51], s56 offen offset:%d sc1" % (AF + 4 * s, AF + 4 * s + 3, s * 1024))
        a("s_mov_b32 s13, 0")
        a.label("L_STPOLL")
        a("buffer_load_dwordx2 v[20:21], v17, s[48:51], s57 offen sc1")
        a("s_waitcnt vmcnt(0)")
        a("v_max_u32 v22, v20, v21")
        a("v_cmp_eq_u32 vcc, -1, v22")
        a("s_cbranch_vccz L_STOK")
        a("s_sleep 1")
        a("s_add_u32 s13, s13, 1")
        a("s_cmp_lt_u32 s13, %d" % c.poll_max)
        a("s_cbranch_scc1 L_STPOLL")
        a.label("L_STOK")
        a("v_mov_b32 v22, v20")
        for ctl in ("quad_perm:[1,0,3,2]", "quad_perm:[2,3,0,1]", "row_half_mirror"):
            a("s_nop 1")
            a("v_max_f32_dpp v22, v22, v22 %s row_mask:0xf bank_mask:0xf" % ctl)
        a("v_sub_f32 v20, v20, v22")
        a("v_exp_f32 v20, v20")
        a("s_nop 0")
        a("v_mul_f32 v22, v20, v21")
        for ctl in ("quad_perm:[1,0,3,2]", "quad_perm:[2,3,0,1]", "row_half_mirror"):
            a("s_nop 1")
            a("v_add_f32_dpp v22, v22, v22 %s row_mask:0xf bank_mask:0xf" % ctl)
        a("v_rcp_f32 v22, v22")
        a("s_nop 0")
        a("v_mul_f32 v20, v20, v22")
        for r in range(4):
            a("ds_bpermute_b32 v%d, v19, v20 offset:%d" % (W + r, 4 * r))
        a("s_waitcnt lgkmcnt(0)")
        self.stamp(5)
        self.wait_flag("v2", F_VD, 1, "v24")
        a("s_mov_b32 s13, 0")
        a.label("L_OPOLL")
        for s in range(4):
            a("buffer_load_dwordx4 v[%d:%d], v4, s[48:51], s56 offen offset:%d sc1" % (AF + 4 * s, AF + 4 * s + 3, s * 1024))
        for s in range(4):
            a("s_waitcnt vmcnt(%d)" % (3 - s))
            r = AF + 4 * s
            if s == 0:
                a("v_max3_u32 v24, v%d, v%d, v%d" % (r, r + 1, r + 2))
                a("v_max_u32 v24, v24, v%d" % (r + 3))
            else:
                a("v_max3_u32 v24, v24, v%d, v%d" % (r, r + 1))
                a("v_max3_u32 v24, v24, v%d, v%d" % (r + 2, r + 3))
        a("v_cmp_eq_u32 vcc, -1, v24")
        a("s_cbranch_vccz L_OOK")
        a("s_add_u32 s13, s13, 1")
        a("s_cmp_lt_u32 s13, %d" % c.poll_max)
        a("s_cbranch_scc1 L_OPOLL")
        a.label("L_OOK")
        self.stamp(6)

        def epi(n):
            r = AC + 4 * n
            return ["v_pk_mul_f32 v[%d:%d], v[%d:%d], v[%d:%d]" % (r, r + 1, r, r + 1, W, W + 1),
                    "v_pk_fma_f32 v[%d:%d], v[%d:%d], v[%d:%d], v[%d:%d]" % (r, r + 1, r + 2, r + 3, W + 2, W + 3, r, r + 1),
                    "v_add_f32 v%d, v%d, v%d" % (24 + n, r, r + 1)]
        fill = epi(0) + epi(1)
        k = 0
        for n in range(4):
            for s in range(4):
                self.mfma(AC + 4 * n, AF + 4 * s, WF + 16 * s + 4 * n, s == 0)
                if 4 * n + s >= 11:
                    a(fill[k]); k += 1
        a(fill[5])
        for ins in epi(2):
            a(ins)
        a("v_permlane16_swap_b32 v24, v25")
        a("v_add_f32 v24, v24, v25")
        a("s_nop 0")
        for ins in epi(3):
            a(ins)
        a("v_min_u32 v24, -2, v24")
        a("v_mov_b32 v25, v24")
        a("v_permlane16_swap_b32 v26, v27")
        a("v_add_f32 v26, v26, v27")
        a("v_permlane16_swap_b32 v24, v25")
        a("v_min_u32 v26, -2, v26")
        a("v_mov_b32 v27, v26")
        a("s_nop 1")
        a("v_permlane16_swap_b32 v26, v27")
        a("buffer_store_dwordx4 v[24:27], v18, s[48:51], s60 offen sc1")
        self.stamp(7)
        self.finish()

    def reducer(self):
        a, c = self.a, self.c
        L, T = 32, 64
        a.label("L_RED")
        a("s_cmp_ge_u32 s2, 56")
        a("s_cbranch_scc1 L_RED_END")
        a("s_mul_i32 s64, s2, 4682")
        a("s_lshr_b32 s64, s64, 16")
        a("s_mul_i32 s65, s64, 14")
        a("s_sub_u32 s65, s2, s65")
        a("v_lshrrev_b32 v16, 4, v0")
        a("v_and_b32 v17, 7, v0")
        a("v_lshlrev_b32 v18, 5, v16")
        a("v_lshl_add_u32 v18, v17, 1, v18")
        a("s_mul_i32 s69, s64, 896")
        a("s_lshr_b32 s14, s65, 1")
        a("s_lshl_b32 s14, s14, 7")
        a("s_add_u32 s69, s69, s14")
        a("s_and_b32 s14, s65, 1")
        a("s_lshl_b32 s14, s14, 4")
        a("s_add_u32 s69, s69, s14")
        a("buffer_load_ushort v19, v18, s[52:55], s69 offen")
        a("v_mov_b32 v20, %d" % OOB)
        a("v_bfe_u32 v21, v0, 3, 1")
        a("v_cmp_eq_u32 vcc, 0, v21")
        a("v_mul_u32_u24 v21, %d, v21" % HREP_STRIDE)
        a("v_lshl_add_u32 v21, v16, 4, v21")
        a("v_cndmask_b32 v18, v20, v18, vcc")
        a("v_cmp_eq_u32 vcc, 0, v17")
        a("s_lshl_b32 s70, s2, 7")
        a("s_add_u32 s70, s70, %d" % WS_H)
        a("v_cndmask_b32 v21, v20, v21, vcc")
        self.srd(44, 34, None, 3584)
        a("s_cmp_eq_u32 s2, 0")
        a("s_cbranch_scc0 L_RED_NOEP")
        a("v_mov_b32 v6, 0")
        a("v_mov_b32 v7, s68")
        a("s_mov_b64 exec, 1")
        a("buffer_store_dword v7, v6, s[48:51], 0 offen sc1")
        a("s_mov_b64 exec, -1")
        a.label("L_RED_NOEP")
        a("s_lshl_b32 s56, s2, 12")
        a("s_add_u32 s56, s56, %d" % WS_A)
        a("s_mul_i32 s58, s2, %d" % (NF * 128))
        a("s_add_u32 s58, s58, %d" % WS_C)
        a("s_add_u32 s59, s58, 4096")
        a("s_waitcnt vmcnt(0)")
        a("v_lshlrev_b32 v19, 16, v19")
        self.stamp(5)
        self.wait_flag("v2", F_VD, 4, "v24", sleep=1)
        self.stamp(6)
        self.inbox_reduce(4, "v4", ("s56", "s56"), L, T, "v22")
        a("v_cvt_pk_bf16_f32 v22, v22, v22")
        a("v_lshlrev_b32 v22, 16, v22")
        a("v_add_f32 v22, v19, v22")
        a("s_nop 1")
        a("v_mov_b32_dpp v23, v22 quad_perm:[1,0,3,2] row_mask:0xf bank_mask:0xf")
        a("v_cvt_pk_bf16_f32 v24, v22, v23")
        a("v_min_u32 v24, -2, v24")
        a("s_nop 1")
        a("v_mov_b32_dpp v25, v24 row_shl:2 row_mask:0xf bank_mask:0xf")
        a("v_mov_b32_dpp v26, v24 row_shl:4 row_mask:0xf bank_mask:0xf")
        a("v_mov_b32_dpp v27, v24 row_shl:6 row_mask:0xf bank_mask:0xf")
        for k in range(c.hrep // 2):
            a("buffer_store_dwordx4 v[24:27], v21, s[48:51], s70 offen sc1")
            if k + 1 < c.hrep // 2:
                a("s_add_u32 s70, s70, %d" % (2 * HREP_STRIDE))
        a("v_lshlrev_b32 v28, 16, v24")
        self.stamp(7)
        self.inbox_reduce(7, "v4", ("s58", "s59"), L, T, "v22")
        a("v_cvt_pk_bf16_f32 v22, v22, v22")
        a("v_lshlrev_b32 v22, 16, v22")
        a("v_add_f32 v22, v28, v22")
        a("v_cvt_pk_bf16_f32 v22, v22, v22")
        a("buffer_store_short v22, v18, s[44:47], s69 offen")
        self.stamp(8)
        a.label("L_RED_END")
        self.finish()

    def ffn(self):
        a, c = self.a, self.c
        GF, DF, HF = 48, 104, 136
        a.label("L_FFN")
        a("v_lshrrev_b32 v22, 4, v0")
        a("v_bfe_u32 v23, v0, 2, 2")
        a("v_lshl_add_u32 v24, v22, 3, v23")
        a("v_lshlrev_b32 v20, 6, v24")
        a("v_and_b32 v24, 1, v0")
        a("v_lshl_add_u32 v20, v24, 3, v20")
        a("v_and_b32 v24, 1, v22")
        a("v_and_b32 v25, 2, v0")
        a("v_xor_b32 v24, v24, v25")
        a("v_xor_b32 v24, s11, v24")
        a("v_lshl_add_u32 v20, v24, 4, v20")
        a("v_mul_u32_u24 v25, %d, v25" % (28672 // 2))
        a("v_add_u32 v20, v20, v25")
        a("v_add_u32 v20, %d, v20" % GT)
        a("s_lshl_b32 s14, s11, 13")
        a("s_add_u32 s12, s14, %d" % DT)
        self.tr_addrs(12, "s12", "v24", "v25", "v26")
        a("v_mul_u32_u24 v21, %d, v23" % XN_STR)
        a("v_lshl_add_u32 v21, v22, 4, v21")
        a("v_add_u32 v21, %d, v21" % XN)
        a("s_mul_i32 s14, s11, %d" % XN_STR)
        a("s_add_u32 s14, s14, %d" % XN)
        a("v_lshrrev_b32 v24, 3, v0")
        a("v_lshlrev_b32 v6, 7, v24")
        a("v_and_b32 v24, 3, v0")
        a("v_lshl_add_u32 v6, v24, 5, v6")
        a("v_bfe_u32 v25, v0, 2, 1")
        a("v_lshl_add_u32 v6, v25, 4, v6")
        a("v_add_u32 v6, s14, v6")
        a("v_lshrrev_b32 v25, 2, v0")
        a("v_lshlrev_b32 v25, 7, v25")
        a("v_lshl_add_u32 v25, v24, 4, v25")
        a("v_max_u32 v5, v5, v25")
        a("v_lshlrev_b32 v24, 6, v23")
        a("v_lshl_add_u32 v24, v22, 4, v24")
        a("v_add_u32 v24, %d, v24" % ACT)
        a("v_mov_b32 v25, %d" % ZERO)
        a("v_and_b32 v26, 3, v0")
        for n in range(4):
            a("v_cmp_eq_u32 vcc, %d, v26" % n)
            a("s_nop 1")
            a("v_cndmask_b32 v%d, v25, v24, vcc" % (16 + n))
        a("v_and_b32 v24, 15, v0")
        a("v_lshlrev_b32 v7, 6, v22")
        a("v_lshl_add_u32 v7, v24, 1, v7")
        a("s_lshl_b32 s14, s11, 4")
        a("s_add_u32 s14, s14, %d" % ACT)
        a("v_add_u32 v7, s14, v7")
        a("v_mov_b32 v25, %d" % DUMP)
        a("v_cmp_gt_u32 vcc, 8, v24")
        a("s_nop 1")
        a("v_cndmask_b32 v7, v25, v7, vcc")
        a("v_mul_u32_u24 v25, 14, v22")
        a("v_bfe_u32 v26, v0, 3, 1")
        a("v_add_u32 v25, v25, v26")
        a("v_mul_u32_u24 v25, %d, v25" % (NF * 128))
        a("v_and_b32 v26, 7, v0")
        a("v_lshl_add_u32 v23, v26, 4, v25")
        a("s_mul_i32 s69, s11, %d" % (4 * NF * 128))
        a("s_lshl_b32 s70, s62, 7")
        a("s_add_u32 s69, s69, s70")
        a("s_add_u32 s69, s69, %d" % WS_C)
        a("s_add_u32 s70, s69, %d" % (2 * NF * 128))
        a("s_cmp_eq_u32 s11, 3")
        a("s_cselect_b32 s70, %d, s70" % OOB)
        a("s_and_b32 s60, s4, %d" % (c.hrep - 1))
        a("s_mul_i32 s60, s60, %d" % HREP_STRIDE)
        a("s_lshl_b32 s14, s67, 1")
        a("s_add_u32 s60, s60, s14")
        a("s_add_u32 s60, s60, %d" % WS_H)
        a("s_mov_b32 s61, %s" % f32(-LOG2E))
        a("s_waitcnt vmcnt(0)")
        a("s_barrier")
        self.stamp(8)
        for s in range(14):
            for hh in range(2):
                r = GF + 4 * s + 2 * hh
                a("ds_read_b64_tr_b16 v[%d:%d], v20 offset:%d" % (r, r + 1, s * 2048 + hh * 256))
            if s % 4 == 3:
                a("s_waitcnt lgkmcnt(0)")
        a("s_waitcnt lgkmcnt(0)")
        self.tile_reads(DF, 12, 0)
        a("s_waitcnt lgkmcnt(0)")
        self.tile_reads(DF + 16, 12, 4096)
        a("s_waitcnt lgkmcnt(0)")
        a("s_mov_b32 s13, 0")
        a.label("L_HPOLL")
        a("buffer_load_dwordx4 v[8:11], v5, s[48:51], s60 offen sc1")
        a("s_waitcnt vmcnt(0)")
        a("v_max3_u32 v24, v8, v9, v10")
        a("v_max_u32 v24, v24, v11")
        a("v_cmp_eq_u32 vcc, -1, v24")
        a("s_cbranch_vccz L_HOK")
        a("s_add_u32 s13, s13, 1")
        a("s_cmp_lt_u32 s13, %d" % c.poll_max)
        a("s_cbranch_scc1 L_HPOLL")
        a.label("L_HOK")
        self.stamp(9)
        self.layernorm(8, 24, 32)
        a("s_mov_b32 exec_hi, 0x00ffffff")
        a("ds_write_b128 v6, v[8:11]")
        a("s_mov_b64 exec, -1")
        a("s_waitcnt lgkmcnt(0)")
        a("s_barrier")
        AC = 24
        for s in range(7):
            a("ds_read_b128 v[%d:%d], v21 offset:%d" % (HF + 4 * s, HF + 4 * s + 3, s * 64))
        for s in range(14):
            a("s_waitcnt lgkmcnt(%d)" % (6 if s < 7 else 13 - s))
            self.mfma(AC, HF + 4 * (s % 7), GF + 4 * s, s == 0)
            if s < 7:
                a("ds_read_b128 v[%d:%d], v21 offset:%d" % (HF + 4 * s, HF + 4 * s + 3, (s + 7) * 64))
        a("s_nop 7")
        a("v_cvt_pk_bf16_f32 v28, v24, v24")
        a("v_lshlrev_b32 v28, 16, v28")
        a("v_mul_f32 v29, s61, v28")
        a("v_exp_f32 v29, v29")
        a("v_mov_b32_dpp v30, v28 row_ror:8 row_mask:0xf bank_mask:0xf")
        a("v_add_f32 v29, 1.0, v29")
        a("v_rcp_f32 v29, v29")
        a("s_nop 0")
        a("v_mul_f32 v29, v28, v29")
        a("v_cvt_pk_bf16_f32 v29, v29, v29")
        a("v_lshlrev_b32 v29, 16, v29")
        a("v_mul_f32 v29, v29, v30")
        a("v_cvt_pk_bf16_f32 v29, v29, v29")
        a("ds_write_b16 v7, v29")
        a("s_waitcnt lgkmcnt(0)")
        a("s_barrier")
        for n in range(4):
            a("ds_read_b128 v[%d:%d], v%d" % (HF + 4 * n, HF + 4 * n + 3, 16 + n))
        for pp in range(2):
            for n in range(4):
                if pp == 0:
                    a("s_waitcnt lgkmcnt(%d)" % (3 - n))
                self.mfma(24 + 4 * pp, HF + 4 * n, DF + 16 * pp + 4 * n, n == 0)
        a("s_nop 3")
        for k in range(4):
            a("v_min_u32 v%d, -2, v%d" % (24 + k, 24 + k))
        a("buffer_store_dwordx4 v[24:27], v23, s[48:51], s69 offen sc1")
        for k in range(4):
            a("v_min_u32 v%d, -2, v%d" % (28 + k, 28 + k))
        a("buffer_store_dwordx4 v[28:31], v23, s[48:51], s70 offen sc1")
        self.stamp(10)
        self.finish()


HEADER = """; Fused pre-LN decode block: sliding-window GQA attention + SwiGLU FFN in one launch (generated by gen_kernel.py).
"""


def generate(cfg):
    body = Gen(cfg).build()
    return f"""{HEADER}; @launch grid=(256,1,1) block=(512,1,1) lds={LDS_TOTAL}
.amdgcn_target "amdgcn-amd-amdhsa--gfx950"
.text
.globl {NAME}
.p2align {cfg.align}
.type {NAME},@function
{NAME}:
{body}
.section .rodata,"a"
.p2align 6
.amdhsa_kernel {NAME}
  .amdhsa_next_free_vgpr 192
  .amdhsa_next_free_sgpr 96
  .amdhsa_accum_offset 192
  .amdhsa_group_segment_fixed_size 0
  .amdhsa_kernarg_size 96
  .amdhsa_user_sgpr_count 2
  .amdhsa_user_sgpr_kernarg_segment_ptr 1
  .amdhsa_system_sgpr_workgroup_id_x 1
  .amdhsa_float_denorm_mode_32 3
.end_amdhsa_kernel
"""


if __name__ == "__main__":
    cfg = Cfg()
    out = sys.argv[1]
    for kv in sys.argv[2:]:
        k, v = kv.split("=")
        cur = getattr(cfg, k)
        setattr(cfg, k, (v == "1") if isinstance(cur, bool) else type(cur)(v))
    open(out, "w").write(generate(cfg))
```

```python
import sys
from asmgen import Asm, NAME

WS_EPOCH = 0x0
WS_GOK = 0x1000
WS_Q = 0x2000
WS_FF = 0x1800
WS_QF = 0x1A0000
WS_O = 0x20000
WS_H = 0x60000
WS_FLAGS = 0x70000
WS_ST = 0x78000
WS_A = 0x80000
WS_C = 0x100000
WS_TS = 0x1C0000
WS_SIZE = 0x200000
NF = 56
HREP_STRIDE = 8192
OOB = 0x40000000

RING = 0
BIG = 65536
GT = BIG
UT = BIG + 28672
DT = BIG + 57344
SH = 151552
XN = SH
XN_STR = 960
QS = SH + 3840
QS_STR = 576
SCL = SH + 4992
PS = SH + 5632
PS_STR = 320
ACT = SH + 6272
DUMP = SH + 6528
ZERO = SH + 6592
FL = SH + 6848
LDS_TOTAL = SH + 6912
F_TAG, F_XN, F_Q, F_SC, F_P, F_VD, F_KD, F_CO, F_WO, F_WQ, F_VI = 0, 4, 8, 12, 16, 20, 24, 28, 32, 36, 40

LOG2E = 1.4426950408889634
NWAVES = 8


def f32(x):
    import struct
    return "0x%08x" % struct.unpack("<I", struct.pack("<f", x))[0]


class Cfg:
    diag = False
    pol_kv = "nt"
    pol_wq = "nt"
    pol_wo = "nt"
    pol_ffn = "nt"
    pol_pf = ""
    tkv = 4
    thi = 8
    tkv2 = 6
    ramp_at = 16
    fast_n = 8
    decor = True
    kd_at = 5
    wo_thr = 6
    hrep = 2
    poll_max = 1 << 20
    ffn_n1 = 0
    ffn_thr = 4
    fast = True
    code_pf = True
    wq_pf = True
    wq_pf_n = 0
    ffn_pf = True
    pf_rows = 32
    align = 12
    gok_wait = True


class Gen:
    def __init__(self, cfg):
        self.c = cfg
        self.a = Asm()
        self.uid = 0

    def lbl(self, base):
        self.uid += 1
        return "L_%s_%d" % (base, self.uid)

    def stamp(self, k):
        if self.c.diag:
            a = self.a
            a("s_memrealtime s[%d:%d]" % (72 + 2 * k, 73 + 2 * k))
            a("s_waitcnt lgkmcnt(0)")

    def stamps_init(self):
        if self.c.diag:
            for k in range(12):
                self.a("s_mov_b32 s%d, 0" % (72 + 2 * k))

    def finish(self):
        a = self.a
        if self.c.diag:
            a("s_branch L_DIAG_END")
        else:
            a("s_endpgm")

    def srd(self, d, ptr, off_sreg, nrec):
        a = self.a
        if off_sreg is None:
            a("s_mov_b32 s%d, s%d" % (d, ptr))
            a("s_mov_b32 s%d, s%d" % (d + 1, ptr + 1))
        else:
            a("s_add_u32 s%d, s%d, %s" % (d, ptr, off_sreg))
            a("s_addc_u32 s%d, s%d, 0" % (d + 1, ptr + 1))
        a("s_mov_b32 s%d, %d" % (d + 2, nrec))
        a("s_mov_b32 s%d, 0x20000" % (d + 3))

    def dma(self, voff, srd, soff, m0, pol):
        a = self.a
        if isinstance(m0, tuple):
            a("s_add_u32 m0, %s, %d" % m0)
        else:
            a("s_mov_b32 m0, %d" % m0)
        if isinstance(soff, tuple):
            a("s_add_u32 s15, %s, %d" % soff)
        else:
            a("s_mov_b32 s15, %d" % soff)
        a("buffer_load_dwordx4 %s, s[%d:%d], s15 offen%s lds" % (voff, srd, srd + 3, (" " + pol) if pol else ""))

    def wait_flag(self, vfl, off, n, vt, sleep=0):
        a = self.a
        l = self.lbl("wf")
        a.label(l)
        if sleep:
            a("s_sleep %d" % sleep)
        a("ds_read_b32 %s, %s offset:%d" % (vt, vfl, off))
        a("s_waitcnt lgkmcnt(0)")
        a("v_readfirstlane_b32 s14, %s" % vt)
        a("s_cmp_ge_u32 s14, %d" % n)
        a("s_cbranch_scc0 %s" % l)

    def signal(self, vfl, off, vone):
        a = self.a
        a("s_mov_b64 exec, 1")
        a("ds_add_u32 %s, %s offset:%d" % (vfl, vone, off))
        a("s_mov_b64 exec, -1")

    def tr_addrs(self, dst, base_sreg_or_int, t0, t1, t2):
        a = self.a
        a("v_lshrrev_b32 %s, 2, v0" % t0)
        a("v_bfe_u32 %s, v0, 3, 2" % t1)
        a("v_and_b32 %s, 3, v0" % t2)
        a("v_lshlrev_b32 %s, 7, %s" % (t0, t0))
        a("v_lshl_add_u32 %s, %s, 3, %s" % (t0, t2, t0))
        a("v_add_u32 %s, %s, %s" % (t0, base_sreg_or_int, t0))
        for n in range(4):
            a("v_xor_b32 %s, %d, %s" % (t2, n, t1))
            a("v_lshl_add_u32 v%d, %s, 5, %s" % (dst + n, t2, t0))

    def tile_reads(self, dst, addr0, off):
        a = self.a
        for n in range(4):
            for hh in range(2):
                r = dst + 4 * n + 2 * hh
                a("ds_read_b64_tr_b16 v[%d:%d], v%d offset:%d" % (r, r + 1, addr0 + n, off + hh * 2048))

    def mfma(self, d, A, B, first):
        self.a("v_mfma_f32_16x16x32_bf16 v[%d:%d], v[%d:%d], v[%d:%d], %s" % (
            d, d + 3, A, A + 3, B, B + 3, "0" if first else "v[%d:%d]" % (d, d + 3)))

    def wave_reduce2(self, op, x, y):
        a = self.a
        for ctl in ("row_shr:1", "row_shr:2", "row_shr:4", "row_shr:8"):
            a("s_nop 0")
            for r in (x, y):
                a("%s_dpp %s, %s, %s %s row_mask:0xf bank_mask:0xf" % (op, r, r, r, ctl))
        for ctl in ("row_bcast:15 row_mask:0xa", "row_bcast:31 row_mask:0xc"):
            a("s_nop 0")
            for r in (x, y):
                a("%s_dpp %s, %s, %s %s bank_mask:0xf" % (op, r, r, r, ctl))

    def wave_reduce1(self, op, x):
        a = self.a
        for ctl in ("row_shr:1", "row_shr:2", "row_shr:4", "row_shr:8"):
            a("s_nop 1")
            a("%s_dpp %s, %s, %s %s row_mask:0xf bank_mask:0xf" % (op, x, x, x, ctl))
        for ctl in ("row_bcast:15 row_mask:0xa", "row_bcast:31 row_mask:0xc"):
            a("s_nop 1")
            a("%s_dpp %s, %s, %s %s bank_mask:0xf" % (op, x, x, x, ctl))

    def layernorm(self, src, f, t):
        a = self.a
        for k in range(4):
            a("v_lshlrev_b32 v%d, 16, v%d" % (f + 2 * k, src + k))
            a("v_and_b32 v%d, 0xffff0000, v%d" % (f + 2 * k + 1, src + k))
        a("v_readfirstlane_b32 s56, v%d" % f)
        a("v_mov_b32 v%d, 0" % (t + 8))
        a("v_mov_b32 v%d, 0" % (t + 9))
        a("s_mov_b32 exec_hi, 0x00ffffff")
        for k in range(4):
            a("v_pk_add_f32 v[%d:%d], v[%d:%d], s[56:57] op_sel_hi:[1,0] neg_lo:[0,1] neg_hi:[0,1]" % (
                t + 2 * k, t + 2 * k + 1, f + 2 * k, f + 2 * k + 1))
        a("v_pk_mul_f32 v[%d:%d], v[%d:%d], v[%d:%d]" % (t + 10, t + 11, t, t + 1, t, t + 1))
        for k in range(1, 4):
            a("v_pk_fma_f32 v[%d:%d], v[%d:%d], v[%d:%d], v[%d:%d]" % (
                t + 10, t + 11, t + 2 * k, t + 2 * k + 1, t + 2 * k, t + 2 * k + 1, t + 10, t + 11))
        a("v_pk_add_f32 v[%d:%d], v[%d:%d], v[%d:%d]" % (t, t + 1, t, t + 1, t + 2, t + 3))
        a("v_pk_add_f32 v[%d:%d], v[%d:%d], v[%d:%d]" % (t + 4, t + 5, t + 4, t + 5, t + 6, t + 7))
        a("v_pk_add_f32 v[%d:%d], v[%d:%d], v[%d:%d]" % (t, t + 1, t, t + 1, t + 4, t + 5))
        a("v_add_f32 v%d, v%d, v%d" % (t + 9, t + 10, t + 11))
        a("v_add_f32 v%d, v%d, v%d" % (t + 8, t, t + 1))
        a("s_mov_b64 exec, -1")
        S, Q = "v%d" % (t + 8), "v%d" % (t + 9)
        a("s_nop 0")
        self.wave_reduce2("v_add_f32", Q, S)
        a("s_nop 0")
        a("v_readlane_b32 s58, %s, 63" % Q)
        a("v_readlane_b32 s57, %s, 63" % S)
        a("v_mov_b32 v%d, %s" % (t + 2, f32(1.0 / 448)))
        a("v_mul_f32 v%d, s58, v%d" % (t + 1, t + 2))
        a("v_mul_f32 v%d, s57, v%d" % (t, t + 2))
        a("v_fma_f32 v%d, -v%d, v%d, v%d" % (t + 1, t, t, t + 1))
        a("v_add_f32 v%d, s56, v%d" % (t, t))
        a("v_max_f32 v%d, 0, v%d" % (t + 1, t + 1))
        a("v_cvt_pk_bf16_f32 v%d, v%d, v%d" % (t + 2, t, t + 1))
        a("v_and_b32 v%d, 0xffff0000, v%d" % (t + 1, t + 2))
        a("v_lshlrev_b32 v%d, 16, v%d" % (t, t + 2))
        a("v_add_f32 v%d, %s, v%d" % (t + 1, f32(1e-5), t + 1))
        a("v_cvt_pk_bf16_f32 v%d, v%d, v%d" % (t + 1, t + 1, t + 1))
        a("v_lshlrev_b32 v%d, 16, v%d" % (t + 1, t + 1))
        a("v_sqrt_f32 v%d, v%d" % (t + 1, t + 1))
        for k in range(4):
            a("v_pk_add_f32 v[%d:%d], v[%d:%d], v[%d:%d] op_sel_hi:[1,0] neg_lo:[0,1] neg_hi:[0,1]" % (
                f + 2 * k, f + 2 * k + 1, f + 2 * k, f + 2 * k + 1, t, t + 1))
        a("v_cvt_pk_bf16_f32 v%d, v%d, v%d" % (t + 2, t + 1, t + 1))
        a("v_lshlrev_b32 v%d, 16, v%d" % (t + 2, t + 2))
        a("v_rcp_f32 v%d, v%d" % (t + 2, t + 2))
        for k in range(4):
            a("v_cvt_pk_bf16_f32 v%d, v%d, v%d" % (src + k, f + 2 * k, f + 2 * k + 1))
        for k in range(4):
            a("v_lshlrev_b32 v%d, 16, v%d" % (f + 2 * k, src + k))
            a("v_and_b32 v%d, 0xffff0000, v%d" % (f + 2 * k + 1, src + k))
        for k in range(4):
            a("v_pk_mul_f32 v[%d:%d], v[%d:%d], v[%d:%d] op_sel_hi:[1,0]" % (
                f + 2 * k, f + 2 * k + 1, f + 2 * k, f + 2 * k + 1, t + 2, t + 3))
        for k in range(4):
            a("v_cvt_pk_bf16_f32 v%d, v%d, v%d" % (src + k, f + 2 * k, f + 2 * k + 1))

    def inbox_reduce(self, nl, voff, soff, L, T, out):
        a = self.a
        top, ok, chk = self.lbl("rp"), self.lbl("rok"), self.lbl("rchk")
        a("s_mov_b32 s13, 0")
        a.label(top)
        for i in range(nl):
            if i < 4:
                a("buffer_load_dwordx4 v[%d:%d], %s, s[48:51], %s offen offset:%d sc1" % (L + 4 * i, L + 4 * i + 3, voff, soff[0], i * 1024))
            else:
                a("buffer_load_dwordx4 v[%d:%d], %s, s[48:51], %s offen offset:%d sc1" % (L + 4 * i, L + 4 * i + 3, voff, soff[1], (i - 4) * 1024))

        def padd(d, x, y):
            for h in (0, 2):
                a("v_pk_add_f32 v[%d:%d], v[%d:%d], v[%d:%d]" % (d + h, d + h + 1, x + h, x + h + 1, y + h, y + h + 1))
        for k in range(nl // 2):
            a("s_waitcnt vmcnt(%d)" % (nl - 2 - 2 * k))
            padd(T + 4 * k, L + 8 * k, L + 8 * k + 4)
        padd(T, T, T + 4)
        if nl == 8:
            padd(T + 8, T + 8, T + 12)
            padd(T, T, T + 8)
        elif nl == 7:
            a("s_waitcnt vmcnt(0)")
            padd(T + 8, T + 8, L + 24)
            padd(T, T, T + 8)
        a("s_nop 1")
        a("v_permlane16_swap_b32 v%d, v%d" % (T, T + 1))
        a("v_permlane16_swap_b32 v%d, v%d" % (T + 2, T + 3))
        a("v_add_f32 v%d, v%d, v%d" % (T, T, T + 1))
        a("v_add_f32 v%d, v%d, v%d" % (T + 2, T + 2, T + 3))
        a("s_nop 1")
        a("v_permlane32_swap_b32 v%d, v%d" % (T, T + 2))
        a("v_add_f32 v%d, v%d, v%d" % (T, T, T + 2))
        a("s_nop 1")
        a("v_add_f32_dpp %s, v%d, v%d row_ror:8 row_mask:0xf bank_mask:0xf" % (out, T, T))
        a("v_cmp_u_f32 vcc, %s, %s" % (out, out))
        a("s_cbranch_vccz %s" % ok)
        a("s_add_u32 s13, s13, 1")
        a("s_and_b32 s14, s13, 15")
        a("s_cbranch_scc1 %s" % top)
        regs = [L + i for i in range(4 * nl)]
        a("v_max_u32 v%d, v%d, v%d" % (T + 4, regs[0], regs[1]))
        for i in range(2, 4 * nl, 2):
            a("v_max3_u32 v%d, v%d, v%d, v%d" % (T + 4, T + 4, regs[i], regs[i + 1]))
        a("v_cmp_eq_u32 vcc, -1, v%d" % (T + 4))
        a("s_cbranch_vccz %s" % ok)
        a("s_cmp_lt_u32 s13, %d" % self.c.poll_max)
        a("s_cbranch_scc1 %s" % top)
        a.label(ok)

    def ld(self, voff, srd, pol):
        self.a("buffer_load_dwordx4 %s, s[%d:%d], s15 offen%s lds" % (voff, srd, srd + 3, (" " + pol) if pol else ""))

    def tile_loop(self, voffs, srd, n, step, pol, thr):
        a = self.a
        top = self.lbl("tl")
        a("s_movk_i32 s13, %d" % n)
        a.label(top)
        for v in voffs:
            self.ld(v[0], v[1] if srd is None else srd, pol)
            a("s_addk_i32 m0, %d" % v[2])
            if thr:
                a("s_waitcnt vmcnt(%d)" % (thr - 1))
            else:
                a("s_nop 0")
        a("s_add_u32 s15, s15, %d" % step)
        a("s_sub_u32 s13, s13, 1")
        a("s_cmp_lg_u32 s13, 0")
        a("s_cbranch_scc1 %s" % top)

    def build(self):
        a, c = self.a, self.c
        a("s_cmp_ge_u32 s2, 256")
        a("s_cbranch_scc1 L_END")
        a("v_lshrrev_b32 v1, 6, v0")
        a("v_and_b32 v0, 63, v0")
        a("v_readfirstlane_b32 s3, v1")
        a("s_lshr_b32 s5, s2, 3")
        a("s_cmp_lg_u32 s3, 1")
        a("s_cbranch_scc1 L_NOINIT")
        a("v_min_u32 v6, 39, v0")
        a("v_lshlrev_b32 v6, 3, v6")
        a("v_add_u32 v6, %d, v6" % ZERO)
        a("v_mov_b32 v12, 0")
        a("v_mov_b32 v13, 0")
        a("ds_write_b64 v6, v[12:13]")
        if c.code_pf:
            a("s_getpc_b64 s[56:57]")
            a.label("L_PC")
            a("s_sub_u32 s56, s56, L_PC-%s" % NAME)
            a("s_subb_u32 s57, s57, 0")
            a("v_and_b32 v6, 3, v0")
            a("v_lshl_add_u32 v6, s5, 2, v6")
            a("v_lshlrev_b32 v6, 7, v6")
            a("v_min_u32 v6, L_END-%s, v6" % NAME)
            a("global_load_dword v47, v6, s[56:57]")
        a("s_waitcnt lgkmcnt(0)")
        a.label("L_NOINIT")
        a("s_load_dwordx16 s[16:31], s[0:1], 0")
        a("s_load_dwordx8 s[32:39], s[0:1], 64")
        self.stamps_init()
        if c.diag:
            a("s_memrealtime s[72:73]")
        a("s_barrier")
        a("s_and_b32 s4, s2, 7")
        a("s_lshr_b32 s6, s2, 6")
        a("s_and_b32 s7, s5, 7")
        a("s_lshl_b32 s10, s6, 3")
        a("s_add_u32 s10, s10, s4")
        a("s_lshl_b32 s9, s4, 2")
        a("s_add_u32 s8, s9, s6")
        a("s_and_b32 s11, s3, 3")
        a("s_mov_b32 s66, 2")
        a("s_cmp_lt_u32 s5, 29")
        a("s_cselect_b32 s66, 1, s66")
        a("s_cmp_lt_u32 s5, 22")
        a("s_cselect_b32 s66, 3, s66")
        a("s_cmp_lt_u32 s5, 8")
        a("s_cselect_b32 s66, 0, s66")
        a("s_lshr_b32 s70, s5, 2")
        a("s_add_u32 s70, s70, s4")
        a("s_and_b32 s70, s70, %d" % (3 if c.decor else 0))
        a("s_lshl_b32 s70, s70, 7")
        a("s_cmp_lt_u32 s3, 4")
        a("s_cbranch_scc1 L_SROLE")
        self.k_early()
        self.s_early()
        self.k_main()
        self.k_scores()
        self.s0_late()
        self.s1_late()
        self.s2_late()
        self.stage2()
        self.reducer()
        self.ffn()
        if c.diag:
            a.label("L_DIAG_END")
            a("s_memrealtime s[94:95]")
            a("s_waitcnt lgkmcnt(0)")
            a("s_mov_b64 exec, -1")
            for k in range(12):
                a("v_mov_b32 v%d, s%d" % (4 + k, 72 + 2 * k))
            a("s_mul_i32 s14, s2, 12")
            a("s_add_u32 s14, s14, s3")
            a("s_lshl_b32 s14, s14, 6")
            a("s_add_u32 s14, s14, %d" % WS_TS)
            a("v_mov_b32 v1, 0")
            a("s_mov_b64 exec, 1")
            for k in range(3):
                a("buffer_store_dwordx4 v[%d:%d], v1, s[48:51], s14 offen offset:%d" % (4 + 4 * k, 7 + 4 * k, 16 * k))
            a("s_waitcnt vmcnt(0)")
        a.label("L_END")
        a("s_endpgm")
        return a.text()

    def k_issue(self, i):
        a, c = self.a, self.c
        lo = c.tkv if i < c.ramp_at + c.tkv else c.tkv2
        if i >= lo and lo < c.thi:
            skip = self.lbl("thr")
            a("s_cbranch_vccz %s" % skip)
            a("s_waitcnt vmcnt(%d)" % (lo - 1))
            a.label(skip)
        if i & 15:
            a("s_addk_i32 m0, 1024")
        else:
            a("s_mov_b32 m0, s12")
        if i < 16:
            u, dseg, half = i >> 3, (i >> 1) & 3, i & 1
            a("s_xor_b32 s15, s62, %d" % (u * 8192 + dseg * 128))
            self.ld("v2" if half else "v1", 40, c.pol_kv)
        else:
            a("s_xor_b32 s15, s63, %d" % ((i - 16) * 4096))
            self.ld("v3", 44, c.pol_kv)

    def k_early(self):
        a, c = self.a, self.c
        T = c.tkv
        a("v_lshrrev_b32 v13, 3, v0")
        a("v_and_b32 v14, 7, v0")
        a("v_lshrrev_b32 v15, 1, v13")
        a("v_xor_b32 v1, v14, v15")
        a("v_lshlrev_b32 v1, 4, v1")
        a("v_lshl_add_u32 v1, v13, 9, v1")
        a("v_xor_b32 v2, 64, v1")
        a("v_add_u32 v2, 4096, v2")
        a("v_lshlrev_b32 v3, 1, v15")
        a("v_xor_b32 v3, v14, v3")
        a("v_lshlrev_b32 v3, 4, v3")
        a("v_lshl_add_u32 v3, v13, 9, v3")
        a("v_mov_b32 v13, %d" % FL)
        a("s_lshl_b32 s12, s11, 14")
        a("s_lshl_b32 s56, s10, 21")
        a("s_add_u32 s56, s56, 0x180000")
        a("s_lshl_b32 s57, s7, 16")
        a("s_add_u32 s56, s56, s57")
        a("s_lshl_b32 s63, s4, 1")
        a("s_add_u32 s63, s63, s5")
        a("s_and_b32 s63, s63, %d" % (15 if c.decor else 0))
        a("s_lshl_b32 s63, s63, 12")
        a("s_and_b32 s62, s63, 0x2000")
        a("s_or_b32 s62, s62, s70")
        a("s_and_b32 s57, s63, 0x1000")
        a("v_xor_b32 v1, s57, v1")
        a("v_xor_b32 v2, s57, v2")
        a("s_and_b32 s57, s63, 0xc000")
        a("s_xor_b32 s57, s57, s12")
        a("s_add_u32 s57, s56, s57")
        a("s_lshl_b32 s58, s11, 7")
        a("s_add_u32 s58, s58, s56")
        a("s_waitcnt lgkmcnt(0)")
        self.srd(40, 18, "s57", 16384)
        a("s_cmp_lg_u32 s66, 0")
        a("s_cbranch_scc1 L_K_GO")
        a("v_bfe_u32 v16, v0, 3, 2")
        a("v_lshrrev_b32 v17, 5, v0")
        a("v_lshl_add_u32 v16, v17, 3, v16")
        a("v_and_b32 v17, 0x70, v3")
        a("v_lshl_add_u32 v16, v16, 13, v17")
        a("s_lshl_b32 s56, s4, 10")
        a("s_lshl_b32 s57, s5, 7")
        a("s_add_u32 s56, s56, s57")
        self.srd(52, 22, "s56", 447 * 8192 + 128)
        a("s_lshl_b32 s14, s11, 10")
        a("s_add_u32 m0, s14, %d" % BIG)
        a("s_and_b32 s15, s11, 1")
        a("s_lshl_b32 s15, s15, 17")
        a("s_lshr_b32 s14, s11, 1")
        a("s_lshl_b32 s14, s14, 15")
        a("s_add_u32 s15, s15, s14")
        self.tile_loop([("v16", 52, 4096)], 52, 14, 32 * 8192, c.pol_wq, 0)
        a.label("L_K_GO")
        for i in range(T):
            self.k_issue(i)
        self.stamp(7)
        a("s_branch L_KMAIN")

    def k_main(self):
        a, c = self.a, self.c
        KF, VF, QF, SA = 16, 80, 144, 176
        PF, AC, PK = 16, 48, 56
        T = c.tkv
        a.label("L_KMAIN")
        self.srd(44, 20, "s58", 127 * 512 + 128)
        self.srd(48, 38, None, WS_SIZE)
        a("v_and_b32 v189, 15, v0")
        a("v_lshrrev_b32 v14, 4, v0")
        a("v_lshrrev_b32 v15, 1, v189")
        a("v_xor_b32 v4, v14, v15")
        a("v_lshlrev_b32 v4, 4, v4")
        a("v_lshl_add_u32 v4, v189, 7, v4")
        a("v_add_u32 v4, s12, v4")
        a("v_xor_b32 v5, 64, v4")
        a("v_and_b32 v15, 1, v0")
        a("v_mul_u32_u24 v10, %d, v15" % QS_STR)
        a("v_lshl_add_u32 v10, v14, 4, v10")
        a("v_add_u32 v10, %d, v10" % QS)
        a("v_mul_u32_u24 v11, %d, v15" % PS_STR)
        a("v_lshl_add_u32 v11, v14, 4, v11")
        a("s_lshl_b32 s14, s11, 6")
        a("s_add_u32 s14, s14, %d" % SCL)
        a("v_add_u32 v12, s14, v11")
        a("v_add_u32 v11, %d, v11" % PS)
        a("v_mov_b32 v184, %d" % ZERO)
        a("v_and_b32 v185, 2, v0")
        a("v_cmp_eq_u32 vcc, 0, v185")
        a("v_lshlrev_b32 v188, 13, v15")
        a("v_lshl_add_u32 v188, v14, 9, v188")
        a("v_cndmask_b32 v186, v184, v11, vcc")
        a("v_cndmask_b32 v187, v11, v184, vcc")
        a("v_lshl_add_u32 v188, v185, 7, v188")
        a("v_mov_b32 v184, %d" % OOB)
        a("v_cmp_gt_u32 vcc, 4, v189")
        a("s_lshr_b32 s59, s8, 1")
        a("s_lshl_b32 s59, s59, 14")
        a("v_cndmask_b32 v188, v184, v188, vcc")
        a("s_lshl_b32 s14, s11, 11")
        a("s_add_u32 s59, s59, s14")
        a("s_and_b32 s14, s5, 15")
        a("s_lshl_b32 s14, s14, 4")
        a("s_add_u32 s59, s59, s14")
        a("s_add_u32 s59, s59, %d" % WS_O)
        self.tr_addrs(6, "s12", "v189", "v14", "v15")
        a("v_mov_b32 v14, 1")
        a("s_mov_b32 s60, 0")
        a("s_cmp_lg_u32 s66, 0")
        a("s_cselect_b64 vcc, -1, 0")
        TH = c.thi
        for i in range(T, TH):
            self.k_issue(i)
        a("s_waitcnt vmcnt(%d)" % TH)
        self.signal("v13", F_WQ, "v14")
        nxt = TH
        last_issue = 31 - TH
        block_at = max(15, last_issue | 1)
        for i in range(28):
            grp_end = (i & 1) == 1 if i < 16 else (i & 3) == 3
            if nxt <= 31 or grp_end:
                a("s_waitcnt vmcnt(%d) lgkmcnt(0)" % (nxt - 1 - i))
            if i == 0:
                self.stamp(8)
            if grp_end:
                if i < 16:
                    for tt in range(2):
                        r = KF + 4 * (i - 1 + tt)
                        a("ds_read_b128 v[%d:%d], v%d offset:%d" % (r, r + 3, 4 + tt, (i - 1) * 1024))
                else:
                    s = (i - 16) >> 2
                    self.tile_reads(VF + 16 * s, 6, s * 4096)
            if i == c.kd_at:
                self.signal("v13", F_KD, "v14")
            if i == 15:
                self.stamp(1)
            def check(blocking):
                skip = self.lbl("kchk")
                a("s_cmp_lg_u32 s60, 0")
                a("s_cbranch_scc1 %s" % skip)
                if blocking:
                    self.wait_flag("v13", F_Q, 1, "v15")
                else:
                    a("ds_read_b32 v15, v13 offset:%d" % F_Q)
                    a("s_waitcnt lgkmcnt(0)")
                    a("v_readfirstlane_b32 s14, v15")
                    a("s_cmp_eq_u32 s14, 0")
                    a("s_cbranch_scc1 %s" % skip)
                a("s_call_b64 s[64:65], L_SCORES")
                a.label(skip)
            if 15 <= i <= last_issue:
                check(False)
            if nxt <= 31:
                self.k_issue(nxt)
                nxt += 1
            if i == max(15, last_issue):
                check(True)
        assert nxt == 32
        self.wait_flag("v13", F_CO, 1, "v15")
        a("s_mov_b32 s61, s14")
        self.wait_flag("v13", F_P, 1, "v15")
        self.stamp(4)
        for s in range(4):
            for hv in range(2):
                r = PF + 8 * s + 4 * hv
                a("ds_read_b128 v[%d:%d], v%d offset:%d" % (r, r + 3, 186 + hv, s * 64))
        for s in range(3):
            for n in range(4):
                if n % 2 == 0:
                    a("s_waitcnt lgkmcnt(%d)" % (7 - 2 * s - (n >> 1)))
                self.mfma(AC + 4 * (n & 1), VF + 16 * s + 4 * n, PF + 8 * s + 4 * (n >> 1), s == 0 and n < 2)
        a("s_waitcnt vmcnt(0)")
        self.stamp(5)
        self.tile_reads(VF + 48, 6, 3 * 4096)
        for n in range(4):
            a("s_waitcnt lgkmcnt(%d)" % (6 - 2 * n))
            self.mfma(AC + 4 * (n & 1), VF + 48 + 4 * n, PF + 24 + 4 * (n >> 1), False)
        a("s_cmp_eq_u32 s61, 2")
        a("s_nop 4")
        a("v_cvt_pk_bf16_f32 v%d, v%d, v%d" % (PK, AC, AC + 1))
        a("v_cvt_pk_bf16_f32 v%d, v%d, v%d" % (PK + 1, AC + 2, AC + 3))
        a("v_cvt_pk_bf16_f32 v%d, v%d, v%d" % (PK + 2, AC + 4, AC + 5))
        a("v_cvt_pk_bf16_f32 v%d, v%d, v%d" % (PK + 3, AC + 6, AC + 7))
        for k in range(4):
            a("v_min_u32 v%d, -2, v%d" % (PK + k, PK + k))
        a("s_cbranch_scc0 L_K_SLOWST")
        a("buffer_store_dwordx4 v[%d:%d], v188, s[48:51], s59 offen" % (PK, PK + 3))
        a("s_branch L_K_STDONE")
        a.label("L_K_SLOWST")
        a("buffer_store_dwordx4 v[%d:%d], v188, s[48:51], s59 offen sc1" % (PK, PK + 3))
        a.label("L_K_STDONE")
        self.signal("v13", F_VD, "v14")
        self.stamp(6)
        self.finish()

    def k_scores(self):
        a, c = self.a, self.c
        KF, VF, QF, SA = 16, 80, 144, 176
        a.label("L_SCORES")
        self.stamp(2)
        for t in range(8):
            a("ds_read_b128 v[%d:%d], v10 offset:%d" % (QF + 4 * t, QF + 4 * t + 3, t * 64))
        for t in range(8):
            a("s_waitcnt lgkmcnt(%d)" % (7 - t))
            for u in range(2):
                self.mfma(SA + 4 * u, KF + 4 * (u * 8 + t), QF + 4 * t, t == 0)
        a("s_mov_b32 s60, 1")
        a("s_nop 6")
        for k in range(4):
            a("v_cvt_pk_bf16_f32 v%d, v%d, v%d" % (QF + k, SA + 2 * k, SA + 2 * k + 1))
        a("s_mov_b32 exec_lo, 0x00030003")
        a("s_mov_b32 exec_hi, 0x00030003")
        a("ds_write_b128 v12, v[%d:%d]" % (QF, QF + 3))
        self.signal("v13", F_SC, "v14")
        self.stamp(3)
        a("s_setpc_b64 s[64:65]")

    def s_early(self):
        a, c = self.a, self.c
        a.label("L_SROLE")
        a("s_setprio 2")
        a("v_mov_b32 v2, %d" % FL)
        a("v_mov_b32 v3, 1")
        a("v_lshlrev_b32 v4, 4, v0")
        a("v_mov_b32 v5, %d" % OOB)
        a("v_cmp_gt_u32 vcc, 56, v0")
        a("s_mul_i32 s67, s11, 896")
        a("s_mul_i32 s62, s4, 7")
        a("s_add_u32 s62, s62, s5")
        a("s_sub_u32 s62, s62, 22")
        a("v_cndmask_b32 v5, v5, v4, vcc")
        a("v_and_b32 v17, 7, v0")
        a("v_bfe_u32 v18, v0, 4, 2")
        a("v_lshlrev_b32 v18, 1, v18")
        a("v_xor_b32 v17, v17, v18")
        a("v_lshlrev_b32 v17, 4, v17")
        a("v_bfe_u32 v16, v0, 3, 2")
        a("v_lshrrev_b32 v18, 5, v0")
        a("s_waitcnt lgkmcnt(0)")
        self.srd(48, 38, None, WS_SIZE)
        self.srd(52, 16, None, 3584)
        a("s_cmp_lg_u32 s66, 0")
        a("s_cbranch_scc1 L_S_NOX")
        a("buffer_load_dwordx4 v[8:11], v5, s[52:55], s67 offen")
        a.label("L_S_NOX")
        a("s_cmp_eq_u32 s11, 1")
        a("s_cbranch_scc1 L_S1")
        a("s_cmp_eq_u32 s11, 2")
        a("s_cbranch_scc1 L_S2")
        a("s_cmp_eq_u32 s11, 3")
        a("s_cbranch_scc1 L_S3")
        a("s_cmp_lg_u32 s66, 0")
        a("s_cbranch_scc1 L_S0_TAG")
        a("s_waitcnt vmcnt(0)")
        a("s_call_b64 s[64:65], L_LN1")
        a("s_branch L_S0_GATHER")
        a.label("L_S1")
        if c.wq_pf_n:
            a("s_cmp_lt_u32 s5, 22")
            a("s_cbranch_scc1 L_S1_NOWQ2")
            a("v_lshrrev_b32 v6, 3, v0")
            a("v_lshlrev_b32 v6, 13, v6")
            a("v_and_b32 v7, 7, v0")
            a("v_lshl_add_u32 v6, v7, 7, v6")
            a("s_sub_u32 s56, s5, 22")
            a("s_mul_i32 s56, s56, %d" % (c.wq_pf_n * 65536))
            a("s_add_u32 s56, s56, %d" % ((448 - 80 * c.wq_pf_n) * 8192))
            a("s_lshl_b32 s57, s4, 10")
            self.srd(40, 22, "s57", 447 * 8192 + 1024)
            for k in range(c.wq_pf_n):
                a("buffer_load_dword v%d, v6, s[40:43], s56 offen %s" % (40 + k, c.pol_pf))
                a("s_add_u32 s56, s56, 65536")
            a.label("L_S1_NOWQ2")
        if c.wq_pf:
            a("s_cmp_lg_u32 s66, 2")
            a("s_cbranch_scc1 L_S1_NOWQ")
            a("v_lshlrev_b32 v6, 13, v0")
            a("s_sub_u32 s56, s5, 28")
            a("s_lshl_b32 s56, s56, 20")
            a("s_lshl_b32 s57, s4, 10")
            a("s_add_u32 s57, s57, 384")
            self.srd(40, 22, "s57", 447 * 8192 + 128)
            a("buffer_load_dword v12, v6, s[40:43], s56 offen %s" % c.pol_pf)
            a("s_add_u32 s56, s56, %d" % (64 * 8192))
            a("buffer_load_dword v13, v6, s[40:43], s56 offen %s" % c.pol_pf)
            a.label("L_S1_NOWQ")
        a("s_cmp_lg_u32 s66, 0")
        a("s_cbranch_scc1 L_S1_SM")
        a("s_waitcnt vmcnt(0)")
        a("s_call_b64 s[64:65], L_LN1")
        a("s_branch L_S1_SM")
        a.label("L_S2")
        a("v_mov_b32 v19, 0")
        a("buffer_load_dword v7, v19, s[48:51], 0 offen sc1")
        for k in range(4):
            a("v_mov_b32 v%d, -1" % (12 + k))
        a("v_and_b32 v18, 7, v0")
        a("v_lshlrev_b32 v18, 4, v18")
        a("s_lshl_b32 s56, s4, 15")
        a("s_lshl_b32 s57, s5, 10")
        a("s_add_u32 s56, s56, s57")
        a("s_add_u32 s56, s56, %d" % WS_O)
        a("buffer_store_dwordx4 v[12:15], v4, s[48:51], s56 offen sc1")
        a("s_cmp_eq_u32 s66, 2")
        a("s_cbranch_scc0 L_S2_K")
        a("s_lshl_b32 s56, s4, 9")
        a("s_add_u32 s56, s56, %d" % WS_ST)
        a("s_cmp_eq_u32 s5, 31")
        a("s_cselect_b32 s56, s56, %d" % OOB)
        a("s_mov_b32 exec_hi, 0")
        a("buffer_store_dwordx4 v[12:15], v4, s[48:51], s56 offen sc1")
        a("s_branch L_S2_CLR")
        a.label("L_S2_K")
        a("s_cmp_eq_u32 s66, 0")
        a("s_cbranch_scc1 L_S2_H")
        a("s_cmp_eq_u32 s66, 1")
        a("s_cbranch_scc1 L_S2_C")
        a("v_lshrrev_b32 v16, 5, v0")
        a("v_mul_u32_u24 v16, 14, v16")
        a("v_bfe_u32 v17, v0, 4, 1")
        a("v_add_u32 v16, v16, v17")
        a("v_lshlrev_b32 v16, 12, v16")
        a("v_and_b32 v17, 15, v0")
        a("v_lshl_add_u32 v16, v17, 4, v16")
        a("s_sub_u32 s57, s5, 8")
        a("s_lshr_b32 s56, s57, 1")
        a("s_lshl_b32 s56, s56, 13")
        a("s_and_b32 s57, s57, 1")
        a("s_lshl_b32 s57, s57, 8")
        a("s_add_u32 s56, s56, s57")
        a("s_lshl_b32 s57, s4, 9")
        a("s_add_u32 s56, s56, s57")
        a("s_add_u32 s56, s56, %d" % WS_A)
        a("buffer_store_dwordx4 v[12:15], v16, s[48:51], s56 offen sc1")
        a("s_add_u32 s56, s56, %d" % (28 * 4096))
        a("buffer_store_dwordx4 v[12:15], v16, s[48:51], s56 offen sc1")
        a("s_branch L_S2_CLR")
        a.label("L_S2_C")
        a("v_lshrrev_b32 v17, 3, v0")
        a("v_mul_u32_u24 v16, %d, v17" % (NF * 128))
        a("v_add_u32 v16, v16, v18")
        a("s_lshl_b32 s56, s62, 7")
        a("s_add_u32 s56, s56, %d" % WS_C)
        for k in range(7):
            a("buffer_store_dwordx4 v[12:15], v16, s[48:51], s56 offen sc1")
            a("s_add_u32 s56, s56, %d" % (8 * NF * 128))
        a("s_branch L_S2_CLR")
        a.label("L_S2_H")
        a("v_lshrrev_b32 v17, 2, v0")
        a("v_mul_u32_u24 v16, %d, v17" % HREP_STRIDE)
        a("v_and_b32 v17, 3, v0")
        a("v_lshl_add_u32 v16, v17, 4, v16")
        a("s_lshl_b32 s56, s2, 7")
        a("s_add_u32 s56, s56, %d" % WS_H)
        a("s_mov_b32 exec_lo, 0x%x" % ((1 << (4 * c.hrep)) - 1))
        a("s_mov_b32 exec_hi, 0")
        a("buffer_store_dwordx4 v[12:15], v16, s[48:51], s56 offen sc1")
        a.label("L_S2_CLR")
        a("s_mov_b64 exec, -1")
        a("s_waitcnt vmcnt(2)")
        a("v_readfirstlane_b32 s68, v7")
        a("s_or_b32 s68, s68, 1")
        a("s_mul_i32 s68, s68, 0x9E3779B1")
        a("s_add_u32 s68, s68, 0x85EBCA6A")
        a("s_getreg_b32 s69, hwreg(HW_REG_XCC_ID)")
        a("s_and_b32 s69, s69, 15")
        a("v_mov_b32 v20, s68")
        a("v_mov_b32 v21, s69")
        a("s_mov_b64 exec, 1")
        a("ds_write_b32 v2, v20 offset:%d" % F_TAG)
        a("s_mov_b64 exec, -1")
        a("s_cmp_lg_u32 s66, 0")
        a("s_cbranch_scc1 L_S2_FLAG")
        a("s_call_b64 s[64:65], L_LN1")
        a("s_waitcnt vmcnt(2)")
        a("s_branch L_S2_FLAG2")
        a.label("L_S3")
        a("s_cmp_eq_u32 s66, 1")
        a("s_cbranch_scc1 L_S3_FFN")
        a("s_cmp_eq_u32 s66, 3")
        a("s_cbranch_scc0 L_S3_Q")
        a("v_lshl_add_u32 v20, v18, 5, v16")
        a("v_mul_u32_u24 v20, 896, v20")
        a("v_add_u32 v20, v20, v17")
        for k, rows in enumerate((4, 16, 20, 8, 12, 24, 28)):
            a("v_add_u32 v%d, %d, v20" % (21 + k, rows * 896))
        a("s_sub_u32 s57, s5, 8")
        a("s_and_b32 s56, s57, 1")
        a("s_lshl_b32 s58, s4, 1")
        a("s_add_u32 s56, s56, s58")
        a("s_mul_i32 s56, s56, %d" % (256 * 896))
        a("s_lshr_b32 s57, s57, 1")
        a("s_lshl_b32 s57, s57, 7")
        a("s_add_u32 s56, s56, s57")
        self.srd(52, 24, "s56", 255 * 896 + 128)
        a("s_mov_b32 m0, %d" % BIG)
        a("s_movk_i32 s15, 0")
        self.tile_loop([("v%d" % (20 + k), 52, 1024) for k in range(8)], 52, 4, 64 * 896, c.pol_wo, c.wo_thr)
        a("s_waitcnt vmcnt(0)")
        self.signal("v2", F_WO, "v3")
        self.stamp(1)
        a("s_branch L_STAGE2")
        a.label("L_S3_Q")
        a("s_cmp_lg_u32 s66, 0")
        a("s_cbranch_scc1 L_S3_PF")
        a("s_waitcnt vmcnt(0)")
        a("s_call_b64 s[64:65], L_LN1")
        a("s_branch L_S3_PF")
        a.label("L_LN1")
        self.layernorm(8, 24, 32)
        a("s_mul_i32 s14, s11, %d" % XN_STR)
        a("s_add_u32 s14, s14, %d" % XN)
        a("v_add_u32 v6, s14, v4")
        a("s_mov_b32 exec_hi, 0x00ffffff")
        a("ds_write_b128 v6, v[8:11]")
        self.signal("v2", F_XN, "v3")
        XF, WF, AC = 48, 104, 160
        a("v_lshrrev_b32 v24, 2, v0")
        a("v_bfe_u32 v25, v0, 3, 2")
        a("v_and_b32 v26, 3, v0")
        a("v_lshlrev_b32 v24, 7, v24")
        a("v_lshl_add_u32 v24, v26, 3, v24")
        a("v_xor_b32 v25, s11, v25")
        a("v_lshl_add_u32 v24, v25, 5, v24")
        a("v_add_u32 v24, %d, v24" % BIG)
        a("v_lshrrev_b32 v25, 4, v0")
        a("v_mul_u32_u24 v6, %d, v26" % XN_STR)
        a("v_lshl_add_u32 v6, v25, 4, v6")
        a("v_add_u32 v6, %d, v6" % XN)
        a("v_lshlrev_b32 v27, 14, v26")
        a("v_lshl_add_u32 v27, v25, 4, v27")
        a("s_lshl_b32 s56, s4, 11")
        a("s_lshl_b32 s57, s5, 8")
        a("s_add_u32 s56, s56, s57")
        a("s_lshl_b32 s57, s11, 6")
        a("s_add_u32 s56, s56, s57")
        a("s_add_u32 s56, s56, %d" % WS_Q)
        a("s_add_u32 s57, s56, %d" % (WS_QF - WS_Q))
        self.wait_flag("v2", F_XN, 4, "v28")
        for s in range(14):
            a("ds_read_b128 v[%d:%d], v6 offset:%d" % (XF + 4 * s, XF + 4 * s + 3, s * 64))
        self.wait_flag("v2", F_TAG, 1, "v28")
        a("v_mov_b32 v9, s14")
        a("v_mov_b32 v11, s14")
        self.stamp(9)
        self.wait_flag("v2", F_WQ, 4, "v28")
        for s in range(14 + 6):
            if s < 14:
                for hh in range(2):
                    r = WF + 4 * s + 2 * hh
                    a("ds_read_b64_tr_b16 v[%d:%d], v24 offset:%d" % (r, r + 1, s * 4096 + hh * 2048))
            p = s - 6
            if p >= 0:
                a("s_waitcnt lgkmcnt(%d)" % (2 * (min(s, 13) - p)))
                self.mfma(AC, WF + 4 * p, XF + 4 * p, p == 0)
        a("s_mov_b32 exec_lo, 0x000f000f")
        a("s_mov_b32 exec_hi, 0x000f000f")
        a("s_nop 5")
        a("v_cvt_pk_bf16_f32 v8, v%d, v%d" % (AC, AC + 1))
        a("v_cvt_pk_bf16_f32 v10, v%d, v%d" % (AC + 2, AC + 3))
        a("buffer_store_dwordx4 v[8:11], v27, s[48:51], s57 offen")
        a("buffer_store_dwordx4 v[8:11], v27, s[48:51], s56 offen sc1")
        a("s_mov_b64 exec, -1")
        self.stamp(10)
        a("s_setpc_b64 s[64:65]")

    def s_next(self):
        a = self.a
        a("s_cmp_eq_u32 s66, 3")
        a("s_cbranch_scc1 L_STAGE2")
        a("s_cmp_eq_u32 s66, 1")
        a("s_cbranch_scc1 L_FFN")
        self.finish()

    def s0_late(self):
        a, c = self.a, self.c
        a.label("L_S0_TAG")
        a.label("L_S0_GATHER")
        self.wait_flag("v2", F_TAG, 1, "v24", sleep=2)
        a("s_mov_b32 s68, s14")
        a("s_lshl_b32 s56, s10, 11")
        a("s_add_u32 s56, s56, %d" % WS_Q)
        a("v_lshlrev_b32 v7, 3, v0")
        a("v_xor_b32 v7, s70, v7")
        a("v_add_u32 v7, %d, v7" % QS)
        self.wait_flag("v2", F_KD, 4, "v24", sleep=1)
        a("s_add_u32 s57, s56, %d" % (WS_QF - WS_Q))
        a("s_mov_b32 s13, 1")
        a.label("L_QPOLL")
        a("s_and_b32 s14, s13, %d" % (c.fast_n - 1))
        a("s_cselect_b32 s58, s57, s56")
        a("buffer_load_dwordx4 v[8:11], v4, s[48:51], s58 offen sc1")
        a("buffer_load_dwordx4 v[12:15], v4, s[48:51], s58 offen offset:1024 sc1")
        a("s_waitcnt vmcnt(0)")
        a("v_xor_b32 v9, s68, v9")
        a("v_xor_b32 v11, s68, v11")
        a("v_xor_b32 v13, s68, v13")
        a("v_xor_b32 v15, s68, v15")
        a("v_or3_b32 v9, v9, v11, v13")
        a("v_or_b32 v9, v9, v15")
        a("v_cmp_ne_u32 vcc, 0, v9")
        a("s_cbranch_vccz L_QOK")
        a("s_add_u32 s13, s13, 1")
        a("s_cmp_lt_u32 s13, %d" % c.poll_max)
        a("s_cbranch_scc1 L_QPOLL")
        a.label("L_QOK")
        a("v_mov_b32 v9, v10")
        a("v_mov_b32 v13, v14")
        a("ds_write_b64 v7, v[8:9]")
        a("ds_write_b64 v7, v[12:13] offset:%d" % QS_STR)
        self.signal("v2", F_Q, "v3")
        self.stamp(4)
        self.s_next()

    def s1_late(self):
        a, c = self.a, self.c
        a.label("L_S1_SM")
        a("v_lshrrev_b32 v6, 5, v0")
        a("v_mul_u32_u24 v6, %d, v6" % PS_STR)
        a("v_and_b32 v7, 31, v0")
        a("v_lshl_add_u32 v6, v7, 3, v6")
        a("v_add_u32 v6, %d, v6" % SCL)
        a("v_cmp_gt_u32 s[58:59], 32, v0")
        a("s_mov_b32 s61, %s" % f32(0.0625 * LOG2E))
        a("s_lshr_b32 s56, s8, 1")
        a("s_lshl_b32 s56, s56, 8")
        a("s_and_b32 s57, s5, 15")
        a("s_lshl_b32 s57, s57, 3")
        a("s_add_u32 s56, s56, s57")
        a("s_add_u32 s56, s56, %d" % WS_ST)
        a("v_lshrrev_b32 v7, 5, v0")
        a("v_lshlrev_b32 v7, 7, v7")
        a("s_waitcnt vmcnt(0)")
        self.wait_flag("v2", F_SC, 4, "v24", sleep=1)
        self.stamp(2)
        a("ds_read_b64 v[8:9], v6")
        a("s_waitcnt lgkmcnt(0)")
        a("v_lshlrev_b32 v12, 16, v8")
        a("v_and_b32 v13, 0xffff0000, v8")
        a("v_lshlrev_b32 v14, 16, v9")
        a("v_and_b32 v15, 0xffff0000, v9")
        a("v_max3_f32 v16, v12, v13, v14")
        a("v_max_f32 v16, v16, v15")

        def half_reduce(op, x):
            for ctl in ("row_shr:1", "row_shr:2", "row_shr:4", "row_shr:8"):
                a("s_nop 1")
                a("%s_dpp %s, %s, %s %s row_mask:0xf bank_mask:0xf" % (op, x, x, x, ctl))
            a("s_nop 1")
            a("%s_dpp %s, %s, %s row_bcast:15 row_mask:0xa bank_mask:0xf" % (op, x, x, x))
            a("s_nop 0")
        half_reduce("v_max_f32", "v16")
        a("v_readlane_b32 s64, v16, 31")
        a("v_readlane_b32 s65, v16, 63")
        a("s_nop 1")
        a("v_mov_b32 v20, s64")
        a("v_mov_b32 v22, s65")
        a("v_mul_f32 v20, s61, v20")
        a("v_mul_f32 v22, s61, v22")
        a("v_cndmask_b32 v18, v22, v20, s[58:59]")
        for k in range(4):
            a("v_fma_f32 v%d, v%d, s61, -v18" % (12 + k, 12 + k))
        for k in range(4):
            a("v_exp_f32 v%d, v%d" % (12 + k, 12 + k))
        a("s_nop 0")
        a("v_cvt_pk_bf16_f32 v8, v12, v13")
        a("v_cvt_pk_bf16_f32 v9, v14, v15")
        a("ds_write_b64 v6, v[8:9] offset:%d" % (PS - SCL))
        self.signal("v2", F_P, "v3")
        self.stamp(3)
        a("v_add_f32 v19, v12, v13")
        a("v_add_f32 v17, v14, v15")
        a("v_add_f32 v19, v19, v17")
        half_reduce("v_add_f32", "v19")
        a("v_min_u32 v18, -2, v18")
        a("v_min_u32 v19, -2, v19")
        self.wait_flag("v2", F_CO, 1, "v24")
        a("s_mov_b32 exec_lo, 0x80000000")
        a("s_mov_b32 exec_hi, 0x80000000")
        a("s_cmp_eq_u32 s14, 2")
        a("s_cbranch_scc0 L_S1_SLOW")
        a("buffer_store_dwordx2 v[18:19], v7, s[48:51], s56 offen")
        a("s_branch L_S1_DONE")
        a.label("L_S1_SLOW")
        a("buffer_store_dwordx2 v[18:19], v7, s[48:51], s56 offen sc1")
        a.label("L_S1_DONE")
        a("s_mov_b64 exec, -1")
        self.stamp(4)
        self.s_next()

    def s2_late(self):
        a, c = self.a, self.c
        a.label("L_S2_FLAG")
        a("s_waitcnt vmcnt(0)")
        a.label("L_S2_FLAG2")
        a("s_lshl_b32 s56, s4, 12")
        a("s_add_u32 s56, s56, %d" % WS_FLAGS)
        a("s_lshl_b32 s57, s5, 7")
        a("s_add_u32 s57, s57, s56")
        a("s_lshl_b32 s58, s4, 8")
        a("s_add_u32 s58, s58, %d" % WS_FF)
        a("s_lshl_b32 s59, s5, 3")
        a("s_add_u32 s59, s59, s58")
        a("s_mov_b64 exec, 1")
        a("buffer_store_dwordx2 v[20:21], v19, s[48:51], s59 offen")
        a("buffer_store_dwordx2 v[20:21], v19, s[48:51], s57 offen sc1")
        a("s_mov_b64 exec, -1")
        self.stamp(1)
        a("v_and_b32 v16, 31, v0")
        a("v_lshlrev_b32 v17, 3, v16")
        a("v_lshlrev_b32 v16, 7, v16")
        self.wait_flag("v2", F_KD, 1, "v24", sleep=2)
        a("s_mov_b32 s13, 1")
        a.label("L_GPOLL")
        a("s_and_b32 s14, s13, %d" % (c.fast_n - 1))
        a("s_cbranch_scc0 L_GSLOW")
        a("buffer_load_dwordx2 v[12:13], v17, s[48:51], s58 offen sc1")
        a("s_branch L_GCHK")
        a.label("L_GSLOW")
        a("buffer_load_dwordx2 v[12:13], v16, s[48:51], s56 offen sc1")
        a.label("L_GCHK")
        a("s_waitcnt vmcnt(0)")
        a("v_cmp_ne_u32 vcc, s68, v12")
        a("s_cbranch_vccz L_GOK")
        a("s_sleep 2")
        a("s_add_u32 s13, s13, 1")
        a("s_cmp_lt_u32 s13, %d" % c.poll_max)
        a("s_cbranch_scc1 L_GPOLL")
        a.label("L_GOK")
        a("v_cmp_ne_u32 vcc, s69, v13")
        a("s_cmp_eq_u64 vcc, 0")
        a("s_cselect_b32 s14, %d, 1" % (2 if c.fast else 1))
        a("v_mov_b32 v21, s14")
        a("s_mov_b64 exec, 1")
        a("ds_write_b32 v2, v21 offset:%d" % F_CO)
        a("s_cmp_eq_u32 s5, 31")
        a("s_cbranch_scc0 L_S2_NOLEAD")
        a("s_lshl_b32 s58, s4, 7")
        a("s_add_u32 s58, s58, %d" % WS_GOK)
        a("buffer_store_dword v20, v19, s[48:51], s58 offen sc1")
        a.label("L_S2_NOLEAD")
        a("s_mov_b64 exec, -1")
        self.stamp(2)
        a("s_cmp_eq_u32 s66, 3")
        a("s_cbranch_scc1 L_STAGE2")
        a("s_cmp_eq_u32 s66, 2")
        a("s_cbranch_scc1 L_RED_END")
        a("v_and_b32 v16, 7, v0")
        a("v_lshlrev_b32 v16, 7, v16")
        a("s_mov_b32 s56, %d" % WS_GOK)
        if c.gok_wait:
            self.wait_flag("v2", F_P, 1, "v24", sleep=2)
        a("s_mov_b32 s13, 0")
        a.label("L_APOLL")
        a("buffer_load_dword v12, v16, s[48:51], s56 offen sc1")
        a("s_waitcnt vmcnt(0)")
        a("v_cmp_ne_u32 vcc, s68, v12")
        a("s_cbranch_vccz L_AOK")
        a("s_sleep 4")
        a("s_add_u32 s13, s13, 1")
        a("s_cmp_lt_u32 s13, %d" % c.poll_max)
        a("s_cbranch_scc1 L_APOLL")
        a.label("L_AOK")
        a("s_cmp_eq_u32 s66, 1")
        a("s_cbranch_scc1 L_FFN")
        a("s_branch L_RED")

        a.label("L_S3_PF")
        if c.ffn_pf:
            a("s_sub_u32 s58, s5, 21")
            a("s_cmp_lt_u32 s5, 8")
            a("s_cselect_b32 s58, s5, s58")
            a("v_lshrrev_b32 v6, 2, v0")
            a("v_mul_u32_u24 v6, 3584, v6")
            a("v_and_b32 v7, 3, v0")
            a("v_lshl_add_u32 v6, v7, 7, v6")
            a("s_mul_i32 s56, s4, 448")
            a("s_and_b32 s56, s56, 0xffffff80")
            a("v_lshlrev_b32 v7, 7, v0")
            self.srd(40, 28, None, 448 * 3584)
            self.srd(44, 30, None, 448 * 3584)
            a("s_mul_i32 s57, s58, %d" % (c.pf_rows * 3584))
            a("s_add_u32 s56, s56, s57")
            a("s_add_u32 s56, s56, %d" % ((448 - 11 * c.pf_rows) * 3584))
            a("s_mul_i32 s57, s4, %d" % (224 * 896))
            self.srd(52, 32, "s57", 224 * 896)
            a("s_mul_i32 s57, s58, %d" % (3 * 8192))
            self.wait_flag("v2", F_VD, 4, "v24", sleep=1)
            for k in range(c.pf_rows // 16):
                a("buffer_load_dword v%d, v6, s[40:43], s56 offen %s" % (12 + 2 * k, c.pol_pf))
                a("buffer_load_dword v%d, v6, s[44:47], s56 offen %s" % (13 + 2 * k, c.pol_pf))
                a("s_add_u32 s56, s56, %d" % (16 * 3584))
            for k in range(3):
                a("buffer_load_dword v%d, v7, s[52:55], s57 offen %s" % (24 + k, c.pol_pf))
                a("s_add_u32 s57, s57, 8192")
            if c.diag:
                a("s_waitcnt vmcnt(0)")
            self.stamp(1)
        self.finish()
        a.label("L_S3_FFN")
        a("v_lshl_add_u32 v24, v18, 3, v16")
        a("v_mul_u32_u24 v24, 896, v24")
        a("v_add_u32 v24, v24, v17")
        a("v_add_u32 v25, %d, v24" % (16 * 896))
        a("v_add_u32 v26, %d, v24" % (4 * 896))
        a("v_add_u32 v27, %d, v24" % (20 * 896))
        a("v_lshrrev_b32 v22, 2, v0")
        a("v_mul_u32_u24 v20, 3584, v22")
        a("v_and_b32 v23, 3, v0")
        a("v_xor_b32 v23, v23, v18")
        a("v_lshl_add_u32 v20, v23, 4, v20")
        a("v_xor_b32 v21, 32, v20")
        a("s_lshl_b32 s56, s62, 6")
        self.srd(40, 28, "s56", 447 * 3584 + 64)
        self.srd(44, 30, "s56", 447 * 3584 + 64)
        a("s_mul_i32 s56, s62, %d" % (32 * 896))
        self.srd(52, 32, "s56", 32 * 896)
        a("s_mov_b32 m0, %d" % GT)
        a("s_movk_i32 s15, 0")
        gu = [("v20", 40, 28672), ("v21", 44, 1024 - 28672)]
        if c.ffn_n1:
            self.tile_loop(gu, None, c.ffn_n1, 16 * 3584, c.pol_ffn, c.ffn_thr)
        self.stamp(2)
        self.wait_flag("v2", F_VD, 4, "v28", sleep=1)
        self.tile_loop(gu, None, 28 - c.ffn_n1, 16 * 3584, c.pol_ffn, 48)
        a("s_mov_b32 m0, %d" % DT)
        a("s_movk_i32 s15, 0")
        self.tile_loop([("v%d" % (24 + k), 52, 1024) for k in range(4)], 52, 7, 128, c.pol_ffn, 48)
        a("s_waitcnt vmcnt(0)")
        self.stamp(1)
        a("s_branch L_FFN")

    def stage2(self):
        a, c = self.a, self.c
        WF, AF, AC, W = 48, 112, 128, 28
        a.label("L_STAGE2")
        a("s_lshr_b32 s70, s11, 1")
        a("s_and_b32 s71, s11, 1")
        a("s_lshl_b32 s71, s71, 1")
        a("s_sub_u32 s64, s5, 8")
        a("s_and_b32 s65, s64, 1")
        a("s_lshr_b32 s64, s64, 1")
        a("s_lshl_b32 s12, s70, 14")
        a("s_add_u32 s12, s12, %d" % BIG)
        self.tr_addrs(12, "s12", "v24", "v25", "v26")
        a("v_and_b32 v24, 7, v0")
        a("v_lshrrev_b32 v25, 4, v0")
        a("v_bfe_u32 v26, v0, 3, 1")
        a("v_and_b32 v17, 15, v0")
        a("v_lshlrev_b32 v17, 3, v17")
        a("v_lshlrev_b32 v18, 4, v24")
        a("v_lshl_add_u32 v18, v26, 12, v18")
        a("v_lshrrev_b32 v27, 5, v0")
        a("v_mul_u32_u24 v27, %d, v27" % (14 * 4096))
        a("v_add_u32 v18, v18, v27")
        a("v_mov_b32 v26, %d" % OOB)
        a("v_and_b32 v27, 1, v25")
        a("v_cmp_eq_u32 vcc, 0, v27")
        a("v_lshlrev_b32 v19, 4, v25")
        a("s_add_u32 s56, s9, s71")
        a("s_lshl_b32 s57, s56, 7")
        a("v_cndmask_b32 v18, v26, v18, vcc")
        a("s_lshl_b32 s14, s65, 7")
        a("s_add_u32 s57, s57, s14")
        a("s_add_u32 s57, s57, %d" % WS_ST)
        a("s_lshl_b32 s14, s65, 1")
        a("s_add_u32 s14, s14, s70")
        a("s_lshl_b32 s56, s56, 1")
        a("s_add_u32 s56, s56, s14")
        a("s_lshl_b32 s56, s56, 12")
        a("s_add_u32 s56, s56, %d" % WS_O)
        a("s_add_u32 s14, s14, s9")
        a("s_lshl_b32 s14, s14, 7")
        a("s_mul_i32 s60, s71, 14")
        a("s_lshl_b32 s61, s64, 1")
        a("s_add_u32 s60, s60, s61")
        a("s_lshl_b32 s60, s60, 12")
        a("s_add_u32 s60, s60, s14")
        a("s_add_u32 s60, s60, %d" % WS_A)
        self.wait_flag("v2", F_WO, 1, "v24", sleep=1)
        for s in range(4):
            self.tile_reads(WF + 16 * s, 12, s * 4096)
            a("s_waitcnt lgkmcnt(0)")
        self.wait_flag("v2", F_CO, 1, "v24", sleep=1)
        self.stamp(5)
        a("s_mov_b32 s13, 0")
        a.label("L_OPOLL")
        a("buffer_load_dwordx2 v[20:21], v17, s[48:51], s57 offen sc1")
        for s in range(4):
            a("buffer_load_dwordx4 v[%d:%d], v4, s[48:51], s56 offen offset:%d sc1" % (AF + 4 * s, AF + 4 * s + 3, s * 1024))
        a("s_waitcnt vmcnt(4)")
        a("v_max_u32 v24, v20, v21")
        for s in range(4):
            a("s_waitcnt vmcnt(%d)" % (3 - s))
            r = AF + 4 * s
            a("v_max3_u32 v24, v24, v%d, v%d" % (r, r + 1))
            a("v_max3_u32 v24, v24, v%d, v%d" % (r + 2, r + 3))
        a("v_cmp_eq_u32 vcc, -1, v24")
        a("s_cbranch_vccz L_OOK")
        a("s_cmp_lg_u32 s13, 0")
        a("s_cbranch_scc1 L_ONEXT")
        self.wait_flag("v2", F_VD, 1, "v24", sleep=1)
        a.label("L_ONEXT")
        a("s_add_u32 s13, s13, 1")
        a("s_cmp_lt_u32 s13, %d" % c.poll_max)
        a("s_cbranch_scc1 L_OPOLL")
        a.label("L_OOK")
        self.stamp(6)

        def epi(n):
            r = AC + 4 * n
            return ["v_pk_mul_f32 v[%d:%d], v[%d:%d], v[%d:%d]" % (r, r + 1, r, r + 1, W, W + 1),
                    "v_pk_fma_f32 v[%d:%d], v[%d:%d], v[%d:%d], v[%d:%d]" % (r, r + 1, r + 2, r + 3, W + 2, W + 3, r, r + 1),
                    "v_add_f32 v%d, v%d, v%d" % (24 + n, r, r + 1)]
        dp = ("quad_perm:[1,0,3,2]", "quad_perm:[2,3,0,1]", "row_half_mirror")
        wts = [["v_max_f32_dpp v22, v20, v20 %s row_mask:0xf bank_mask:0xf" % dp[0]],
               ["s_nop 0", "v_max_f32_dpp v22, v22, v22 %s row_mask:0xf bank_mask:0xf" % dp[1]],
               ["s_nop 0", "v_max_f32_dpp v22, v22, v22 %s row_mask:0xf bank_mask:0xf" % dp[2], "v_sub_f32 v20, v20, v22", "v_exp_f32 v20, v20"],
               ["v_mul_f32 v22, v20, v21"],
               ["s_nop 0", "v_add_f32_dpp v22, v22, v22 %s row_mask:0xf bank_mask:0xf" % dp[0]],
               ["s_nop 0", "v_add_f32_dpp v22, v22, v22 %s row_mask:0xf bank_mask:0xf" % dp[1]],
               ["s_nop 0", "v_add_f32_dpp v22, v22, v22 %s row_mask:0xf bank_mask:0xf" % dp[2], "v_rcp_f32 v22, v22"],
               ["v_mul_f32 v20, v20, v22"] + ["ds_bpermute_b32 v%d, v19, v20 offset:%d" % (W + r, 4 * r) for r in range(4)]]
        fill = epi(0) + epi(1)
        k = 0
        for n in range(4):
            for s in range(4):
                idx = 4 * n + s
                self.mfma(AC + 4 * n, AF + 4 * s, WF + 16 * s + 4 * n, s == 0)
                if idx < len(wts):
                    for ins in wts[idx]:
                        a(ins)
                if idx == 12:
                    a("s_waitcnt lgkmcnt(0)")
                if idx >= 12:
                    a(fill[k]); k += 1
        a(fill[4])
        a(fill[5])
        for ins in epi(2):
            a(ins)
        a("v_permlane16_swap_b32 v24, v25")
        a("v_add_f32 v24, v24, v25")
        for ins in epi(3):
            a(ins)
        a("v_min_u32 v24, -2, v24")
        a("v_mov_b32 v25, v24")
        a("v_permlane16_swap_b32 v26, v27")
        a("v_add_f32 v26, v26, v27")
        a("v_permlane16_swap_b32 v24, v25")
        a("v_min_u32 v26, -2, v26")
        a("v_mov_b32 v27, v26")
        a("s_nop 1")
        a("v_permlane16_swap_b32 v26, v27")
        a("buffer_store_dwordx4 v[24:27], v18, s[48:51], s60 offen sc1")
        self.stamp(7)
        self.finish()

    def reducer(self):
        a, c = self.a, self.c
        L, T = 32, 64
        a.label("L_RED")
        a("s_cmp_ge_u32 s2, 56")
        a("s_cbranch_scc1 L_RED_END")
        a("s_mul_i32 s64, s2, 4682")
        a("s_lshr_b32 s64, s64, 16")
        a("s_mul_i32 s65, s64, 14")
        a("s_sub_u32 s65, s2, s65")
        a("v_lshrrev_b32 v16, 4, v0")
        a("v_and_b32 v17, 7, v0")
        a("v_lshlrev_b32 v18, 5, v16")
        a("v_lshl_add_u32 v18, v17, 1, v18")
        a("s_mul_i32 s69, s64, 896")
        a("s_lshr_b32 s14, s65, 1")
        a("s_lshl_b32 s14, s14, 7")
        a("s_add_u32 s69, s69, s14")
        a("s_and_b32 s14, s65, 1")
        a("s_lshl_b32 s14, s14, 4")
        a("s_add_u32 s69, s69, s14")
        a("buffer_load_ushort v19, v18, s[52:55], s69 offen")
        a("v_mov_b32 v20, %d" % OOB)
        a("v_bfe_u32 v21, v0, 3, 1")
        a("v_cmp_eq_u32 vcc, 0, v21")
        a("v_mul_u32_u24 v21, %d, v21" % HREP_STRIDE)
        a("v_lshl_add_u32 v21, v16, 4, v21")
        a("v_cndmask_b32 v18, v20, v18, vcc")
        a("v_cmp_eq_u32 vcc, 0, v17")
        a("s_lshl_b32 s70, s2, 7")
        a("s_add_u32 s70, s70, %d" % WS_H)
        a("v_cndmask_b32 v21, v20, v21, vcc")
        self.srd(44, 34, None, 3584)
        a("s_cmp_eq_u32 s2, 0")
        a("s_cbranch_scc0 L_RED_NOEP")
        a("v_mov_b32 v6, 0")
        a("v_mov_b32 v7, s68")
        a("s_mov_b64 exec, 1")
        a("buffer_store_dword v7, v6, s[48:51], 0 offen sc1")
        a("s_mov_b64 exec, -1")
        a.label("L_RED_NOEP")
        a("s_lshl_b32 s56, s2, 12")
        a("s_add_u32 s56, s56, %d" % WS_A)
        a("s_mul_i32 s58, s2, %d" % (NF * 128))
        a("s_add_u32 s58, s58, %d" % WS_C)
        a("s_add_u32 s59, s58, 4096")
        a("s_waitcnt vmcnt(0)")
        a("v_lshlrev_b32 v19, 16, v19")
        self.stamp(5)
        self.wait_flag("v2", F_VD, 4, "v24", sleep=1)
        self.stamp(6)
        self.inbox_reduce(4, "v4", ("s56", "s56"), L, T, "v22")
        a("v_cvt_pk_bf16_f32 v22, v22, v22")
        a("v_lshlrev_b32 v22, 16, v22")
        a("v_add_f32 v22, v19, v22")
        a("s_nop 1")
        a("v_mov_b32_dpp v23, v22 quad_perm:[1,0,3,2] row_mask:0xf bank_mask:0xf")
        a("v_cvt_pk_bf16_f32 v24, v22, v23")
        a("v_min_u32 v24, -2, v24")
        a("s_nop 1")
        a("v_mov_b32_dpp v25, v24 row_shl:2 row_mask:0xf bank_mask:0xf")
        a("v_mov_b32_dpp v26, v24 row_shl:4 row_mask:0xf bank_mask:0xf")
        a("v_mov_b32_dpp v27, v24 row_shl:6 row_mask:0xf bank_mask:0xf")
        for k in range(c.hrep // 2):
            a("buffer_store_dwordx4 v[24:27], v21, s[48:51], s70 offen sc1")
            if k + 1 < c.hrep // 2:
                a("s_add_u32 s70, s70, %d" % (2 * HREP_STRIDE))
        a("v_lshlrev_b32 v28, 16, v24")
        self.stamp(7)
        self.inbox_reduce(7, "v4", ("s58", "s59"), L, T, "v22")
        a("v_cvt_pk_bf16_f32 v22, v22, v22")
        a("v_lshlrev_b32 v22, 16, v22")
        a("v_add_f32 v22, v28, v22")
        a("v_cvt_pk_bf16_f32 v22, v22, v22")
        a("buffer_store_short v22, v18, s[44:47], s69 offen")
        self.stamp(8)
        a.label("L_RED_END")
        self.finish()

    def ffn(self):
        a, c = self.a, self.c
        GF, DF, HF = 48, 104, 136
        a.label("L_FFN")
        a("v_lshrrev_b32 v22, 4, v0")
        a("v_bfe_u32 v23, v0, 2, 2")
        a("v_lshl_add_u32 v24, v22, 3, v23")
        a("v_lshlrev_b32 v20, 6, v24")
        a("v_and_b32 v24, 1, v0")
        a("v_lshl_add_u32 v20, v24, 3, v20")
        a("v_and_b32 v24, 1, v22")
        a("v_and_b32 v25, 2, v0")
        a("v_xor_b32 v24, v24, v25")
        a("v_xor_b32 v24, s11, v24")
        a("v_lshl_add_u32 v20, v24, 4, v20")
        a("v_mul_u32_u24 v25, %d, v25" % (28672 // 2))
        a("v_add_u32 v20, v20, v25")
        a("v_add_u32 v20, %d, v20" % GT)
        a("s_lshl_b32 s14, s11, 13")
        a("s_add_u32 s12, s14, %d" % DT)
        self.tr_addrs(12, "s12", "v24", "v25", "v26")
        a("v_mul_u32_u24 v21, %d, v23" % XN_STR)
        a("v_lshl_add_u32 v21, v22, 4, v21")
        a("v_add_u32 v21, %d, v21" % XN)
        a("s_mul_i32 s14, s11, %d" % XN_STR)
        a("s_add_u32 s14, s14, %d" % XN)
        a("v_lshrrev_b32 v24, 3, v0")
        a("v_lshlrev_b32 v6, 7, v24")
        a("v_and_b32 v24, 3, v0")
        a("v_lshl_add_u32 v6, v24, 5, v6")
        a("v_bfe_u32 v25, v0, 2, 1")
        a("v_lshl_add_u32 v6, v25, 4, v6")
        a("v_add_u32 v6, s14, v6")
        a("v_lshrrev_b32 v25, 2, v0")
        a("v_lshlrev_b32 v25, 7, v25")
        a("v_lshl_add_u32 v25, v24, 4, v25")
        a("v_max_u32 v5, v5, v25")
        a("v_lshlrev_b32 v24, 6, v23")
        a("v_lshl_add_u32 v24, v22, 4, v24")
        a("v_add_u32 v24, %d, v24" % ACT)
        a("v_mov_b32 v25, %d" % ZERO)
        a("v_and_b32 v26, 3, v0")
        for n in range(4):
            a("v_cmp_eq_u32 vcc, %d, v26" % n)
            a("s_nop 1")
            a("v_cndmask_b32 v%d, v25, v24, vcc" % (16 + n))
        a("v_and_b32 v24, 15, v0")
        a("v_lshlrev_b32 v7, 6, v22")
        a("v_lshl_add_u32 v7, v24, 1, v7")
        a("s_lshl_b32 s14, s11, 4")
        a("s_add_u32 s14, s14, %d" % ACT)
        a("v_add_u32 v7, s14, v7")
        a("v_mov_b32 v25, %d" % DUMP)
        a("v_cmp_gt_u32 vcc, 8, v24")
        a("s_nop 1")
        a("v_cndmask_b32 v7, v25, v7, vcc")
        a("v_mul_u32_u24 v25, 14, v22")
        a("v_bfe_u32 v26, v0, 3, 1")
        a("v_add_u32 v25, v25, v26")
        a("v_mul_u32_u24 v25, %d, v25" % (NF * 128))
        a("v_and_b32 v26, 7, v0")
        a("v_lshl_add_u32 v23, v26, 4, v25")
        a("s_mul_i32 s69, s11, %d" % (4 * NF * 128))
        a("s_lshl_b32 s70, s62, 7")
        a("s_add_u32 s69, s69, s70")
        a("s_add_u32 s69, s69, %d" % WS_C)
        a("s_add_u32 s70, s69, %d" % (2 * NF * 128))
        a("s_cmp_eq_u32 s11, 3")
        a("s_cselect_b32 s70, %d, s70" % OOB)
        a("s_and_b32 s60, s4, %d" % (c.hrep - 1))
        a("s_mul_i32 s60, s60, %d" % HREP_STRIDE)
        a("s_lshl_b32 s14, s67, 1")
        a("s_add_u32 s60, s60, s14")
        a("s_add_u32 s60, s60, %d" % WS_H)
        a("s_mov_b32 s61, %s" % f32(-LOG2E))
        a("s_waitcnt vmcnt(0)")
        a("s_barrier")
        self.stamp(8)
        for s in range(14):
            for hh in range(2):
                r = GF + 4 * s + 2 * hh
                a("ds_read_b64_tr_b16 v[%d:%d], v20 offset:%d" % (r, r + 1, s * 2048 + hh * 256))
            if s % 4 == 3:
                a("s_waitcnt lgkmcnt(0)")
        a("s_waitcnt lgkmcnt(0)")
        self.tile_reads(DF, 12, 0)
        a("s_waitcnt lgkmcnt(0)")
        self.tile_reads(DF + 16, 12, 4096)
        a("s_waitcnt lgkmcnt(0)")
        a("s_mov_b32 s13, 0")
        a.label("L_HPOLL")
        a("buffer_load_dwordx4 v[8:11], v5, s[48:51], s60 offen sc1")
        a("s_waitcnt vmcnt(0)")
        a("v_max3_u32 v24, v8, v9, v10")
        a("v_max_u32 v24, v24, v11")
        a("v_cmp_eq_u32 vcc, -1, v24")
        a("s_cbranch_vccz L_HOK")
        a("s_add_u32 s13, s13, 1")
        a("s_cmp_lt_u32 s13, %d" % c.poll_max)
        a("s_cbranch_scc1 L_HPOLL")
        a.label("L_HOK")
        self.stamp(9)
        self.layernorm(8, 24, 32)
        a("s_mov_b32 exec_hi, 0x00ffffff")
        a("ds_write_b128 v6, v[8:11]")
        a("s_mov_b64 exec, -1")
        a("s_waitcnt lgkmcnt(0)")
        a("s_barrier")
        AC = 24
        for s in range(7):
            a("ds_read_b128 v[%d:%d], v21 offset:%d" % (HF + 4 * s, HF + 4 * s + 3, s * 64))
        for s in range(14):
            a("s_waitcnt lgkmcnt(%d)" % (6 if s < 7 else 13 - s))
            self.mfma(AC, HF + 4 * (s % 7), GF + 4 * s, s == 0)
            if s < 7:
                a("ds_read_b128 v[%d:%d], v21 offset:%d" % (HF + 4 * s, HF + 4 * s + 3, (s + 7) * 64))
        a("s_nop 7")
        a("v_cvt_pk_bf16_f32 v28, v24, v24")
        a("v_lshlrev_b32 v28, 16, v28")
        a("v_mul_f32 v29, s61, v28")
        a("v_exp_f32 v29, v29")
        a("v_mov_b32_dpp v30, v28 row_ror:8 row_mask:0xf bank_mask:0xf")
        a("v_add_f32 v29, 1.0, v29")
        a("v_rcp_f32 v29, v29")
        a("s_nop 0")
        a("v_mul_f32 v29, v28, v29")
        a("v_cvt_pk_bf16_f32 v29, v29, v29")
        a("v_lshlrev_b32 v29, 16, v29")
        a("v_mul_f32 v29, v29, v30")
        a("v_cvt_pk_bf16_f32 v29, v29, v29")
        a("ds_write_b16 v7, v29")
        a("s_waitcnt lgkmcnt(0)")
        a("s_barrier")
        for n in range(4):
            a("ds_read_b128 v[%d:%d], v%d" % (HF + 4 * n, HF + 4 * n + 3, 16 + n))
        for pp in range(2):
            for n in range(4):
                if pp == 0:
                    a("s_waitcnt lgkmcnt(%d)" % (3 - n))
                self.mfma(24 + 4 * pp, HF + 4 * n, DF + 16 * pp + 4 * n, n == 0)
        a("s_nop 3")
        for k in range(4):
            a("v_min_u32 v%d, -2, v%d" % (24 + k, 24 + k))
        a("buffer_store_dwordx4 v[24:27], v23, s[48:51], s69 offen sc1")
        for k in range(4):
            a("v_min_u32 v%d, -2, v%d" % (28 + k, 28 + k))
        a("buffer_store_dwordx4 v[28:31], v23, s[48:51], s70 offen sc1")
        self.stamp(10)
        self.finish()


HEADER = """; Fused pre-LN decode block: sliding-window GQA attention + SwiGLU FFN in one launch (generated by gen_kernel.py).
"""


def generate(cfg):
    body = Gen(cfg).build()
    return f"""{HEADER}; @launch grid=(256,1,1) block=(512,1,1) lds={LDS_TOTAL}
.amdgcn_target "amdgcn-amd-amdhsa--gfx950"
.text
.globl {NAME}
.p2align {cfg.align}
.type {NAME},@function
{NAME}:
{body}
.section .rodata,"a"
.p2align 6
.amdhsa_kernel {NAME}
  .amdhsa_next_free_vgpr 192
  .amdhsa_next_free_sgpr 96
  .amdhsa_accum_offset 192
  .amdhsa_group_segment_fixed_size 0
  .amdhsa_kernarg_size 96
  .amdhsa_user_sgpr_count 2
  .amdhsa_user_sgpr_kernarg_segment_ptr 1
  .amdhsa_system_sgpr_workgroup_id_x 1
  .amdhsa_float_denorm_mode_32 3
.end_amdhsa_kernel
"""


if __name__ == "__main__":
    cfg = Cfg()
    out = sys.argv[1]
    for kv in sys.argv[2:]:
        k, v = kv.split("=")
        cur = getattr(cfg, k)
        setattr(cfg, k, (v == "1") if isinstance(cur, bool) else type(cur)(v))
    open(out, "w").write(generate(cfg))
```

```python
import sys
import gen_kernel as G
def mk(name, X, **kw):
    cfg = G.Cfg()
    for k, v in kw.items(): setattr(cfg, k, v)
    t = G.generate(cfg)
    t = t.replace("    s_load_dwordx8 s[32:39], s[0:1], 64\n", "    s_load_dwordx8 s[32:39], s[0:1], 64\n    s_memrealtime s[72:73]\n", 1)
    old = "    v_add_f32 v22, v28, v22\n"
    assert t.count(old) == 1
    new = old + """L_PAD:
    s_memrealtime s[74:75]
    s_waitcnt lgkmcnt(0)
    s_sub_u32 s74, s74, s72
    s_cmp_lt_u32 s74, %d
    s_cbranch_scc1 L_PAD
""" % (X*100)
    t = t.replace(old, new)
    return t
open("mb/pad_a.s", "w").write(mk("a", 24))
open("mb/pad_b.s", "w").write(mk("b", 24, fast=False))
t = mk("c", 24).replace("buffer_store_short v22, v18, s[44:47], s69 offen", "buffer_store_short v22, v18, s[44:47], s69 offen sc1")
open("mb/pad_c.s", "w").write(t)
open("mb/pad_d.s", "w").write(mk("d", 24, align=8))
t = mk("e", 24).replace("buffer_store_short v22, v18, s[44:47], s69 offen", "buffer_store_short v22, v18, s[44:47], s69 offen sc0 sc1")
open("mb/pad_e.s", "w").write(t)
cfg = G.Cfg(); cfg.tkv = 4; cfg.tkv2 = 7
open("mb/cur.s", "w").write(G.generate(cfg))
```

```python
import sys
from asmgen import Asm, NAME

WS_EPOCH = 0x0
WS_GOK = 0x1000
WS_Q = 0x2000
WS_FF = 0x1800
WS_QF = 0x1A0000
WS_O = 0x20000
WS_H = 0x60000
WS_FLAGS = 0x70000
WS_ST = 0x78000
WS_A = 0x80000
WS_C = 0x100000
WS_TS = 0x1C0000
WS_SIZE = 0x200000
NF = 56
HREP_STRIDE = 8192
OOB = 0x40000000

RING = 0
BIG = 65536
GT = BIG
UT = BIG + 28672
DT = BIG + 57344
SH = 151552
XN = SH
XN_STR = 960
QS = SH + 3840
QS_STR = 576
SCL = SH + 4992
PS = SH + 5632
PS_STR = 320
ACT = SH + 6272
DUMP = SH + 6528
ZERO = SH + 6592
FL = SH + 6848
LDS_TOTAL = SH + 6912
F_TAG, F_XN, F_Q, F_SC, F_P, F_VD, F_KD, F_CO, F_WO, F_WQ, F_VI = 0, 4, 8, 12, 16, 20, 24, 28, 32, 36, 40

LOG2E = 1.4426950408889634
NWAVES = 8


def f32(x):
    import struct
    return "0x%08x" % struct.unpack("<I", struct.pack("<f", x))[0]


class Cfg:
    diag = False
    pol_kv = "nt"
    pol_wq = "nt"
    pol_wo = "nt"
    pol_ffn = "nt"
    pol_pf = ""
    tkv = 4
    thi = 8
    tkv2 = 7
    ramp_at = 16
    fast_n = 8
    decor = True
    kd_at = 5
    wo_thr = 6
    hrep = 4
    poll_max = 1 << 20
    ffn_n1 = 0
    ffn_thr = 4
    fast = True
    code_pf = True
    wq_pf = True
    wq_pf_n = 0
    ffn_pf = True
    pf_rows = 32
    align = 12
    gok_wait = True
    ffn_delay = 0
    st2_hi_at = 99
    fold = True
    wo_early = 4


class Gen:
    def __init__(self, cfg):
        self.c = cfg
        self.a = Asm()
        self.uid = 0

    def lbl(self, base):
        self.uid += 1
        return "L_%s_%d" % (base, self.uid)

    def stamp(self, k):
        if self.c.diag:
            a = self.a
            a("s_memrealtime s[%d:%d]" % (72 + 2 * k, 73 + 2 * k))
            a("s_waitcnt lgkmcnt(0)")

    def stamps_init(self):
        if self.c.diag:
            for k in range(12):
                self.a("s_mov_b32 s%d, 0" % (72 + 2 * k))

    def finish(self):
        a = self.a
        if self.c.diag:
            a("s_branch L_DIAG_END")
        else:
            a("s_endpgm")

    def srd(self, d, ptr, off_sreg, nrec):
        a = self.a
        if off_sreg is None:
            a("s_mov_b32 s%d, s%d" % (d, ptr))
            a("s_mov_b32 s%d, s%d" % (d + 1, ptr + 1))
        else:
            a("s_add_u32 s%d, s%d, %s" % (d, ptr, off_sreg))
            a("s_addc_u32 s%d, s%d, 0" % (d + 1, ptr + 1))
        a("s_mov_b32 s%d, %d" % (d + 2, nrec))
        a("s_mov_b32 s%d, 0x20000" % (d + 3))

    def dma(self, voff, srd, soff, m0, pol):
        a = self.a
        if isinstance(m0, tuple):
            a("s_add_u32 m0, %s, %d" % m0)
        else:
            a("s_mov_b32 m0, %d" % m0)
        if isinstance(soff, tuple):
            a("s_add_u32 s15, %s, %d" % soff)
        else:
            a("s_mov_b32 s15, %d" % soff)
        a("buffer_load_dwordx4 %s, s[%d:%d], s15 offen%s lds" % (voff, srd, srd + 3, (" " + pol) if pol else ""))

    def wait_flag(self, vfl, off, n, vt, sleep=0):
        a = self.a
        l = self.lbl("wf")
        a.label(l)
        if sleep:
            a("s_sleep %d" % sleep)
        a("ds_read_b32 %s, %s offset:%d" % (vt, vfl, off))
        a("s_waitcnt lgkmcnt(0)")
        a("v_readfirstlane_b32 s14, %s" % vt)
        a("s_cmp_ge_u32 s14, %d" % n)
        a("s_cbranch_scc0 %s" % l)

    def signal(self, vfl, off, vone):
        a = self.a
        a("s_mov_b64 exec, 1")
        a("ds_add_u32 %s, %s offset:%d" % (vfl, vone, off))
        a("s_mov_b64 exec, -1")

    def tr_addrs(self, dst, base_sreg_or_int, t0, t1, t2):
        a = self.a
        a("v_lshrrev_b32 %s, 2, v0" % t0)
        a("v_bfe_u32 %s, v0, 3, 2" % t1)
        a("v_and_b32 %s, 3, v0" % t2)
        a("v_lshlrev_b32 %s, 7, %s" % (t0, t0))
        a("v_lshl_add_u32 %s, %s, 3, %s" % (t0, t2, t0))
        a("v_add_u32 %s, %s, %s" % (t0, base_sreg_or_int, t0))
        for n in range(4):
            a("v_xor_b32 %s, %d, %s" % (t2, n, t1))
            a("v_lshl_add_u32 v%d, %s, 5, %s" % (dst + n, t2, t0))

    def tile_reads(self, dst, addr0, off):
        a = self.a
        for n in range(4):
            for hh in range(2):
                r = dst + 4 * n + 2 * hh
                a("ds_read_b64_tr_b16 v[%d:%d], v%d offset:%d" % (r, r + 1, addr0 + n, off + hh * 2048))

    def mfma(self, d, A, B, first):
        self.a("v_mfma_f32_16x16x32_bf16 v[%d:%d], v[%d:%d], v[%d:%d], %s" % (
            d, d + 3, A, A + 3, B, B + 3, "0" if first else "v[%d:%d]" % (d, d + 3)))

    def wave_reduce2(self, op, x, y):
        a = self.a
        for ctl in ("row_shr:1", "row_shr:2", "row_shr:4", "row_shr:8"):
            a("s_nop 0")
            for r in (x, y):
                a("%s_dpp %s, %s, %s %s row_mask:0xf bank_mask:0xf" % (op, r, r, r, ctl))
        for ctl in ("row_bcast:15 row_mask:0xa", "row_bcast:31 row_mask:0xc"):
            a("s_nop 0")
            for r in (x, y):
                a("%s_dpp %s, %s, %s %s bank_mask:0xf" % (op, r, r, r, ctl))

    def wave_reduce1(self, op, x):
        a = self.a
        for ctl in ("row_shr:1", "row_shr:2", "row_shr:4", "row_shr:8"):
            a("s_nop 1")
            a("%s_dpp %s, %s, %s %s row_mask:0xf bank_mask:0xf" % (op, x, x, x, ctl))
        for ctl in ("row_bcast:15 row_mask:0xa", "row_bcast:31 row_mask:0xc"):
            a("s_nop 1")
            a("%s_dpp %s, %s, %s %s bank_mask:0xf" % (op, x, x, x, ctl))

    def layernorm(self, src, f, t):
        a = self.a
        for k in range(4):
            a("v_lshlrev_b32 v%d, 16, v%d" % (f + 2 * k, src + k))
            a("v_and_b32 v%d, 0xffff0000, v%d" % (f + 2 * k + 1, src + k))
        a("v_readfirstlane_b32 s56, v%d" % f)
        a("v_mov_b32 v%d, 0" % (t + 8))
        a("v_mov_b32 v%d, 0" % (t + 9))
        a("s_mov_b32 exec_hi, 0x00ffffff")
        for k in range(4):
            a("v_pk_add_f32 v[%d:%d], v[%d:%d], s[56:57] op_sel_hi:[1,0] neg_lo:[0,1] neg_hi:[0,1]" % (
                t + 2 * k, t + 2 * k + 1, f + 2 * k, f + 2 * k + 1))
        a("v_pk_mul_f32 v[%d:%d], v[%d:%d], v[%d:%d]" % (t + 10, t + 11, t, t + 1, t, t + 1))
        for k in range(1, 4):
            a("v_pk_fma_f32 v[%d:%d], v[%d:%d], v[%d:%d], v[%d:%d]" % (
                t + 10, t + 11, t + 2 * k, t + 2 * k + 1, t + 2 * k, t + 2 * k + 1, t + 10, t + 11))
        a("v_pk_add_f32 v[%d:%d], v[%d:%d], v[%d:%d]" % (t, t + 1, t, t + 1, t + 2, t + 3))
        a("v_pk_add_f32 v[%d:%d], v[%d:%d], v[%d:%d]" % (t + 4, t + 5, t + 4, t + 5, t + 6, t + 7))
        a("v_pk_add_f32 v[%d:%d], v[%d:%d], v[%d:%d]" % (t, t + 1, t, t + 1, t + 4, t + 5))
        a("v_add_f32 v%d, v%d, v%d" % (t + 9, t + 10, t + 11))
        a("v_add_f32 v%d, v%d, v%d" % (t + 8, t, t + 1))
        a("s_mov_b64 exec, -1")
        S, Q = "v%d" % (t + 8), "v%d" % (t + 9)
        a("s_nop 0")
        self.wave_reduce2("v_add_f32", Q, S)
        a("s_nop 0")
        a("v_readlane_b32 s58, %s, 63" % Q)
        a("v_readlane_b32 s57, %s, 63" % S)
        a("v_mov_b32 v%d, %s" % (t + 2, f32(1.0 / 448)))
        a("v_mul_f32 v%d, s58, v%d" % (t + 1, t + 2))
        a("v_mul_f32 v%d, s57, v%d" % (t, t + 2))
        a("v_fma_f32 v%d, -v%d, v%d, v%d" % (t + 1, t, t, t + 1))
        a("v_add_f32 v%d, s56, v%d" % (t, t))
        a("v_max_f32 v%d, 0, v%d" % (t + 1, t + 1))
        a("v_cvt_pk_bf16_f32 v%d, v%d, v%d" % (t + 2, t, t + 1))
        a("v_and_b32 v%d, 0xffff0000, v%d" % (t + 1, t + 2))
        a("v_lshlrev_b32 v%d, 16, v%d" % (t, t + 2))
        a("v_add_f32 v%d, %s, v%d" % (t + 1, f32(1e-5), t + 1))
        a("v_cvt_pk_bf16_f32 v%d, v%d, v%d" % (t + 1, t + 1, t + 1))
        a("v_lshlrev_b32 v%d, 16, v%d" % (t + 1, t + 1))
        a("v_sqrt_f32 v%d, v%d" % (t + 1, t + 1))
        for k in range(4):
            a("v_pk_add_f32 v[%d:%d], v[%d:%d], v[%d:%d] op_sel_hi:[1,0] neg_lo:[0,1] neg_hi:[0,1]" % (
                f + 2 * k, f + 2 * k + 1, f + 2 * k, f + 2 * k + 1, t, t + 1))
        a("v_cvt_pk_bf16_f32 v%d, v%d, v%d" % (t + 2, t + 1, t + 1))
        a("v_lshlrev_b32 v%d, 16, v%d" % (t + 2, t + 2))
        a("v_rcp_f32 v%d, v%d" % (t + 2, t + 2))
        for k in range(4):
            a("v_cvt_pk_bf16_f32 v%d, v%d, v%d" % (src + k, f + 2 * k, f + 2 * k + 1))
        for k in range(4):
            a("v_lshlrev_b32 v%d, 16, v%d" % (f + 2 * k, src + k))
            a("v_and_b32 v%d, 0xffff0000, v%d" % (f + 2 * k + 1, src + k))
        for k in range(4):
            a("v_pk_mul_f32 v[%d:%d], v[%d:%d], v[%d:%d] op_sel_hi:[1,0]" % (
                f + 2 * k, f + 2 * k + 1, f + 2 * k, f + 2 * k + 1, t + 2, t + 3))
        for k in range(4):
            a("v_cvt_pk_bf16_f32 v%d, v%d, v%d" % (src + k, f + 2 * k, f + 2 * k + 1))

    def inbox_reduce(self, nl, voff, soff, L, T, out):
        a = self.a
        top, ok, chk = self.lbl("rp"), self.lbl("rok"), self.lbl("rchk")
        a("s_mov_b32 s13, 0")
        a.label(top)
        for i in range(nl):
            if i < 4:
                a("buffer_load_dwordx4 v[%d:%d], %s, s[48:51], %s offen offset:%d sc1" % (L + 4 * i, L + 4 * i + 3, voff, soff[0], i * 1024))
            else:
                a("buffer_load_dwordx4 v[%d:%d], %s, s[48:51], %s offen offset:%d sc1" % (L + 4 * i, L + 4 * i + 3, voff, soff[1], (i - 4) * 1024))

        def padd(d, x, y):
            for h in (0, 2):
                a("v_pk_add_f32 v[%d:%d], v[%d:%d], v[%d:%d]" % (d + h, d + h + 1, x + h, x + h + 1, y + h, y + h + 1))
        for k in range(nl // 2):
            a("s_waitcnt vmcnt(%d)" % (nl - 2 - 2 * k))
            padd(T + 4 * k, L + 8 * k, L + 8 * k + 4)
        padd(T, T, T + 4)
        if nl == 8:
            padd(T + 8, T + 8, T + 12)
            padd(T, T, T + 8)
        elif nl == 7:
            a("s_waitcnt vmcnt(0)")
            padd(T + 8, T + 8, L + 24)
            padd(T, T, T + 8)
        a("s_nop 1")
        a("v_permlane16_swap_b32 v%d, v%d" % (T, T + 1))
        a("v_permlane16_swap_b32 v%d, v%d" % (T + 2, T + 3))
        a("v_add_f32 v%d, v%d, v%d" % (T, T, T + 1))
        a("v_add_f32 v%d, v%d, v%d" % (T + 2, T + 2, T + 3))
        a("s_nop 1")
        a("v_permlane32_swap_b32 v%d, v%d" % (T, T + 2))
        a("v_add_f32 v%d, v%d, v%d" % (T, T, T + 2))
        a("s_nop 1")
        a("v_add_f32_dpp %s, v%d, v%d row_ror:8 row_mask:0xf bank_mask:0xf" % (out, T, T))
        a("v_cmp_u_f32 vcc, %s, %s" % (out, out))
        a("s_cbranch_vccz %s" % ok)
        a("s_add_u32 s13, s13, 1")
        a("s_and_b32 s14, s13, 15")
        a("s_cbranch_scc1 %s" % top)
        regs = [L + i for i in range(4 * nl)]
        a("v_max_u32 v%d, v%d, v%d" % (T + 4, regs[0], regs[1]))
        for i in range(2, 4 * nl, 2):
            a("v_max3_u32 v%d, v%d, v%d, v%d" % (T + 4, T + 4, regs[i], regs[i + 1]))
        a("v_cmp_eq_u32 vcc, -1, v%d" % (T + 4))
        a("s_cbranch_vccz %s" % ok)
        a("s_cmp_lt_u32 s13, %d" % self.c.poll_max)
        a("s_cbranch_scc1 %s" % top)
        a.label(ok)

    def ld(self, voff, srd, pol):
        self.a("buffer_load_dwordx4 %s, s[%d:%d], s15 offen%s lds" % (voff, srd, srd + 3, (" " + pol) if pol else ""))

    def tile_loop(self, voffs, srd, n, step, pol, thr):
        a = self.a
        top = self.lbl("tl")
        a("s_movk_i32 s13, %d" % n)
        a.label(top)
        for v in voffs:
            self.ld(v[0], v[1] if srd is None else srd, pol)
            a("s_addk_i32 m0, %d" % v[2])
            if thr:
                a("s_waitcnt vmcnt(%d)" % (thr - 1))
            else:
                a("s_nop 0")
        a("s_add_u32 s15, s15, %d" % step)
        a("s_sub_u32 s13, s13, 1")
        a("s_cmp_lg_u32 s13, 0")
        a("s_cbranch_scc1 %s" % top)

    def build(self):
        a, c = self.a, self.c
        a("s_cmp_ge_u32 s2, 256")
        a("s_cbranch_scc1 L_END")
        a("s_load_dwordx16 s[16:31], s[0:1], 0")
        a("s_load_dwordx8 s[32:39], s[0:1], 64")
        self.stamps_init()
        if c.diag:
            a("s_memrealtime s[72:73]")
        a("v_lshrrev_b32 v1, 6, v0")
        a("v_and_b32 v0, 63, v0")
        a("v_readfirstlane_b32 s3, v1")
        a("s_lshr_b32 s5, s2, 3")
        a("s_cmp_lg_u32 s3, 1")
        a("s_cbranch_scc1 L_NOINIT")
        if c.code_pf:
            a("s_getpc_b64 s[56:57]")
            a.label("L_PC")
            a("s_sub_u32 s56, s56, L_PC-%s" % NAME)
            a("s_subb_u32 s57, s57, 0")
            a("v_and_b32 v6, 3, v0")
            a("v_lshl_add_u32 v6, s5, 2, v6")
            a("v_lshlrev_b32 v6, 7, v6")
            a("v_min_u32 v6, L_END-%s, v6" % NAME)
            a("global_load_dword v47, v6, s[56:57]")
        a("v_min_u32 v6, 39, v0")
        a("v_lshlrev_b32 v6, 3, v6")
        a("v_add_u32 v6, %d, v6" % ZERO)
        a("v_mov_b32 v12, 0")
        a("v_mov_b32 v13, 0")
        a("ds_write_b64 v6, v[12:13]")
        a.label("L_NOINIT")
        a("s_and_b32 s4, s2, 7")
        a("s_lshr_b32 s6, s2, 6")
        a("s_and_b32 s7, s5, 7")
        a("s_lshl_b32 s10, s6, 3")
        a("s_add_u32 s10, s10, s4")
        a("s_lshl_b32 s9, s4, 2")
        a("s_add_u32 s8, s9, s6")
        a("s_and_b32 s11, s3, 3")
        a("s_mov_b32 s66, 2")
        a("s_cmp_lt_u32 s5, 29")
        a("s_cselect_b32 s66, 1, s66")
        a("s_cmp_lt_u32 s5, 22")
        a("s_cselect_b32 s66, 3, s66")
        a("s_cmp_lt_u32 s5, 8")
        a("s_cselect_b32 s66, 0, s66")
        a("s_lshr_b32 s70, s5, 2")
        a("s_add_u32 s70, s70, s4")
        a("s_and_b32 s70, s70, %d" % (3 if c.decor else 0))
        a("s_lshl_b32 s70, s70, 7")
        a("s_cmp_lt_u32 s3, 4")
        a("s_cbranch_scc1 L_SROLE")
        self.k_early()
        self.s_early()
        self.k_main()
        self.k_scores()
        self.s0_late()
        self.s1_late()
        self.s2_late()
        self.stage2()
        self.reducer()
        self.ffn()
        if c.diag:
            a.label("L_DIAG_END")
            a("s_memrealtime s[94:95]")
            a("s_waitcnt lgkmcnt(0)")
            a("s_mov_b64 exec, -1")
            for k in range(12):
                a("v_mov_b32 v%d, s%d" % (4 + k, 72 + 2 * k))
            a("s_mul_i32 s14, s2, 12")
            a("s_add_u32 s14, s14, s3")
            a("s_lshl_b32 s14, s14, 6")
            a("s_add_u32 s14, s14, %d" % WS_TS)
            a("v_mov_b32 v1, 0")
            a("s_mov_b64 exec, 1")
            for k in range(3):
                a("buffer_store_dwordx4 v[%d:%d], v1, s[48:51], s14 offen offset:%d" % (4 + 4 * k, 7 + 4 * k, 16 * k))
            a("s_waitcnt vmcnt(0)")
        a.label("L_END")
        a("s_endpgm")
        return a.text()

    def k_issue(self, i):
        a, c = self.a, self.c
        lo = c.tkv if i < c.ramp_at + c.tkv else c.tkv2
        if i >= lo and lo < c.thi:
            skip = self.lbl("thr")
            a("s_cbranch_vccz %s" % skip)
            a("s_waitcnt vmcnt(%d)" % (lo - 1))
            a.label(skip)
        if i & 15:
            a("s_addk_i32 m0, 1024")
        else:
            a("s_mov_b32 m0, s12")
        if i < 16:
            u, dseg, half = i >> 3, (i >> 1) & 3, i & 1
            a("s_xor_b32 s15, s62, %d" % (u * 8192 + dseg * 128))
            self.ld("v2" if half else "v1", 40, c.pol_kv)
        else:
            a("s_xor_b32 s15, s63, %d" % ((i - 16) * 4096))
            self.ld("v3", 44, c.pol_kv)

    def k_early(self):
        a, c = self.a, self.c
        T = c.tkv
        a("v_lshrrev_b32 v13, 3, v0")
        a("v_and_b32 v14, 7, v0")
        a("v_lshrrev_b32 v15, 1, v13")
        a("v_xor_b32 v1, v14, v15")
        a("v_lshlrev_b32 v1, 4, v1")
        a("v_lshl_add_u32 v1, v13, 9, v1")
        a("v_xor_b32 v2, 64, v1")
        a("v_add_u32 v2, 4096, v2")
        a("v_lshlrev_b32 v3, 1, v15")
        a("v_xor_b32 v3, v14, v3")
        a("v_lshlrev_b32 v3, 4, v3")
        a("v_lshl_add_u32 v3, v13, 9, v3")
        a("v_mov_b32 v13, %d" % FL)
        a("s_lshl_b32 s12, s11, 14")
        a("s_lshl_b32 s56, s10, 21")
        a("s_add_u32 s56, s56, 0x180000")
        a("s_lshl_b32 s57, s7, 16")
        a("s_add_u32 s56, s56, s57")
        a("s_lshl_b32 s63, s4, 1")
        a("s_add_u32 s63, s63, s5")
        a("s_and_b32 s63, s63, %d" % (15 if c.decor else 0))
        a("s_lshl_b32 s63, s63, 12")
        a("s_and_b32 s62, s63, 0x2000")
        a("s_or_b32 s62, s62, s70")
        a("s_and_b32 s57, s63, 0x1000")
        a("v_xor_b32 v1, s57, v1")
        a("v_xor_b32 v2, s57, v2")
        a("s_and_b32 s57, s63, 0xc000")
        a("s_xor_b32 s57, s57, s12")
        a("s_add_u32 s57, s56, s57")
        a("s_lshl_b32 s58, s11, 7")
        a("s_add_u32 s58, s58, s56")
        a("s_waitcnt lgkmcnt(0)")
        self.srd(40, 18, "s57", 16384)
        a("s_cmp_lg_u32 s66, 0")
        a("s_cbranch_scc0 L_K_Q")
        for i in range(T):
            self.k_issue(i)
        self.stamp(7)
        a("s_barrier")
        a("s_branch L_KMAIN")
        a.label("L_K_Q")
        a("v_bfe_u32 v16, v0, 3, 2")
        a("v_lshrrev_b32 v17, 5, v0")
        a("v_lshl_add_u32 v16, v17, 3, v16")
        a("v_and_b32 v17, 0x70, v3")
        a("v_lshl_add_u32 v16, v16, 13, v17")
        a("s_lshl_b32 s56, s4, 10")
        a("s_lshl_b32 s57, s5, 7")
        a("s_add_u32 s56, s56, s57")
        self.srd(52, 22, "s56", 447 * 8192 + 128)
        a("s_lshl_b32 s14, s11, 10")
        a("s_add_u32 m0, s14, %d" % BIG)
        a("s_and_b32 s15, s11, 1")
        a("s_lshl_b32 s15, s15, 17")
        a("s_lshr_b32 s14, s11, 1")
        a("s_lshl_b32 s14, s14, 15")
        a("s_add_u32 s15, s15, s14")
        self.tile_loop([("v16", 52, 4096)], 52, 6, 32 * 8192, c.pol_wq, 0)
        a("s_barrier")
        self.tile_loop([("v16", 52, 4096)], 52, 8, 32 * 8192, c.pol_wq, 0)
        for i in range(T):
            self.k_issue(i)
        self.stamp(7)
        a("s_branch L_KMAIN")

    def k_main(self):
        a, c = self.a, self.c
        KF, VF, QF, SA = 16, 80, 144, 176
        PF, AC, PK = 16, 48, 56
        T = c.tkv
        a.label("L_KMAIN")
        self.srd(44, 20, "s58", 127 * 512 + 128)
        self.srd(48, 38, None, WS_SIZE)
        a("v_and_b32 v189, 15, v0")
        a("v_lshrrev_b32 v14, 4, v0")
        a("v_lshrrev_b32 v15, 1, v189")
        a("v_xor_b32 v4, v14, v15")
        a("v_lshlrev_b32 v4, 4, v4")
        a("v_lshl_add_u32 v4, v189, 7, v4")
        a("v_add_u32 v4, s12, v4")
        a("v_xor_b32 v5, 64, v4")
        a("v_and_b32 v15, 1, v0")
        a("v_mul_u32_u24 v10, %d, v15" % QS_STR)
        a("v_lshl_add_u32 v10, v14, 4, v10")
        a("v_add_u32 v10, %d, v10" % QS)
        a("v_mul_u32_u24 v11, %d, v15" % PS_STR)
        a("v_lshl_add_u32 v11, v14, 4, v11")
        a("s_lshl_b32 s14, s11, 6")
        a("s_add_u32 s14, s14, %d" % SCL)
        a("v_add_u32 v12, s14, v11")
        a("v_add_u32 v11, %d, v11" % PS)
        a("v_mov_b32 v184, %d" % ZERO)
        a("v_and_b32 v185, 2, v0")
        a("v_cmp_eq_u32 vcc, 0, v185")
        a("v_lshlrev_b32 v188, 13, v15")
        a("v_lshl_add_u32 v188, v14, 9, v188")
        a("v_cndmask_b32 v186, v184, v11, vcc")
        a("v_cndmask_b32 v187, v11, v184, vcc")
        a("v_lshl_add_u32 v188, v185, 7, v188")
        a("v_mov_b32 v184, %d" % OOB)
        a("v_cmp_gt_u32 vcc, 4, v189")
        a("s_lshr_b32 s59, s8, 1")
        a("s_lshl_b32 s59, s59, 14")
        a("v_cndmask_b32 v188, v184, v188, vcc")
        a("s_lshl_b32 s14, s11, 11")
        a("s_add_u32 s59, s59, s14")
        a("s_and_b32 s14, s5, 15")
        a("s_lshl_b32 s14, s14, 4")
        a("s_add_u32 s59, s59, s14")
        a("s_add_u32 s59, s59, %d" % WS_O)
        self.tr_addrs(6, "s12", "v189", "v14", "v15")
        a("v_mov_b32 v14, 1")
        a("s_mov_b32 s60, 0")
        a("s_cmp_lg_u32 s66, 0")
        a("s_cselect_b64 vcc, -1, 0")
        TH = c.thi
        for i in range(T, TH):
            self.k_issue(i)
        a("s_waitcnt vmcnt(%d)" % TH)
        self.signal("v13", F_WQ, "v14")
        nxt = TH
        last_issue = 31 - TH
        block_at = max(15, last_issue | 1)
        for i in range(28):
            grp_end = (i & 1) == 1 if i < 16 else (i & 3) == 3
            if nxt <= 31 or grp_end:
                a("s_waitcnt vmcnt(%d) lgkmcnt(0)" % (nxt - 1 - i))
            if i == 0:
                self.stamp(8)
            if i == c.st2_hi_at:
                a("s_cmp_eq_u32 s66, 3")
                a("s_cselect_b64 vcc, 0, vcc")
            if grp_end:
                if i < 16:
                    for tt in range(2):
                        r = KF + 4 * (i - 1 + tt)
                        a("ds_read_b128 v[%d:%d], v%d offset:%d" % (r, r + 3, 4 + tt, (i - 1) * 1024))
                else:
                    s = (i - 16) >> 2
                    self.tile_reads(VF + 16 * s, 6, s * 4096)
            if i == c.kd_at:
                self.signal("v13", F_KD, "v14")
            if i == 15:
                self.stamp(1)
            def check(blocking):
                skip = self.lbl("kchk")
                a("s_cmp_lg_u32 s60, 0")
                a("s_cbranch_scc1 %s" % skip)
                if blocking:
                    self.wait_flag("v13", F_Q, 1, "v15")
                else:
                    a("ds_read_b32 v15, v13 offset:%d" % F_Q)
                    a("s_waitcnt lgkmcnt(0)")
                    a("v_readfirstlane_b32 s14, v15")
                    a("s_cmp_eq_u32 s14, 0")
                    a("s_cbranch_scc1 %s" % skip)
                a("s_call_b64 s[64:65], L_SCORES")
                a.label(skip)
            if 15 <= i <= last_issue:
                check(False)
            if nxt <= 31:
                self.k_issue(nxt)
                nxt += 1
                if nxt == 32 and c.wo_early < 4:
                    self.signal("v13", F_VI, "v14")
            if i == max(15, last_issue):
                check(True)
        assert nxt == 32
        self.wait_flag("v13", F_CO, 1, "v15")
        a("s_mov_b32 s61, s14")
        self.wait_flag("v13", F_P, 1, "v15")
        self.stamp(4)
        for s in range(4):
            for hv in range(2):
                r = PF + 8 * s + 4 * hv
                a("ds_read_b128 v[%d:%d], v%d offset:%d" % (r, r + 3, 186 + hv, s * 64))
        for s in range(3):
            for n in range(4):
                if n % 2 == 0:
                    a("s_waitcnt lgkmcnt(%d)" % (7 - 2 * s - (n >> 1)))
                self.mfma(AC + 4 * (n & 1), VF + 16 * s + 4 * n, PF + 8 * s + 4 * (n >> 1), s == 0 and n < 2)
        a("s_waitcnt vmcnt(0)")
        self.stamp(5)
        self.tile_reads(VF + 48, 6, 3 * 4096)
        for n in range(4):
            a("s_waitcnt lgkmcnt(%d)" % (6 - 2 * n))
            self.mfma(AC + 4 * (n & 1), VF + 48 + 4 * n, PF + 24 + 4 * (n >> 1), False)
        a("s_cmp_eq_u32 s61, 2")
        a("s_nop 4")
        a("v_cvt_pk_bf16_f32 v%d, v%d, v%d" % (PK, AC, AC + 1))
        a("v_cvt_pk_bf16_f32 v%d, v%d, v%d" % (PK + 1, AC + 2, AC + 3))
        a("v_cvt_pk_bf16_f32 v%d, v%d, v%d" % (PK + 2, AC + 4, AC + 5))
        a("v_cvt_pk_bf16_f32 v%d, v%d, v%d" % (PK + 3, AC + 6, AC + 7))
        for k in range(4):
            a("v_min_u32 v%d, -2, v%d" % (PK + k, PK + k))
        a("s_cbranch_scc0 L_K_SLOWST")
        a("buffer_store_dwordx4 v[%d:%d], v188, s[48:51], s59 offen" % (PK, PK + 3))
        a("s_branch L_K_STDONE")
        a.label("L_K_SLOWST")
        a("buffer_store_dwordx4 v[%d:%d], v188, s[48:51], s59 offen sc1" % (PK, PK + 3))
        a.label("L_K_STDONE")
        self.signal("v13", F_VD, "v14")
        self.stamp(6)
        self.finish()

    def k_scores(self):
        a, c = self.a, self.c
        KF, VF, QF, SA = 16, 80, 144, 176
        a.label("L_SCORES")
        self.stamp(2)
        for t in range(8):
            a("ds_read_b128 v[%d:%d], v10 offset:%d" % (QF + 4 * t, QF + 4 * t + 3, t * 64))
        for t in range(8):
            a("s_waitcnt lgkmcnt(%d)" % (7 - t))
            for u in range(2):
                self.mfma(SA + 4 * u, KF + 4 * (u * 8 + t), QF + 4 * t, t == 0)
        a("s_mov_b32 s60, 1")
        a("s_nop 6")
        for k in range(4):
            a("v_cvt_pk_bf16_f32 v%d, v%d, v%d" % (QF + k, SA + 2 * k, SA + 2 * k + 1))
        a("s_mov_b32 exec_lo, 0x00030003")
        a("s_mov_b32 exec_hi, 0x00030003")
        a("ds_write_b128 v12, v[%d:%d]" % (QF, QF + 3))
        self.signal("v13", F_SC, "v14")
        self.stamp(3)
        a("s_setpc_b64 s[64:65]")

    def s_early(self):
        a, c = self.a, self.c
        a.label("L_SROLE")
        a("s_setprio 2")
        a("v_mov_b32 v2, %d" % FL)
        a("v_mov_b32 v3, 1")
        a("v_lshlrev_b32 v4, 4, v0")
        a("v_mov_b32 v5, %d" % OOB)
        a("v_cmp_gt_u32 vcc, 56, v0")
        a("s_mul_i32 s67, s11, 896")
        a("s_mul_i32 s62, s4, 7")
        a("s_add_u32 s62, s62, s5")
        a("s_sub_u32 s62, s62, 22")
        a("v_cndmask_b32 v5, v5, v4, vcc")
        a("v_and_b32 v17, 7, v0")
        a("v_bfe_u32 v18, v0, 4, 2")
        a("v_lshlrev_b32 v18, 1, v18")
        a("v_xor_b32 v17, v17, v18")
        a("v_lshlrev_b32 v17, 4, v17")
        a("v_bfe_u32 v16, v0, 3, 2")
        a("v_lshrrev_b32 v18, 5, v0")
        a("s_waitcnt lgkmcnt(0)")
        self.srd(48, 38, None, WS_SIZE)
        self.srd(52, 16, None, 3584)
        a("s_cmp_lg_u32 s66, 0")
        a("s_cbranch_scc1 L_S_NOX")
        a("buffer_load_dwordx4 v[8:11], v5, s[52:55], s67 offen")
        a.label("L_S_NOX")
        a("s_cmp_eq_u32 s11, 1")
        a("s_cbranch_scc1 L_S1")
        a("s_cmp_eq_u32 s11, 2")
        a("s_cbranch_scc1 L_S2")
        a("s_barrier")
        a("s_cmp_eq_u32 s11, 3")
        a("s_cbranch_scc1 L_S3")
        a("s_cmp_lg_u32 s66, 0")
        a("s_cbranch_scc1 L_S0_TAG")
        a("s_waitcnt vmcnt(0)")
        a("s_call_b64 s[64:65], L_LN1")
        a("s_branch L_S0_GATHER")
        a.label("L_S1")
        if c.wq_pf_n:
            a("s_cmp_lt_u32 s5, 22")
            a("s_cbranch_scc1 L_S1_NOWQ2")
            a("v_lshrrev_b32 v6, 3, v0")
            a("v_lshlrev_b32 v6, 13, v6")
            a("v_and_b32 v7, 7, v0")
            a("v_lshl_add_u32 v6, v7, 7, v6")
            a("s_sub_u32 s56, s5, 22")
            a("s_mul_i32 s56, s56, %d" % (c.wq_pf_n * 65536))
            a("s_add_u32 s56, s56, %d" % ((448 - 80 * c.wq_pf_n) * 8192))
            a("s_lshl_b32 s57, s4, 10")
            self.srd(40, 22, "s57", 447 * 8192 + 1024)
            for k in range(c.wq_pf_n):
                a("buffer_load_dword v%d, v6, s[40:43], s56 offen %s" % (40 + k, c.pol_pf))
                a("s_add_u32 s56, s56, 65536")
            a.label("L_S1_NOWQ2")
        if c.wq_pf:
            a("s_cmp_lg_u32 s66, 2")
            a("s_cbranch_scc1 L_S1_NOWQ")
            a("v_lshlrev_b32 v6, 13, v0")
            a("s_sub_u32 s56, s5, 28")
            a("s_lshl_b32 s56, s56, 20")
            a("s_lshl_b32 s57, s4, 10")
            a("s_add_u32 s57, s57, 384")
            self.srd(40, 22, "s57", 447 * 8192 + 128)
            a("buffer_load_dword v12, v6, s[40:43], s56 offen %s" % c.pol_pf)
            a("s_add_u32 s56, s56, %d" % (64 * 8192))
            a("buffer_load_dword v13, v6, s[40:43], s56 offen %s" % c.pol_pf)
            a.label("L_S1_NOWQ")
        a("s_barrier")
        a("s_cmp_lg_u32 s66, 0")
        a("s_cbranch_scc1 L_S1_SM")
        a("s_waitcnt vmcnt(0)")
        a("s_call_b64 s[64:65], L_LN1")
        a("s_branch L_S1_SM")
        a.label("L_S2")
        a("v_mov_b32 v19, 0")
        a("buffer_load_dword v7, v19, s[48:51], 0 offen sc1")
        for k in range(4):
            a("v_mov_b32 v%d, -1" % (12 + k))
        a("v_and_b32 v18, 7, v0")
        a("v_lshlrev_b32 v18, 4, v18")
        a("s_lshl_b32 s56, s4, 15")
        a("s_lshl_b32 s57, s5, 10")
        a("s_add_u32 s56, s56, s57")
        a("s_add_u32 s56, s56, %d" % WS_O)
        a("buffer_store_dwordx4 v[12:15], v4, s[48:51], s56 offen sc1")
        a("s_barrier")
        a("s_cmp_eq_u32 s66, 2")
        a("s_cbranch_scc0 L_S2_K")
        a("s_lshl_b32 s56, s4, 9")
        a("s_add_u32 s56, s56, %d" % WS_ST)
        a("s_cmp_eq_u32 s5, 31")
        a("s_cselect_b32 s56, s56, %d" % OOB)
        a("s_mov_b32 exec_hi, 0")
        a("buffer_store_dwordx4 v[12:15], v4, s[48:51], s56 offen sc1")
        a("s_branch L_S2_CLR")
        a.label("L_S2_K")
        a("s_cmp_eq_u32 s66, 0")
        a("s_cbranch_scc1 L_S2_H")
        a("s_cmp_eq_u32 s66, 1")
        a("s_cbranch_scc1 L_S2_C")
        a("v_lshrrev_b32 v16, 5, v0")
        a("v_mul_u32_u24 v16, 14, v16")
        a("v_bfe_u32 v17, v0, 4, 1")
        a("v_add_u32 v16, v16, v17")
        a("v_lshlrev_b32 v16, 12, v16")
        a("v_and_b32 v17, 15, v0")
        a("v_lshl_add_u32 v16, v17, 4, v16")
        a("s_sub_u32 s57, s5, 8")
        a("s_lshr_b32 s56, s57, 1")
        a("s_lshl_b32 s56, s56, 13")
        a("s_and_b32 s57, s57, 1")
        a("s_lshl_b32 s57, s57, 8")
        a("s_add_u32 s56, s56, s57")
        a("s_lshl_b32 s57, s4, 9")
        a("s_add_u32 s56, s56, s57")
        a("s_add_u32 s56, s56, %d" % WS_A)
        a("buffer_store_dwordx4 v[12:15], v16, s[48:51], s56 offen sc1")
        a("s_add_u32 s56, s56, %d" % (28 * 4096))
        a("buffer_store_dwordx4 v[12:15], v16, s[48:51], s56 offen sc1")
        a("s_branch L_S2_CLR")
        a.label("L_S2_C")
        a("v_lshrrev_b32 v17, 3, v0")
        a("v_mul_u32_u24 v16, %d, v17" % (NF * 128))
        a("v_add_u32 v16, v16, v18")
        a("s_lshl_b32 s56, s62, 7")
        a("s_add_u32 s56, s56, %d" % WS_C)
        for k in range(7):
            a("buffer_store_dwordx4 v[12:15], v16, s[48:51], s56 offen sc1")
            a("s_add_u32 s56, s56, %d" % (8 * NF * 128))
        a("s_branch L_S2_CLR")
        a.label("L_S2_H")
        a("v_lshrrev_b32 v17, 2, v0")
        a("v_mul_u32_u24 v16, %d, v17" % HREP_STRIDE)
        a("v_and_b32 v17, 3, v0")
        a("v_lshl_add_u32 v16, v17, 4, v16")
        a("s_lshl_b32 s56, s2, 7")
        a("s_add_u32 s56, s56, %d" % WS_H)
        a("s_mov_b32 exec_lo, 0x%x" % ((1 << (4 * c.hrep)) - 1))
        a("s_mov_b32 exec_hi, 0")
        a("buffer_store_dwordx4 v[12:15], v16, s[48:51], s56 offen sc1")
        a.label("L_S2_CLR")
        a("s_mov_b64 exec, -1")
        a("s_waitcnt vmcnt(2)")
        a("v_readfirstlane_b32 s68, v7")
        a("s_or_b32 s68, s68, 1")
        a("s_mul_i32 s68, s68, 0x9E3779B1")
        a("s_add_u32 s68, s68, 0x85EBCA6A")
        a("s_getreg_b32 s69, hwreg(HW_REG_XCC_ID)")
        a("s_and_b32 s69, s69, 15")
        a("v_mov_b32 v20, s68")
        a("v_mov_b32 v21, s69")
        a("s_mov_b64 exec, 1")
        a("ds_write_b32 v2, v20 offset:%d" % F_TAG)
        a("s_mov_b64 exec, -1")
        a("s_cmp_lg_u32 s66, 0")
        a("s_cbranch_scc1 L_S2_FLAG")
        a("s_call_b64 s[64:65], L_LN1")
        a("s_waitcnt vmcnt(2)")
        a("s_branch L_S2_FLAG2")
        a.label("L_S3")
        a("s_cmp_eq_u32 s66, 1")
        a("s_cbranch_scc1 L_S3_FFN")
        a("s_cmp_eq_u32 s66, 3")
        a("s_cbranch_scc0 L_S3_Q")
        a("v_lshl_add_u32 v20, v18, 5, v16")
        a("v_mul_u32_u24 v20, 896, v20")
        a("v_add_u32 v20, v20, v17")
        for k, rows in enumerate((4, 16, 20, 8, 12, 24, 28)):
            a("v_add_u32 v%d, %d, v20" % (21 + k, rows * 896))
        a("s_sub_u32 s57, s5, 8")
        a("s_and_b32 s56, s57, 1")
        a("s_lshl_b32 s58, s4, 1")
        a("s_add_u32 s56, s56, s58")
        a("s_mul_i32 s56, s56, %d" % (256 * 896))
        a("s_lshr_b32 s57, s57, 1")
        a("s_lshl_b32 s57, s57, 7")
        a("s_add_u32 s56, s56, s57")
        self.srd(52, 24, "s56", 255 * 896 + 128)
        a("s_mov_b32 m0, %d" % BIG)
        a("s_movk_i32 s15, 0")
        wv = [("v%d" % (20 + k), 52, 1024) for k in range(8)]
        if c.wo_early:
            self.tile_loop(wv, 52, c.wo_early, 64 * 896, c.pol_wo, c.wo_thr)
        if c.wo_early < 4:
            self.wait_flag("v2", F_VI, 4, "v28", sleep=1)
            self.tile_loop(wv, 52, 4 - c.wo_early, 64 * 896, c.pol_wo, 0)
        a("s_waitcnt vmcnt(0)")
        self.signal("v2", F_WO, "v3")
        self.stamp(1)
        a("s_branch L_STAGE2")
        a.label("L_S3_Q")
        a("s_cmp_lg_u32 s66, 0")
        a("s_cbranch_scc1 L_S3_PF")
        a("s_waitcnt vmcnt(0)")
        a("s_call_b64 s[64:65], L_LN1")
        a("s_branch L_S3_PF")
        a.label("L_LN1")
        self.layernorm(8, 24, 32)
        a("s_mul_i32 s14, s11, %d" % XN_STR)
        a("s_add_u32 s14, s14, %d" % XN)
        a("v_add_u32 v6, s14, v4")
        a("s_mov_b32 exec_hi, 0x00ffffff")
        a("ds_write_b128 v6, v[8:11]")
        self.signal("v2", F_XN, "v3")
        XF, WF, AC = 48, 104, 160
        a("v_lshrrev_b32 v24, 2, v0")
        a("v_bfe_u32 v25, v0, 3, 2")
        a("v_and_b32 v26, 3, v0")
        a("v_lshlrev_b32 v24, 7, v24")
        a("v_lshl_add_u32 v24, v26, 3, v24")
        a("v_xor_b32 v25, s11, v25")
        a("v_lshl_add_u32 v24, v25, 5, v24")
        a("v_add_u32 v24, %d, v24" % BIG)
        a("v_lshrrev_b32 v25, 4, v0")
        a("v_mul_u32_u24 v6, %d, v26" % XN_STR)
        a("v_lshl_add_u32 v6, v25, 4, v6")
        a("v_add_u32 v6, %d, v6" % XN)
        a("v_lshlrev_b32 v27, 14, v26")
        a("v_lshl_add_u32 v27, v25, 4, v27")
        a("s_lshl_b32 s56, s4, 11")
        a("s_lshl_b32 s57, s5, 8")
        a("s_add_u32 s56, s56, s57")
        a("s_lshl_b32 s57, s11, 6")
        a("s_add_u32 s56, s56, s57")
        a("s_add_u32 s56, s56, %d" % WS_Q)
        a("s_add_u32 s57, s56, %d" % (WS_QF - WS_Q))
        self.wait_flag("v2", F_XN, 4, "v28")
        for s in range(14):
            a("ds_read_b128 v[%d:%d], v6 offset:%d" % (XF + 4 * s, XF + 4 * s + 3, s * 64))
        self.wait_flag("v2", F_TAG, 1, "v28")
        a("v_mov_b32 v9, s14")
        a("v_mov_b32 v11, s14")
        self.stamp(9)
        self.wait_flag("v2", F_WQ, 4, "v28")
        for s in range(14 + 6):
            if s < 14:
                for hh in range(2):
                    r = WF + 4 * s + 2 * hh
                    a("ds_read_b64_tr_b16 v[%d:%d], v24 offset:%d" % (r, r + 1, s * 4096 + hh * 2048))
            p = s - 6
            if p >= 0:
                a("s_waitcnt lgkmcnt(%d)" % (2 * (min(s, 13) - p)))
                self.mfma(AC, WF + 4 * p, XF + 4 * p, p == 0)
        a("s_mov_b32 exec_lo, 0x000f000f")
        a("s_mov_b32 exec_hi, 0x000f000f")
        a("s_nop 5")
        a("v_cvt_pk_bf16_f32 v8, v%d, v%d" % (AC, AC + 1))
        a("v_cvt_pk_bf16_f32 v10, v%d, v%d" % (AC + 2, AC + 3))
        a("buffer_store_dwordx4 v[8:11], v27, s[48:51], s57 offen")
        a("buffer_store_dwordx4 v[8:11], v27, s[48:51], s56 offen sc1")
        a("s_mov_b64 exec, -1")
        self.stamp(10)
        a("s_setpc_b64 s[64:65]")

    def s_next(self):
        a = self.a
        a("s_cmp_eq_u32 s66, 3")
        a("s_cbranch_scc1 L_STAGE2")
        a("s_cmp_eq_u32 s66, 1")
        a("s_cbranch_scc1 L_FFN")
        self.finish()

    def s0_late(self):
        a, c = self.a, self.c
        a.label("L_S0_TAG")
        a.label("L_S0_GATHER")
        self.wait_flag("v2", F_TAG, 1, "v24", sleep=2)
        a("s_mov_b32 s68, s14")
        a("s_lshl_b32 s56, s10, 11")
        a("s_add_u32 s56, s56, %d" % WS_Q)
        a("v_lshlrev_b32 v7, 3, v0")
        a("v_xor_b32 v7, s70, v7")
        a("v_add_u32 v7, %d, v7" % QS)
        self.wait_flag("v2", F_KD, 4, "v24", sleep=1)
        a("s_add_u32 s57, s56, %d" % (WS_QF - WS_Q))
        a("s_mov_b32 s13, 1")
        a.label("L_QPOLL")
        a("s_and_b32 s14, s13, %d" % (c.fast_n - 1))
        a("s_cselect_b32 s58, s57, s56")
        a("buffer_load_dwordx4 v[8:11], v4, s[48:51], s58 offen sc1")
        a("buffer_load_dwordx4 v[12:15], v4, s[48:51], s58 offen offset:1024 sc1")
        a("s_waitcnt vmcnt(0)")
        a("v_xor_b32 v9, s68, v9")
        a("v_xor_b32 v11, s68, v11")
        a("v_xor_b32 v13, s68, v13")
        a("v_xor_b32 v15, s68, v15")
        a("v_or3_b32 v9, v9, v11, v13")
        a("v_or_b32 v9, v9, v15")
        a("v_cmp_ne_u32 vcc, 0, v9")
        a("s_cbranch_vccz L_QOK")
        a("s_add_u32 s13, s13, 1")
        a("s_cmp_lt_u32 s13, %d" % c.poll_max)
        a("s_cbranch_scc1 L_QPOLL")
        a.label("L_QOK")
        a("v_mov_b32 v9, v10")
        a("v_mov_b32 v13, v14")
        a("ds_write_b64 v7, v[8:9]")
        a("ds_write_b64 v7, v[12:13] offset:%d" % QS_STR)
        self.signal("v2", F_Q, "v3")
        self.stamp(4)
        self.s_next()

    def s1_late(self):
        a, c = self.a, self.c
        a.label("L_S1_SM")
        a("v_lshrrev_b32 v6, 5, v0")
        a("v_mul_u32_u24 v6, %d, v6" % PS_STR)
        a("v_and_b32 v7, 31, v0")
        a("v_lshl_add_u32 v6, v7, 3, v6")
        a("v_add_u32 v6, %d, v6" % SCL)
        a("v_cmp_gt_u32 s[58:59], 32, v0")
        a("s_mov_b32 s61, %s" % f32(0.0625 * LOG2E))
        a("s_lshr_b32 s56, s8, 1")
        a("s_lshl_b32 s56, s56, 8")
        a("s_and_b32 s57, s5, 15")
        a("s_lshl_b32 s57, s57, 3")
        a("s_add_u32 s56, s56, s57")
        a("s_add_u32 s56, s56, %d" % WS_ST)
        a("v_lshrrev_b32 v7, 5, v0")
        a("v_lshlrev_b32 v7, 7, v7")
        a("s_waitcnt vmcnt(0)")
        self.wait_flag("v2", F_SC, 4, "v24", sleep=1)
        self.stamp(2)
        a("ds_read_b64 v[8:9], v6")
        a("s_waitcnt lgkmcnt(0)")
        a("v_lshlrev_b32 v12, 16, v8")
        a("v_and_b32 v13, 0xffff0000, v8")
        a("v_lshlrev_b32 v14, 16, v9")
        a("v_and_b32 v15, 0xffff0000, v9")
        a("v_max3_f32 v16, v12, v13, v14")
        a("v_max_f32 v16, v16, v15")

        def half_reduce(op, x):
            for ctl in ("row_shr:1", "row_shr:2", "row_shr:4", "row_shr:8"):
                a("s_nop 1")
                a("%s_dpp %s, %s, %s %s row_mask:0xf bank_mask:0xf" % (op, x, x, x, ctl))
            a("s_nop 1")
            a("%s_dpp %s, %s, %s row_bcast:15 row_mask:0xa bank_mask:0xf" % (op, x, x, x))
            a("s_nop 0")
        half_reduce("v_max_f32", "v16")
        a("v_readlane_b32 s64, v16, 31")
        a("v_readlane_b32 s65, v16, 63")
        a("s_nop 1")
        a("v_mov_b32 v20, s64")
        a("v_mov_b32 v22, s65")
        a("v_mul_f32 v20, s61, v20")
        a("v_mul_f32 v22, s61, v22")
        a("v_cndmask_b32 v18, v22, v20, s[58:59]")
        for k in range(4):
            a("v_fma_f32 v%d, v%d, s61, -v18" % (12 + k, 12 + k))
        for k in range(4):
            a("v_exp_f32 v%d, v%d" % (12 + k, 12 + k))
        a("s_nop 0")
        a("v_cvt_pk_bf16_f32 v8, v12, v13")
        a("v_cvt_pk_bf16_f32 v9, v14, v15")
        a("ds_write_b64 v6, v[8:9] offset:%d" % (PS - SCL))
        self.signal("v2", F_P, "v3")
        self.stamp(3)
        a("v_add_f32 v19, v12, v13")
        a("v_add_f32 v17, v14, v15")
        a("v_add_f32 v19, v19, v17")
        half_reduce("v_add_f32", "v19")
        a("v_min_u32 v18, -2, v18")
        a("v_min_u32 v19, -2, v19")
        self.wait_flag("v2", F_CO, 1, "v24")
        a("s_mov_b32 exec_lo, 0x80000000")
        a("s_mov_b32 exec_hi, 0x80000000")
        a("s_cmp_eq_u32 s14, 2")
        a("s_cbranch_scc0 L_S1_SLOW")
        a("buffer_store_dwordx2 v[18:19], v7, s[48:51], s56 offen")
        a("s_branch L_S1_DONE")
        a.label("L_S1_SLOW")
        a("buffer_store_dwordx2 v[18:19], v7, s[48:51], s56 offen sc1")
        a.label("L_S1_DONE")
        a("s_mov_b64 exec, -1")
        self.stamp(4)
        self.s_next()

    def s2_late(self):
        a, c = self.a, self.c
        a.label("L_S2_FLAG")
        a("s_waitcnt vmcnt(0)")
        a.label("L_S2_FLAG2")
        a("s_lshl_b32 s56, s4, 12")
        a("s_add_u32 s56, s56, %d" % WS_FLAGS)
        a("s_lshl_b32 s57, s5, 7")
        a("s_add_u32 s57, s57, s56")
        a("s_lshl_b32 s58, s4, 8")
        a("s_add_u32 s58, s58, %d" % WS_FF)
        a("s_lshl_b32 s59, s5, 3")
        a("s_add_u32 s59, s59, s58")
        a("s_mov_b64 exec, 1")
        a("buffer_store_dwordx2 v[20:21], v19, s[48:51], s59 offen")
        a("buffer_store_dwordx2 v[20:21], v19, s[48:51], s57 offen sc1")
        a("s_mov_b64 exec, -1")
        self.stamp(1)
        a("v_and_b32 v16, 31, v0")
        a("v_lshlrev_b32 v17, 3, v16")
        a("v_lshlrev_b32 v16, 7, v16")
        self.wait_flag("v2", F_KD, 1, "v24", sleep=2)
        a("s_mov_b32 s13, 1")
        a.label("L_GPOLL")
        a("s_and_b32 s14, s13, %d" % (c.fast_n - 1))
        a("s_cbranch_scc0 L_GSLOW")
        a("buffer_load_dwordx2 v[12:13], v17, s[48:51], s58 offen sc1")
        a("s_branch L_GCHK")
        a.label("L_GSLOW")
        a("buffer_load_dwordx2 v[12:13], v16, s[48:51], s56 offen sc1")
        a.label("L_GCHK")
        a("s_waitcnt vmcnt(0)")
        a("v_cmp_ne_u32 vcc, s68, v12")
        a("s_cbranch_vccz L_GOK")
        a("s_sleep 2")
        a("s_add_u32 s13, s13, 1")
        a("s_cmp_lt_u32 s13, %d" % c.poll_max)
        a("s_cbranch_scc1 L_GPOLL")
        a.label("L_GOK")
        a("v_cmp_ne_u32 vcc, s69, v13")
        a("s_cmp_eq_u64 vcc, 0")
        a("s_cselect_b32 s14, %d, 1" % (2 if c.fast else 1))
        a("v_mov_b32 v21, s14")
        a("s_mov_b64 exec, 1")
        a("ds_write_b32 v2, v21 offset:%d" % F_CO)
        a("s_cmp_eq_u32 s5, 31")
        a("s_cbranch_scc0 L_S2_NOLEAD")
        a("s_lshl_b32 s58, s4, 7")
        a("s_add_u32 s58, s58, %d" % WS_GOK)
        a("buffer_store_dword v20, v19, s[48:51], s58 offen sc1")
        a.label("L_S2_NOLEAD")
        a("s_mov_b64 exec, -1")
        self.stamp(2)
        a("s_cmp_eq_u32 s66, 3")
        a("s_cbranch_scc1 L_STAGE2")
        a("s_cmp_eq_u32 s66, 2")
        a("s_cbranch_scc1 L_RED_END")
        a("v_and_b32 v16, 7, v0")
        a("v_lshlrev_b32 v16, 7, v16")
        a("s_mov_b32 s56, %d" % WS_GOK)
        if c.gok_wait:
            self.wait_flag("v2", F_P, 1, "v24", sleep=2)
        a("s_mov_b32 s13, 0")
        a.label("L_APOLL")
        a("buffer_load_dword v12, v16, s[48:51], s56 offen sc1")
        a("s_waitcnt vmcnt(0)")
        a("v_cmp_ne_u32 vcc, s68, v12")
        a("s_cbranch_vccz L_AOK")
        a("s_sleep 4")
        a("s_add_u32 s13, s13, 1")
        a("s_cmp_lt_u32 s13, %d" % c.poll_max)
        a("s_cbranch_scc1 L_APOLL")
        a.label("L_AOK")
        a("s_cmp_eq_u32 s66, 1")
        a("s_cbranch_scc1 L_FFN")
        a("s_branch L_RED")

        a.label("L_S3_PF")
        if c.ffn_pf:
            a("s_sub_u32 s58, s5, 21")
            a("s_cmp_lt_u32 s5, 8")
            a("s_cselect_b32 s58, s5, s58")
            a("v_lshrrev_b32 v6, 2, v0")
            a("v_mul_u32_u24 v6, 3584, v6")
            a("v_and_b32 v7, 3, v0")
            a("v_lshl_add_u32 v6, v7, 7, v6")
            a("s_mul_i32 s56, s4, 448")
            a("s_and_b32 s56, s56, 0xffffff80")
            a("v_lshlrev_b32 v7, 7, v0")
            self.srd(40, 28, None, 448 * 3584)
            self.srd(44, 30, None, 448 * 3584)
            a("s_mul_i32 s57, s58, %d" % (c.pf_rows * 3584))
            a("s_add_u32 s56, s56, s57")
            a("s_add_u32 s56, s56, %d" % ((448 - 11 * c.pf_rows) * 3584))
            a("s_mul_i32 s57, s4, %d" % (224 * 896))
            self.srd(52, 32, "s57", 224 * 896)
            a("s_mul_i32 s57, s58, %d" % (3 * 8192))
            self.wait_flag("v2", F_VD, 4, "v24", sleep=1)
            if c.ffn_delay:
                a("s_sleep %d" % c.ffn_delay)
            for k in range(c.pf_rows // 16):
                a("buffer_load_dword v%d, v6, s[40:43], s56 offen %s" % (12 + 2 * k, c.pol_pf))
                a("buffer_load_dword v%d, v6, s[44:47], s56 offen %s" % (13 + 2 * k, c.pol_pf))
                a("s_add_u32 s56, s56, %d" % (16 * 3584))
            for k in range(3):
                a("buffer_load_dword v%d, v7, s[52:55], s57 offen %s" % (24 + k, c.pol_pf))
                a("s_add_u32 s57, s57, 8192")
            if c.diag:
                a("s_waitcnt vmcnt(0)")
            self.stamp(1)
        self.finish()
        a.label("L_S3_FFN")
        a("v_lshl_add_u32 v24, v18, 3, v16")
        a("v_mul_u32_u24 v24, 896, v24")
        a("v_add_u32 v24, v24, v17")
        a("v_add_u32 v25, %d, v24" % (16 * 896))
        a("v_add_u32 v26, %d, v24" % (4 * 896))
        a("v_add_u32 v27, %d, v24" % (20 * 896))
        a("v_lshrrev_b32 v22, 2, v0")
        a("v_mul_u32_u24 v20, 3584, v22")
        a("v_and_b32 v23, 3, v0")
        a("v_xor_b32 v23, v23, v18")
        a("v_lshl_add_u32 v20, v23, 4, v20")
        a("v_xor_b32 v21, 32, v20")
        a("s_lshl_b32 s56, s62, 6")
        self.srd(40, 28, "s56", 447 * 3584 + 64)
        self.srd(44, 30, "s56", 447 * 3584 + 64)
        a("s_mul_i32 s56, s62, %d" % (32 * 896))
        self.srd(52, 32, "s56", 32 * 896)
        a("s_mov_b32 m0, %d" % GT)
        a("s_movk_i32 s15, 0")
        gu = [("v20", 40, 28672), ("v21", 44, 1024 - 28672)]
        if c.ffn_n1:
            self.tile_loop(gu, None, c.ffn_n1, 16 * 3584, c.pol_ffn, c.ffn_thr)
        self.stamp(2)
        self.wait_flag("v2", F_VD, 4, "v28", sleep=1)
        if c.ffn_delay:
            a("s_sleep %d" % c.ffn_delay)
        self.tile_loop(gu, None, 28 - c.ffn_n1, 16 * 3584, c.pol_ffn, 48)
        a("s_mov_b32 m0, %d" % DT)
        a("s_movk_i32 s15, 0")
        self.tile_loop([("v%d" % (24 + k), 52, 1024) for k in range(4)], 52, 7, 128, c.pol_ffn, 48)
        a("s_waitcnt vmcnt(0)")
        self.stamp(1)
        a("s_branch L_FFN")

    def stage2(self):
        a, c = self.a, self.c
        WF, AF, AC, W = 48, 112, 128, 28
        a.label("L_STAGE2")
        a("s_lshr_b32 s70, s11, 1")
        a("s_and_b32 s71, s11, 1")
        a("s_lshl_b32 s71, s71, 1")
        a("s_sub_u32 s64, s5, 8")
        a("s_and_b32 s65, s64, 1")
        a("s_lshr_b32 s64, s64, 1")
        a("s_lshl_b32 s12, s70, 14")
        a("s_add_u32 s12, s12, %d" % BIG)
        self.tr_addrs(12, "s12", "v24", "v25", "v26")
        a("v_and_b32 v24, 7, v0")
        a("v_lshrrev_b32 v25, 4, v0")
        a("v_bfe_u32 v26, v0, 3, 1")
        a("v_and_b32 v17, 15, v0")
        a("v_lshlrev_b32 v17, 3, v17")
        a("v_lshlrev_b32 v18, 4, v24")
        a("v_lshl_add_u32 v18, v26, 12, v18")
        a("v_lshrrev_b32 v27, 5, v0")
        a("v_mul_u32_u24 v27, %d, v27" % (14 * 4096))
        a("v_add_u32 v18, v18, v27")
        a("v_mov_b32 v26, %d" % OOB)
        a("v_and_b32 v27, 1, v25")
        a("v_cmp_eq_u32 vcc, 0, v27")
        a("v_lshlrev_b32 v19, 4, v25")
        a("s_add_u32 s56, s9, s71")
        a("s_lshl_b32 s57, s56, 7")
        a("v_cndmask_b32 v18, v26, v18, vcc")
        a("s_lshl_b32 s14, s65, 7")
        a("s_add_u32 s57, s57, s14")
        a("s_add_u32 s57, s57, %d" % WS_ST)
        a("s_lshl_b32 s14, s65, 1")
        a("s_add_u32 s14, s14, s70")
        a("s_lshl_b32 s56, s56, 1")
        a("s_add_u32 s56, s56, s14")
        a("s_lshl_b32 s56, s56, 12")
        a("s_add_u32 s56, s56, %d" % WS_O)
        a("s_add_u32 s14, s14, s9")
        a("s_lshl_b32 s14, s14, 7")
        a("s_mul_i32 s60, s71, 14")
        a("s_lshl_b32 s61, s64, 1")
        a("s_add_u32 s60, s60, s61")
        a("s_lshl_b32 s60, s60, 12")
        a("s_add_u32 s60, s60, s14")
        a("s_add_u32 s60, s60, %d" % WS_A)
        self.wait_flag("v2", F_WO, 1, "v24", sleep=1)
        for s in range(4):
            self.tile_reads(WF + 16 * s, 12, s * 4096)
            a("s_waitcnt lgkmcnt(0)")
        self.wait_flag("v2", F_CO, 1, "v24", sleep=1)
        self.stamp(5)
        a("s_mov_b32 s13, 0")
        a.label("L_OPOLL")
        a("buffer_load_dwordx2 v[20:21], v17, s[48:51], s57 offen sc1")
        for s in range(4):
            a("buffer_load_dwordx4 v[%d:%d], v4, s[48:51], s56 offen offset:%d sc1" % (AF + 4 * s, AF + 4 * s + 3, s * 1024))
        a("s_waitcnt vmcnt(4)")
        a("v_max_u32 v24, v20, v21")
        for s in range(4):
            a("s_waitcnt vmcnt(%d)" % (3 - s))
            r = AF + 4 * s
            a("v_max3_u32 v24, v24, v%d, v%d" % (r, r + 1))
            a("v_max3_u32 v24, v24, v%d, v%d" % (r + 2, r + 3))
        a("v_cmp_eq_u32 vcc, -1, v24")
        a("s_cbranch_vccz L_OOK")
        a("s_cmp_lg_u32 s13, 0")
        a("s_cbranch_scc1 L_ONEXT")
        self.wait_flag("v2", F_VD, 1, "v24", sleep=1)
        a.label("L_ONEXT")
        a("s_add_u32 s13, s13, 1")
        a("s_cmp_lt_u32 s13, %d" % c.poll_max)
        a("s_cbranch_scc1 L_OPOLL")
        a.label("L_OOK")
        self.stamp(6)

        def epi(n):
            r = AC + 4 * n
            return ["v_pk_mul_f32 v[%d:%d], v[%d:%d], v[%d:%d]" % (r, r + 1, r, r + 1, W, W + 1),
                    "v_pk_fma_f32 v[%d:%d], v[%d:%d], v[%d:%d], v[%d:%d]" % (r, r + 1, r + 2, r + 3, W + 2, W + 3, r, r + 1),
                    "v_add_f32 v%d, v%d, v%d" % (24 + n, r, r + 1)]
        dp = ("quad_perm:[1,0,3,2]", "quad_perm:[2,3,0,1]", "row_half_mirror")
        wts = [["v_max_f32_dpp v22, v20, v20 %s row_mask:0xf bank_mask:0xf" % dp[0]],
               ["s_nop 0", "v_max_f32_dpp v22, v22, v22 %s row_mask:0xf bank_mask:0xf" % dp[1]],
               ["s_nop 0", "v_max_f32_dpp v22, v22, v22 %s row_mask:0xf bank_mask:0xf" % dp[2], "v_sub_f32 v20, v20, v22", "v_exp_f32 v20, v20"],
               ["v_mul_f32 v22, v20, v21"],
               ["s_nop 0", "v_add_f32_dpp v22, v22, v22 %s row_mask:0xf bank_mask:0xf" % dp[0]],
               ["s_nop 0", "v_add_f32_dpp v22, v22, v22 %s row_mask:0xf bank_mask:0xf" % dp[1]],
               ["s_nop 0", "v_add_f32_dpp v22, v22, v22 %s row_mask:0xf bank_mask:0xf" % dp[2], "v_rcp_f32 v22, v22"],
               ["v_mul_f32 v20, v20, v22"] + ["ds_bpermute_b32 v%d, v19, v20 offset:%d" % (W + r, 4 * r) for r in range(4)]]
        fill = epi(0) + epi(1)
        k = 0
        for n in range(4):
            for s in range(4):
                idx = 4 * n + s
                self.mfma(AC + 4 * n, AF + 4 * s, WF + 16 * s + 4 * n, s == 0)
                if idx < len(wts):
                    for ins in wts[idx]:
                        a(ins)
                if idx == 12:
                    a("s_waitcnt lgkmcnt(0)")
                if idx >= 12:
                    a(fill[k]); k += 1
        a(fill[4])
        a(fill[5])
        for ins in epi(2):
            a(ins)
        a("v_permlane16_swap_b32 v24, v25")
        a("v_add_f32 v24, v24, v25")
        for ins in epi(3):
            a(ins)
        a("v_min_u32 v24, -2, v24")
        a("v_mov_b32 v25, v24")
        a("v_permlane16_swap_b32 v26, v27")
        a("v_add_f32 v26, v26, v27")
        a("v_permlane16_swap_b32 v24, v25")
        a("v_min_u32 v26, -2, v26")
        a("v_mov_b32 v27, v26")
        a("s_nop 1")
        a("v_permlane16_swap_b32 v26, v27")
        a("buffer_store_dwordx4 v[24:27], v18, s[48:51], s60 offen sc1")
        self.stamp(7)
        self.finish()

    def reducer(self):
        a, c = self.a, self.c
        L, T = 32, 64
        a.label("L_RED")
        a("s_cmp_ge_u32 s2, 56")
        a("s_cbranch_scc1 L_RED_END")
        a("s_mul_i32 s64, s2, 4682")
        a("s_lshr_b32 s64, s64, 16")
        a("s_mul_i32 s65, s64, 14")
        a("s_sub_u32 s65, s2, s65")
        a("v_lshrrev_b32 v16, 4, v0")
        a("v_and_b32 v17, 7, v0")
        a("v_lshlrev_b32 v18, 5, v16")
        a("v_lshl_add_u32 v18, v17, 1, v18")
        a("s_mul_i32 s69, s64, 896")
        a("s_lshr_b32 s14, s65, 1")
        a("s_lshl_b32 s14, s14, 7")
        a("s_add_u32 s69, s69, s14")
        a("s_and_b32 s14, s65, 1")
        a("s_lshl_b32 s14, s14, 4")
        a("s_add_u32 s69, s69, s14")
        a("buffer_load_ushort v19, v18, s[52:55], s69 offen")
        a("v_mov_b32 v20, %d" % OOB)
        a("v_bfe_u32 v21, v0, 3, 1")
        a("v_cmp_eq_u32 vcc, 0, v21")
        a("v_mul_u32_u24 v21, %d, v21" % HREP_STRIDE)
        a("v_lshl_add_u32 v21, v16, 4, v21")
        a("v_cndmask_b32 v18, v20, v18, vcc")
        a("v_cmp_eq_u32 vcc, 0, v17")
        a("s_lshl_b32 s70, s2, 7")
        a("s_add_u32 s70, s70, %d" % WS_H)
        a("v_cndmask_b32 v21, v20, v21, vcc")
        self.srd(44, 34, None, 3584)
        a("s_cmp_eq_u32 s2, 0")
        a("s_cbranch_scc0 L_RED_NOEP")
        a("v_mov_b32 v6, 0")
        a("v_mov_b32 v7, s68")
        a("s_mov_b64 exec, 1")
        a("buffer_store_dword v7, v6, s[48:51], 0 offen sc1")
        a("s_mov_b64 exec, -1")
        a.label("L_RED_NOEP")
        a("s_lshl_b32 s56, s2, 12")
        a("s_add_u32 s56, s56, %d" % WS_A)
        a("s_mul_i32 s58, s2, %d" % (NF * 128))
        a("s_add_u32 s58, s58, %d" % WS_C)
        a("s_add_u32 s59, s58, 4096")
        a("s_waitcnt vmcnt(0)")
        a("v_lshlrev_b32 v19, 16, v19")
        self.stamp(5)
        self.wait_flag("v2", F_VD, 4, "v24", sleep=1)
        self.stamp(6)
        self.inbox_reduce(4, "v4", ("s56", "s56"), L, T, "v22")
        a("v_cvt_pk_bf16_f32 v22, v22, v22")
        a("v_lshlrev_b32 v22, 16, v22")
        a("v_add_f32 v22, v19, v22")
        a("s_nop 1")
        a("v_mov_b32_dpp v23, v22 quad_perm:[1,0,3,2] row_mask:0xf bank_mask:0xf")
        a("v_cvt_pk_bf16_f32 v24, v22, v23")
        a("v_min_u32 v24, -2, v24")
        a("s_nop 1")
        a("v_mov_b32_dpp v25, v24 row_shl:2 row_mask:0xf bank_mask:0xf")
        a("v_mov_b32_dpp v26, v24 row_shl:4 row_mask:0xf bank_mask:0xf")
        a("v_mov_b32_dpp v27, v24 row_shl:6 row_mask:0xf bank_mask:0xf")
        for k in range(c.hrep // 2):
            a("buffer_store_dwordx4 v[24:27], v21, s[48:51], s70 offen sc1")
            if k + 1 < c.hrep // 2:
                a("s_add_u32 s70, s70, %d" % (2 * HREP_STRIDE))
        a("v_lshlrev_b32 v28, 16, v24")
        self.stamp(7)
        self.inbox_reduce(7, "v4", ("s58", "s59"), L, T, "v22")
        a("v_cvt_pk_bf16_f32 v22, v22, v22")
        a("v_lshlrev_b32 v22, 16, v22")
        a("v_add_f32 v22, v28, v22")
        a("v_cvt_pk_bf16_f32 v22, v22, v22")
        a("buffer_store_short v22, v18, s[44:47], s69 offen")
        self.stamp(8)
        a.label("L_RED_END")
        self.finish()

    def ffn(self):
        a, c = self.a, self.c
        GF, DF, HF = 48, 104, 136
        a.label("L_FFN")
        a("v_lshrrev_b32 v22, 4, v0")
        a("v_bfe_u32 v23, v0, 2, 2")
        a("v_lshl_add_u32 v24, v22, 3, v23")
        a("v_lshlrev_b32 v20, 6, v24")
        a("v_and_b32 v24, 1, v0")
        a("v_lshl_add_u32 v20, v24, 3, v20")
        a("v_and_b32 v24, 1, v22")
        a("v_and_b32 v25, 2, v0")
        a("v_xor_b32 v24, v24, v25")
        a("v_xor_b32 v24, s11, v24")
        a("v_lshl_add_u32 v20, v24, 4, v20")
        a("v_mul_u32_u24 v25, %d, v25" % (28672 // 2))
        a("v_add_u32 v20, v20, v25")
        a("v_add_u32 v20, %d, v20" % GT)
        a("s_lshl_b32 s14, s11, 13")
        a("s_add_u32 s12, s14, %d" % DT)
        self.tr_addrs(12, "s12", "v24", "v25", "v26")
        a("v_mul_u32_u24 v21, %d, v23" % XN_STR)
        a("v_lshl_add_u32 v21, v22, 4, v21")
        a("v_add_u32 v21, %d, v21" % XN)
        a("s_mul_i32 s14, s11, %d" % XN_STR)
        a("s_add_u32 s14, s14, %d" % XN)
        a("v_lshrrev_b32 v24, 3, v0")
        a("v_lshlrev_b32 v6, 7, v24")
        a("v_and_b32 v24, 3, v0")
        a("v_lshl_add_u32 v6, v24, 5, v6")
        a("v_bfe_u32 v25, v0, 2, 1")
        a("v_lshl_add_u32 v6, v25, 4, v6")
        a("v_add_u32 v6, s14, v6")
        a("v_lshrrev_b32 v25, 2, v0")
        a("v_lshlrev_b32 v25, 7, v25")
        a("v_lshl_add_u32 v25, v24, 4, v25")
        a("v_max_u32 v5, v5, v25")
        a("v_lshlrev_b32 v24, 6, v23")
        a("v_lshl_add_u32 v24, v22, 4, v24")
        a("v_add_u32 v24, %d, v24" % ACT)
        a("v_mov_b32 v25, %d" % ZERO)
        a("v_and_b32 v26, 3, v0")
        for n in range(4):
            a("v_cmp_eq_u32 vcc, %d, v26" % n)
            a("s_nop 1")
            a("v_cndmask_b32 v%d, v25, v24, vcc" % (16 + n))
        a("v_and_b32 v24, 15, v0")
        a("v_lshlrev_b32 v7, 6, v22")
        a("v_lshl_add_u32 v7, v24, 1, v7")
        a("s_lshl_b32 s14, s11, 4")
        a("s_add_u32 s14, s14, %d" % ACT)
        a("v_add_u32 v7, s14, v7")
        a("v_mov_b32 v25, %d" % DUMP)
        a("v_cmp_gt_u32 vcc, 8, v24")
        a("s_nop 1")
        a("v_cndmask_b32 v7, v25, v7, vcc")
        a("v_mul_u32_u24 v25, 14, v22")
        a("v_bfe_u32 v26, v0, 3, 1")
        a("v_add_u32 v25, v25, v26")
        a("v_mul_u32_u24 v25, %d, v25" % (NF * 128))
        a("v_and_b32 v26, 7, v0")
        a("v_lshl_add_u32 v23, v26, 4, v25")
        a("s_mul_i32 s69, s11, %d" % (4 * NF * 128))
        a("s_lshl_b32 s70, s62, 7")
        a("s_add_u32 s69, s69, s70")
        a("s_add_u32 s69, s69, %d" % WS_C)
        a("s_add_u32 s70, s69, %d" % (2 * NF * 128))
        a("s_cmp_eq_u32 s11, 3")
        a("s_cselect_b32 s70, %d, s70" % OOB)
        a("s_and_b32 s60, s4, %d" % (c.hrep - 1))
        a("s_mul_i32 s60, s60, %d" % HREP_STRIDE)
        a("s_lshl_b32 s14, s67, 1")
        a("s_add_u32 s60, s60, s14")
        a("s_add_u32 s60, s60, %d" % WS_H)
        a("s_mov_b32 s61, %s" % f32(-LOG2E))
        a("s_waitcnt vmcnt(0)")
        a("s_barrier")
        self.stamp(8)
        for s in range(14):
            for hh in range(2):
                r = GF + 4 * s + 2 * hh
                a("ds_read_b64_tr_b16 v[%d:%d], v20 offset:%d" % (r, r + 1, s * 2048 + hh * 256))
            if s % 4 == 3:
                a("s_waitcnt lgkmcnt(0)")
        a("s_waitcnt lgkmcnt(0)")
        self.tile_reads(DF, 12, 0)
        a("s_waitcnt lgkmcnt(0)")
        self.tile_reads(DF + 16, 12, 4096)
        AC = 24
        if c.fold:
            for k in range(4):
                a("v_mov_b32 v%d, 0x3f803f80" % (40 + k))
            a("v_mov_b32 v25, %d" % DUMP)
            a("v_cmp_gt_u32 vcc, 56, v0")
            for s in range(14):
                self.mfma(44, 40, GF + 4 * s, s == 0)
            a("v_cndmask_b32 v6, v25, v6, vcc")
            a("s_lshl_b32 s14, s11, 3")
            a("s_add_u32 s14, s14, %d" % SCL)
            a("v_mov_b32 v38, s14")
            a("v_lshlrev_b32 v39, 3, v22")
            a("v_add_u32 v39, %d, v39" % SCL)
            a("v_mov_b32 v37, %s" % f32(1.0 / 448))
        a("s_waitcnt lgkmcnt(0)")
        a("s_mov_b32 s13, 0")
        a.label("L_HPOLL")
        a("buffer_load_dwordx4 v[8:11], v5, s[48:51], s60 offen sc1")
        a("s_waitcnt vmcnt(0)")
        a("v_max3_u32 v24, v8, v9, v10")
        a("v_max_u32 v24, v24, v11")
        a("v_cmp_eq_u32 vcc, -1, v24")
        a("s_cbranch_vccz L_HOK")
        a("s_add_u32 s13, s13, 1")
        a("s_cmp_lt_u32 s13, %d" % c.poll_max)
        a("s_cbranch_scc1 L_HPOLL")
        a.label("L_HOK")
        self.stamp(9)
        if not c.fold:
            self.layernorm(8, 24, 32)
            a("s_mov_b32 exec_hi, 0x00ffffff")
            a("ds_write_b128 v6, v[8:11]")
            a("s_mov_b64 exec, -1")
            a("s_waitcnt lgkmcnt(0)")
            a("s_barrier")
            for s in range(7):
                a("ds_read_b128 v[%d:%d], v21 offset:%d" % (HF + 4 * s, HF + 4 * s + 3, s * 64))
            for s in range(14):
                a("s_waitcnt lgkmcnt(%d)" % (6 if s < 7 else 13 - s))
                self.mfma(AC, HF + 4 * (s % 7), GF + 4 * s, s == 0)
                if s < 7:
                    a("ds_read_b128 v[%d:%d], v21 offset:%d" % (HF + 4 * s, HF + 4 * s + 3, (s + 7) * 64))
            a("s_nop 7")
            a("v_cvt_pk_bf16_f32 v28, v24, v24")
        else:
            a("ds_write_b128 v6, v[8:11]")
            for k in range(4):
                a("v_dot2_f32_bf16 v32, v%d, v%d, %s" % (8 + k, 8 + k, "v32" if k else "0"))
                a("v_dot2_f32_bf16 v33, v%d, v40, %s" % (8 + k, "v33" if k else "0"))
            a("s_waitcnt lgkmcnt(0)")
            a("s_barrier")
            ctls = ["row_shr:1 row_mask:0xf", "row_shr:2 row_mask:0xf", "row_shr:4 row_mask:0xf", "row_shr:8 row_mask:0xf",
                    "row_bcast:15 row_mask:0xa", "row_bcast:31 row_mask:0xc"]
            for s in range(14):
                a("ds_read_b128 v[%d:%d], v21 offset:%d" % (HF + 4 * s, HF + 4 * s + 3, s * 64))
                if s & 1 and s < 12:
                    for r in ("v32", "v33"):
                        a("v_add_f32_dpp %s, %s, %s %s bank_mask:0xf" % (r, r, r, ctls[s >> 1]))
            chain = [["v_readlane_b32 s58, v32, 63", "v_readlane_b32 s57, v33, 63"],
                     ["v_mul_f32 v35, s58, v37", "v_mul_f32 v34, s57, v37", "v_fma_f32 v35, -v34, v34, v35"],
                     ["v_max_f32 v35, 0, v35", "v_cvt_pk_bf16_f32 v36, v34, v35", "v_and_b32 v35, 0xffff0000, v36"],
                     ["v_lshlrev_b32 v34, 16, v36", "v_add_f32 v35, %s, v35" % f32(1e-5), "v_cvt_pk_bf16_f32 v35, v35, v35"],
                     ["v_lshlrev_b32 v35, 16, v35", "v_sqrt_f32 v35, v35"],
                     ["v_cvt_pk_bf16_f32 v35, v35, v35", "v_lshlrev_b32 v35, 16, v35", "v_rcp_f32 v35, v35"],
                     ["ds_write_b64 v38, v[34:35]"]]
            for ins in chain[0]:
                a(ins)
            for s in range(14):
                if s <= 5:
                    a("s_waitcnt lgkmcnt(%d)" % (13 - s))
                elif s <= 9:
                    a("s_waitcnt lgkmcnt(%d)" % (14 - s))
                self.mfma(AC, HF + 4 * s, GF + 4 * s, s == 0)
                if s + 1 < len(chain):
                    for ins in chain[s + 1]:
                        a(ins)
                if s == 9:
                    a("s_waitcnt lgkmcnt(0)")
                    a("s_barrier")
                    a("ds_read_b64 v[34:35], v39")
            a("s_nop 6")
            a("s_waitcnt lgkmcnt(0)")
            a("v_fma_f32 v28, -v34, v44, v24")
            a("v_mul_f32 v28, v28, v35")
            a("v_cvt_pk_bf16_f32 v28, v28, v28")
        a("v_lshlrev_b32 v28, 16, v28")
        a("v_mul_f32 v29, s61, v28")
        a("v_exp_f32 v29, v29")
        a("v_mov_b32_dpp v30, v28 row_ror:8 row_mask:0xf bank_mask:0xf")
        a("v_add_f32 v29, 1.0, v29")
        a("v_rcp_f32 v29, v29")
        a("s_nop 0")
        a("v_mul_f32 v29, v28, v29")
        a("v_cvt_pk_bf16_f32 v29, v29, v29")
        a("v_lshlrev_b32 v29, 16, v29")
        a("v_mul_f32 v29, v29, v30")
        a("v_cvt_pk_bf16_f32 v29, v29, v29")
        a("ds_write_b16 v7, v29")
        a("s_waitcnt lgkmcnt(0)")
        a("s_barrier")
        for n in range(4):
            a("ds_read_b128 v[%d:%d], v%d" % (HF + 4 * n, HF + 4 * n + 3, 16 + n))
        for pp in range(2):
            for n in range(4):
                if pp == 0:
                    a("s_waitcnt lgkmcnt(%d)" % (3 - n))
                self.mfma(24 + 4 * pp, HF + 4 * n, DF + 16 * pp + 4 * n, n == 0)
        a("s_nop 3")
        for k in range(4):
            a("v_min_u32 v%d, -2, v%d" % (24 + k, 24 + k))
        a("buffer_store_dwordx4 v[24:27], v23, s[48:51], s69 offen sc1")
        for k in range(4):
            a("v_min_u32 v%d, -2, v%d" % (28 + k, 28 + k))
        a("buffer_store_dwordx4 v[28:31], v23, s[48:51], s70 offen sc1")
        self.stamp(10)
        self.finish()


HEADER = """; Fused pre-LN decode block: sliding-window GQA attention + SwiGLU FFN in one launch (generated by gen_kernel.py).
"""


def generate(cfg):
    body = Gen(cfg).build()
    return f"""{HEADER}; @launch grid=(256,1,1) block=(512,1,1) lds={LDS_TOTAL}
.amdgcn_target "amdgcn-amd-amdhsa--gfx950"
.text
.globl {NAME}
.p2align {cfg.align}
.type {NAME},@function
{NAME}:
{body}
.section .rodata,"a"
.p2align 6
.amdhsa_kernel {NAME}
  .amdhsa_next_free_vgpr 192
  .amdhsa_next_free_sgpr 96
  .amdhsa_accum_offset 192
  .amdhsa_group_segment_fixed_size 0
  .amdhsa_kernarg_size 96
  .amdhsa_user_sgpr_count 2
  .amdhsa_user_sgpr_kernarg_segment_ptr 1
  .amdhsa_system_sgpr_workgroup_id_x 1
  .amdhsa_float_denorm_mode_32 3
.end_amdhsa_kernel
"""


if __name__ == "__main__":
    cfg = Cfg()
    out = sys.argv[1]
    for kv in sys.argv[2:]:
        k, v = kv.split("=")
        cur = getattr(cfg, k)
        setattr(cfg, k, (v == "1") if isinstance(cur, bool) else type(cur)(v))
    open(out, "w").write(generate(cfg))
```

```python
import gen_kernel as G
for x in range(8):
    cfg = G.Cfg()
    t = G.generate(cfg)
    t = t.replace("    s_load_dwordx8 s[32:39], s[0:1], 64\n", "    s_load_dwordx8 s[32:39], s[0:1], 64\n    s_memrealtime s[72:73]\n", 1)
    old = "    v_add_f32 v22, v28, v22\n"
    assert t.count(old) == 1
    new = old + """    s_cmp_lg_u32 s4, %d
    s_cbranch_scc1 L_PADX
L_PAD:
    s_memrealtime s[74:75]
    s_waitcnt lgkmcnt(0)
    s_sub_u32 s74, s74, s72
    s_cmp_lt_u32 s74, 2400
    s_cbranch_scc1 L_PAD
L_PADX:
""" % x
    open(f"mb/px{x}.s", "w").write(t.replace(old, new))
open("mb/cur.s", "w").write(G.generate(G.Cfg()))
```

```python
import gen_kernel as G
def mk(x):
    cfg = G.Cfg()
    t = G.generate(cfg)
    t = t.replace("    s_load_dwordx8 s[32:39], s[0:1], 64\n", "    s_load_dwordx8 s[32:39], s[0:1], 64\n    s_memrealtime s[72:73]\n", 1)
    old = "    buffer_store_dword v7, v6, s[48:51], 0 offen sc1\n"
    assert t.count(old) == 1
    t = t.replace(old, old + "    v_mov_b32 v7, s72\n    buffer_store_dword v7, v6, s[48:51], 0 offen offset:512 sc1\n")
    old = "    v_add_f32 v22, v28, v22\n"
    cond = "" if x < 0 else "    s_cmp_lg_u32 s4, %d\n    s_cbranch_scc1 L_PADX\n" % x
    new = old + cond + """    v_mov_b32 v30, 0
    buffer_load_dword v31, v30, s[48:51], 0 offen offset:512 sc1
    s_waitcnt vmcnt(0)
    v_readfirstlane_b32 s72, v31
L_PAD:
    s_memrealtime s[74:75]
    s_waitcnt lgkmcnt(0)
    s_sub_u32 s74, s74, s72
    s_cmp_lt_u32 s74, 2400
    s_cbranch_scc1 L_PAD
L_PADX:
"""
    return t.replace(old, new)
for n, x in (("a0", 0), ("a1", 1), ("a4", 4), ("all", -1), ("b0", 0), ("ball", -1)):
    open(f"mb/py_{n}.s", "w").write(mk(x))
```

```python
import sys
from asmgen import Asm, NAME

WS_EPOCH = 0x0
WS_GOK = 0x1000
WS_Q = 0x2000
WS_FF = 0x1800
WS_QF = 0x1A0000
WS_O = 0x20000
WS_H = 0x60000
WS_FLAGS = 0x70000
WS_ST = 0x78000
WS_A = 0x80000
WS_C = 0x100000
WS_TS = 0x1C0000
WS_SIZE = 0x200000
NF = 56
HREP_STRIDE = 8192
OOB = 0x40000000

RING = 0
BIG = 65536
GT = BIG
UT = BIG + 28672
DT = BIG + 57344
SH = 151552
XN = SH
XN_STR = 960
QS = SH + 3840
QS_STR = 576
SCL = SH + 4992
PS = SH + 5632
PS_STR = 320
ACT = SH + 6272
DUMP = SH + 6528
ZERO = SH + 6592
FL = SH + 6848
LDS_TOTAL = SH + 6912
F_TAG, F_XN, F_Q, F_SC, F_P, F_VD, F_KD, F_CO, F_WO, F_WQ, F_VI = 0, 4, 8, 12, 16, 20, 24, 28, 32, 36, 40

LOG2E = 1.4426950408889634
NWAVES = 8


def f32(x):
    import struct
    return "0x%08x" % struct.unpack("<I", struct.pack("<f", x))[0]


class Cfg:
    diag = False
    pol_kv = "nt"
    pol_wq = "nt"
    pol_wo = "nt"
    pol_ffn = "nt"
    pol_pf = ""
    tkv = 4
    thi = 8
    tkv2 = 7
    ramp_at = 16
    fast_n = 8
    decor = True
    kd_at = 5
    wo_thr = 6
    hrep = 4
    poll_max = 1 << 20
    ffn_n1 = 0
    ffn_thr = 4
    fast = True
    code_pf = True
    wq_pf = True
    wq_pf_n = 0
    ffn_pf = True
    pf_rows = 32
    align = 12
    gok_wait = True
    ffn_delay = 0
    st2_hi_at = 99
    fold = True
    wo_early = 4


class Gen:
    def __init__(self, cfg):
        self.c = cfg
        self.a = Asm()
        self.uid = 0

    def lbl(self, base):
        self.uid += 1
        return "L_%s_%d" % (base, self.uid)

    def stamp(self, k):
        if self.c.diag:
            a = self.a
            a("s_memrealtime s[%d:%d]" % (72 + 2 * k, 73 + 2 * k))
            a("s_waitcnt lgkmcnt(0)")

    def stamps_init(self):
        if self.c.diag:
            for k in range(12):
                self.a("s_mov_b32 s%d, 0" % (72 + 2 * k))

    def finish(self):
        a = self.a
        if self.c.diag:
            a("s_branch L_DIAG_END")
        else:
            a("s_endpgm")

    def srd(self, d, ptr, off_sreg, nrec):
        a = self.a
        if off_sreg is None:
            a("s_mov_b32 s%d, s%d" % (d, ptr))
            a("s_mov_b32 s%d, s%d" % (d + 1, ptr + 1))
        else:
            a("s_add_u32 s%d, s%d, %s" % (d, ptr, off_sreg))
            a("s_addc_u32 s%d, s%d, 0" % (d + 1, ptr + 1))
        a("s_mov_b32 s%d, %d" % (d + 2, nrec))
        a("s_mov_b32 s%d, 0x20000" % (d + 3))

    def dma(self, voff, srd, soff, m0, pol):
        a = self.a
        if isinstance(m0, tuple):
            a("s_add_u32 m0, %s, %d" % m0)
        else:
            a("s_mov_b32 m0, %d" % m0)
        if isinstance(soff, tuple):
            a("s_add_u32 s15, %s, %d" % soff)
        else:
            a("s_mov_b32 s15, %d" % soff)
        a("buffer_load_dwordx4 %s, s[%d:%d], s15 offen%s lds" % (voff, srd, srd + 3, (" " + pol) if pol else ""))

    def wait_flag(self, vfl, off, n, vt, sleep=0):
        a = self.a
        l = self.lbl("wf")
        a.label(l)
        if sleep:
            a("s_sleep %d" % sleep)
        a("ds_read_b32 %s, %s offset:%d" % (vt, vfl, off))
        a("s_waitcnt lgkmcnt(0)")
        a("v_readfirstlane_b32 s14, %s" % vt)
        a("s_cmp_ge_u32 s14, %d" % n)
        a("s_cbranch_scc0 %s" % l)

    def signal(self, vfl, off, vone):
        a = self.a
        a("s_mov_b64 exec, 1")
        a("ds_add_u32 %s, %s offset:%d" % (vfl, vone, off))
        a("s_mov_b64 exec, -1")

    def tr_addrs(self, dst, base_sreg_or_int, t0, t1, t2):
        a = self.a
        a("v_lshrrev_b32 %s, 2, v0" % t0)
        a("v_bfe_u32 %s, v0, 3, 2" % t1)
        a("v_and_b32 %s, 3, v0" % t2)
        a("v_lshlrev_b32 %s, 7, %s" % (t0, t0))
        a("v_lshl_add_u32 %s, %s, 3, %s" % (t0, t2, t0))
        a("v_add_u32 %s, %s, %s" % (t0, base_sreg_or_int, t0))
        for n in range(4):
            a("v_xor_b32 %s, %d, %s" % (t2, n, t1))
            a("v_lshl_add_u32 v%d, %s, 5, %s" % (dst + n, t2, t0))

    def tile_reads(self, dst, addr0, off):
        a = self.a
        for n in range(4):
            for hh in range(2):
                r = dst + 4 * n + 2 * hh
                a("ds_read_b64_tr_b16 v[%d:%d], v%d offset:%d" % (r, r + 1, addr0 + n, off + hh * 2048))

    def mfma(self, d, A, B, first):
        self.a("v_mfma_f32_16x16x32_bf16 v[%d:%d], v[%d:%d], v[%d:%d], %s" % (
            d, d + 3, A, A + 3, B, B + 3, "0" if first else "v[%d:%d]" % (d, d + 3)))

    def wave_reduce2(self, op, x, y):
        a = self.a
        for ctl in ("row_shr:1", "row_shr:2", "row_shr:4", "row_shr:8"):
            a("s_nop 0")
            for r in (x, y):
                a("%s_dpp %s, %s, %s %s row_mask:0xf bank_mask:0xf" % (op, r, r, r, ctl))
        for ctl in ("row_bcast:15 row_mask:0xa", "row_bcast:31 row_mask:0xc"):
            a("s_nop 0")
            for r in (x, y):
                a("%s_dpp %s, %s, %s %s bank_mask:0xf" % (op, r, r, r, ctl))

    def wave_reduce1(self, op, x):
        a = self.a
        for ctl in ("row_shr:1", "row_shr:2", "row_shr:4", "row_shr:8"):
            a("s_nop 1")
            a("%s_dpp %s, %s, %s %s row_mask:0xf bank_mask:0xf" % (op, x, x, x, ctl))
        for ctl in ("row_bcast:15 row_mask:0xa", "row_bcast:31 row_mask:0xc"):
            a("s_nop 1")
            a("%s_dpp %s, %s, %s %s bank_mask:0xf" % (op, x, x, x, ctl))

    def layernorm(self, src, f, t):
        a = self.a
        for k in range(4):
            a("v_lshlrev_b32 v%d, 16, v%d" % (f + 2 * k, src + k))
            a("v_and_b32 v%d, 0xffff0000, v%d" % (f + 2 * k + 1, src + k))
        a("v_readfirstlane_b32 s56, v%d" % f)
        a("v_mov_b32 v%d, 0" % (t + 8))
        a("v_mov_b32 v%d, 0" % (t + 9))
        a("s_mov_b32 exec_hi, 0x00ffffff")
        for k in range(4):
            a("v_pk_add_f32 v[%d:%d], v[%d:%d], s[56:57] op_sel_hi:[1,0] neg_lo:[0,1] neg_hi:[0,1]" % (
                t + 2 * k, t + 2 * k + 1, f + 2 * k, f + 2 * k + 1))
        a("v_pk_mul_f32 v[%d:%d], v[%d:%d], v[%d:%d]" % (t + 10, t + 11, t, t + 1, t, t + 1))
        for k in range(1, 4):
            a("v_pk_fma_f32 v[%d:%d], v[%d:%d], v[%d:%d], v[%d:%d]" % (
                t + 10, t + 11, t + 2 * k, t + 2 * k + 1, t + 2 * k, t + 2 * k + 1, t + 10, t + 11))
        a("v_pk_add_f32 v[%d:%d], v[%d:%d], v[%d:%d]" % (t, t + 1, t, t + 1, t + 2, t + 3))
        a("v_pk_add_f32 v[%d:%d], v[%d:%d], v[%d:%d]" % (t + 4, t + 5, t + 4, t + 5, t + 6, t + 7))
        a("v_pk_add_f32 v[%d:%d], v[%d:%d], v[%d:%d]" % (t, t + 1, t, t + 1, t + 4, t + 5))
        a("v_add_f32 v%d, v%d, v%d" % (t + 9, t + 10, t + 11))
        a("v_add_f32 v%d, v%d, v%d" % (t + 8, t, t + 1))
        a("s_mov_b64 exec, -1")
        S, Q = "v%d" % (t + 8), "v%d" % (t + 9)
        a("s_nop 0")
        self.wave_reduce2("v_add_f32", Q, S)
        a("s_nop 0")
        a("v_readlane_b32 s58, %s, 63" % Q)
        a("v_readlane_b32 s57, %s, 63" % S)
        a("v_mov_b32 v%d, %s" % (t + 2, f32(1.0 / 448)))
        a("v_mul_f32 v%d, s58, v%d" % (t + 1, t + 2))
        a("v_mul_f32 v%d, s57, v%d" % (t, t + 2))
        a("v_fma_f32 v%d, -v%d, v%d, v%d" % (t + 1, t, t, t + 1))
        a("v_add_f32 v%d, s56, v%d" % (t, t))
        a("v_max_f32 v%d, 0, v%d" % (t + 1, t + 1))
        a("v_cvt_pk_bf16_f32 v%d, v%d, v%d" % (t + 2, t, t + 1))
        a("v_and_b32 v%d, 0xffff0000, v%d" % (t + 1, t + 2))
        a("v_lshlrev_b32 v%d, 16, v%d" % (t, t + 2))
        a("v_add_f32 v%d, %s, v%d" % (t + 1, f32(1e-5), t + 1))
        a("v_cvt_pk_bf16_f32 v%d, v%d, v%d" % (t + 1, t + 1, t + 1))
        a("v_lshlrev_b32 v%d, 16, v%d" % (t + 1, t + 1))
        a("v_sqrt_f32 v%d, v%d" % (t + 1, t + 1))
        for k in range(4):
            a("v_pk_add_f32 v[%d:%d], v[%d:%d], v[%d:%d] op_sel_hi:[1,0] neg_lo:[0,1] neg_hi:[0,1]" % (
                f + 2 * k, f + 2 * k + 1, f + 2 * k, f + 2 * k + 1, t, t + 1))
        a("v_cvt_pk_bf16_f32 v%d, v%d, v%d" % (t + 2, t + 1, t + 1))
        a("v_lshlrev_b32 v%d, 16, v%d" % (t + 2, t + 2))
        a("v_rcp_f32 v%d, v%d" % (t + 2, t + 2))
        for k in range(4):
            a("v_cvt_pk_bf16_f32 v%d, v%d, v%d" % (src + k, f + 2 * k, f + 2 * k + 1))
        for k in range(4):
            a("v_lshlrev_b32 v%d, 16, v%d" % (f + 2 * k, src + k))
            a("v_and_b32 v%d, 0xffff0000, v%d" % (f + 2 * k + 1, src + k))
        for k in range(4):
            a("v_pk_mul_f32 v[%d:%d], v[%d:%d], v[%d:%d] op_sel_hi:[1,0]" % (
                f + 2 * k, f + 2 * k + 1, f + 2 * k, f + 2 * k + 1, t + 2, t + 3))
        for k in range(4):
            a("v_cvt_pk_bf16_f32 v%d, v%d, v%d" % (src + k, f + 2 * k, f + 2 * k + 1))

    def inbox_reduce(self, nl, voff, soff, L, T, out):
        a = self.a
        top, ok, chk = self.lbl("rp"), self.lbl("rok"), self.lbl("rchk")
        a("s_mov_b32 s13, 0")
        a.label(top)
        for i in range(nl):
            if i < 4:
                a("buffer_load_dwordx4 v[%d:%d], %s, s[48:51], %s offen offset:%d sc1" % (L + 4 * i, L + 4 * i + 3, voff, soff[0], i * 1024))
            else:
                a("buffer_load_dwordx4 v[%d:%d], %s, s[48:51], %s offen offset:%d sc1" % (L + 4 * i, L + 4 * i + 3, voff, soff[1], (i - 4) * 1024))

        def padd(d, x, y):
            for h in (0, 2):
                a("v_pk_add_f32 v[%d:%d], v[%d:%d], v[%d:%d]" % (d + h, d + h + 1, x + h, x + h + 1, y + h, y + h + 1))
        for k in range(nl // 2):
            a("s_waitcnt vmcnt(%d)" % (nl - 2 - 2 * k))
            padd(T + 4 * k, L + 8 * k, L + 8 * k + 4)
        padd(T, T, T + 4)
        if nl == 8:
            padd(T + 8, T + 8, T + 12)
            padd(T, T, T + 8)
        elif nl == 7:
            a("s_waitcnt vmcnt(0)")
            padd(T + 8, T + 8, L + 24)
            padd(T, T, T + 8)
        a("s_nop 1")
        a("v_permlane16_swap_b32 v%d, v%d" % (T, T + 1))
        a("v_permlane16_swap_b32 v%d, v%d" % (T + 2, T + 3))
        a("v_add_f32 v%d, v%d, v%d" % (T, T, T + 1))
        a("v_add_f32 v%d, v%d, v%d" % (T + 2, T + 2, T + 3))
        a("s_nop 1")
        a("v_permlane32_swap_b32 v%d, v%d" % (T, T + 2))
        a("v_add_f32 v%d, v%d, v%d" % (T, T, T + 2))
        a("s_nop 1")
        a("v_add_f32_dpp %s, v%d, v%d row_ror:8 row_mask:0xf bank_mask:0xf" % (out, T, T))
        a("v_cmp_u_f32 vcc, %s, %s" % (out, out))
        a("s_cbranch_vccz %s" % ok)
        a("s_add_u32 s13, s13, 1")
        a("s_and_b32 s14, s13, 15")
        a("s_cbranch_scc1 %s" % top)
        regs = [L + i for i in range(4 * nl)]
        a("v_max_u32 v%d, v%d, v%d" % (T + 4, regs[0], regs[1]))
        for i in range(2, 4 * nl, 2):
            a("v_max3_u32 v%d, v%d, v%d, v%d" % (T + 4, T + 4, regs[i], regs[i + 1]))
        a("v_cmp_eq_u32 vcc, -1, v%d" % (T + 4))
        a("s_cbranch_vccz %s" % ok)
        a("s_cmp_lt_u32 s13, %d" % self.c.poll_max)
        a("s_cbranch_scc1 %s" % top)
        a.label(ok)

    def ld(self, voff, srd, pol):
        self.a("buffer_load_dwordx4 %s, s[%d:%d], s15 offen%s lds" % (voff, srd, srd + 3, (" " + pol) if pol else ""))

    def tile_loop(self, voffs, srd, n, step, pol, thr):
        a = self.a
        top = self.lbl("tl")
        a("s_movk_i32 s13, %d" % n)
        a.label(top)
        for v in voffs:
            self.ld(v[0], v[1] if srd is None else srd, pol)
            a("s_addk_i32 m0, %d" % v[2])
            if thr:
                a("s_waitcnt vmcnt(%d)" % (thr - 1))
            else:
                a("s_nop 0")
        a("s_add_u32 s15, s15, %d" % step)
        a("s_sub_u32 s13, s13, 1")
        a("s_cmp_lg_u32 s13, 0")
        a("s_cbranch_scc1 %s" % top)

    def build(self):
        a, c = self.a, self.c
        a("s_cmp_ge_u32 s2, 256")
        a("s_cbranch_scc1 L_END")
        a("s_load_dwordx16 s[16:31], s[0:1], 0")
        a("s_load_dwordx8 s[32:39], s[0:1], 64")
        self.stamps_init()
        if c.diag:
            a("s_memrealtime s[72:73]")
        a("v_lshrrev_b32 v1, 6, v0")
        a("v_and_b32 v0, 63, v0")
        a("v_readfirstlane_b32 s3, v1")
        a("s_lshr_b32 s5, s2, 3")
        a("s_cmp_lg_u32 s3, 1")
        a("s_cbranch_scc1 L_NOINIT")
        if c.code_pf:
            a("s_getpc_b64 s[56:57]")
            a.label("L_PC")
            a("s_sub_u32 s56, s56, L_PC-%s" % NAME)
            a("s_subb_u32 s57, s57, 0")
            a("v_and_b32 v6, 3, v0")
            a("v_lshl_add_u32 v6, s5, 2, v6")
            a("v_lshlrev_b32 v6, 7, v6")
            a("v_min_u32 v6, L_END-%s, v6" % NAME)
            a("global_load_dword v47, v6, s[56:57]")
        a("v_min_u32 v6, 39, v0")
        a("v_lshlrev_b32 v6, 3, v6")
        a("v_add_u32 v6, %d, v6" % ZERO)
        a("v_mov_b32 v12, 0")
        a("v_mov_b32 v13, 0")
        a("ds_write_b64 v6, v[12:13]")
        a.label("L_NOINIT")
        a("s_and_b32 s4, s2, 7")
        a("s_lshr_b32 s6, s2, 6")
        a("s_and_b32 s7, s5, 7")
        a("s_lshl_b32 s10, s6, 3")
        a("s_add_u32 s10, s10, s4")
        a("s_lshl_b32 s9, s4, 2")
        a("s_add_u32 s8, s9, s6")
        a("s_and_b32 s11, s3, 3")
        a("s_mov_b32 s66, 2")
        a("s_cmp_lt_u32 s5, 29")
        a("s_cselect_b32 s66, 1, s66")
        a("s_cmp_lt_u32 s5, 22")
        a("s_cselect_b32 s66, 3, s66")
        a("s_cmp_lt_u32 s5, 8")
        a("s_cselect_b32 s66, 0, s66")
        a("s_lshr_b32 s70, s5, 2")
        a("s_add_u32 s70, s70, s4")
        a("s_and_b32 s70, s70, %d" % (3 if c.decor else 0))
        a("s_lshl_b32 s70, s70, 7")
        a("s_cmp_lt_u32 s3, 4")
        a("s_cbranch_scc1 L_SROLE")
        self.k_early()
        self.s_early()
        self.k_main()
        self.k_scores()
        self.s0_late()
        self.s1_late()
        self.s2_late()
        self.stage2()
        self.reducer()
        self.ffn()
        if c.diag:
            a.label("L_DIAG_END")
            a("s_memrealtime s[94:95]")
            a("s_waitcnt lgkmcnt(0)")
            a("s_mov_b64 exec, -1")
            for k in range(12):
                a("v_mov_b32 v%d, s%d" % (4 + k, 72 + 2 * k))
            a("s_mul_i32 s14, s2, 12")
            a("s_add_u32 s14, s14, s3")
            a("s_lshl_b32 s14, s14, 6")
            a("s_add_u32 s14, s14, %d" % WS_TS)
            a("v_mov_b32 v1, 0")
            a("s_mov_b64 exec, 1")
            for k in range(3):
                a("buffer_store_dwordx4 v[%d:%d], v1, s[48:51], s14 offen offset:%d" % (4 + 4 * k, 7 + 4 * k, 16 * k))
            a("s_waitcnt vmcnt(0)")
        a.label("L_END")
        a("s_endpgm")
        return a.text()

    def k_issue(self, i):
        a, c = self.a, self.c
        lo = c.tkv if i < c.ramp_at + c.tkv else c.tkv2
        if i >= lo and lo < c.thi:
            skip = self.lbl("thr")
            a("s_cbranch_vccz %s" % skip)
            a("s_waitcnt vmcnt(%d)" % (lo - 1))
            a.label(skip)
        if i & 15:
            a("s_addk_i32 m0, 1024")
        else:
            a("s_mov_b32 m0, s12")
        if i < 16:
            u, dseg, half = i >> 3, (i >> 1) & 3, i & 1
            a("s_xor_b32 s15, s62, %d" % (u * 8192 + dseg * 128))
            self.ld("v2" if half else "v1", 40, c.pol_kv)
        else:
            a("s_xor_b32 s15, s63, %d" % ((i - 16) * 4096))
            self.ld("v3", 44, c.pol_kv)

    def k_early(self):
        a, c = self.a, self.c
        T = c.tkv
        a("v_lshrrev_b32 v13, 3, v0")
        a("v_and_b32 v14, 7, v0")
        a("v_lshrrev_b32 v15, 1, v13")
        a("v_xor_b32 v1, v14, v15")
        a("v_lshlrev_b32 v1, 4, v1")
        a("v_lshl_add_u32 v1, v13, 9, v1")
        a("v_xor_b32 v2, 64, v1")
        a("v_add_u32 v2, 4096, v2")
        a("v_lshlrev_b32 v3, 1, v15")
        a("v_xor_b32 v3, v14, v3")
        a("v_lshlrev_b32 v3, 4, v3")
        a("v_lshl_add_u32 v3, v13, 9, v3")
        a("v_mov_b32 v13, %d" % FL)
        a("s_lshl_b32 s12, s11, 14")
        a("s_lshl_b32 s56, s10, 21")
        a("s_add_u32 s56, s56, 0x180000")
        a("s_lshl_b32 s57, s7, 16")
        a("s_add_u32 s56, s56, s57")
        a("s_lshl_b32 s63, s4, 1")
        a("s_add_u32 s63, s63, s5")
        a("s_and_b32 s63, s63, %d" % (15 if c.decor else 0))
        a("s_lshl_b32 s63, s63, 12")
        a("s_and_b32 s62, s63, 0x2000")
        a("s_or_b32 s62, s62, s70")
        a("s_and_b32 s57, s63, 0x1000")
        a("v_xor_b32 v1, s57, v1")
        a("v_xor_b32 v2, s57, v2")
        a("s_and_b32 s57, s63, 0xc000")
        a("s_xor_b32 s57, s57, s12")
        a("s_add_u32 s57, s56, s57")
        a("s_lshl_b32 s58, s11, 7")
        a("s_add_u32 s58, s58, s56")
        a("s_waitcnt lgkmcnt(0)")
        self.srd(40, 18, "s57", 16384)
        a("s_cmp_lg_u32 s66, 0")
        a("s_cbranch_scc0 L_K_Q")
        for i in range(T):
            self.k_issue(i)
        self.stamp(7)
        a("s_barrier")
        a("s_branch L_KMAIN")
        a.label("L_K_Q")
        a("v_bfe_u32 v16, v0, 3, 2")
        a("v_lshrrev_b32 v17, 5, v0")
        a("v_lshl_add_u32 v16, v17, 3, v16")
        a("v_and_b32 v17, 0x70, v3")
        a("v_lshl_add_u32 v16, v16, 13, v17")
        a("s_lshl_b32 s56, s4, 10")
        a("s_lshl_b32 s57, s5, 7")
        a("s_add_u32 s56, s56, s57")
        self.srd(52, 22, "s56", 447 * 8192 + 128)
        a("s_lshl_b32 s14, s11, 10")
        a("s_add_u32 m0, s14, %d" % BIG)
        a("s_and_b32 s15, s11, 1")
        a("s_lshl_b32 s15, s15, 17")
        a("s_lshr_b32 s14, s11, 1")
        a("s_lshl_b32 s14, s14, 15")
        a("s_add_u32 s15, s15, s14")
        self.tile_loop([("v16", 52, 4096)], 52, 6, 32 * 8192, c.pol_wq, 0)
        a("s_barrier")
        self.tile_loop([("v16", 52, 4096)], 52, 8, 32 * 8192, c.pol_wq, 0)
        for i in range(T):
            self.k_issue(i)
        self.stamp(7)
        a("s_branch L_KMAIN")

    def k_main(self):
        a, c = self.a, self.c
        KF, VF, QF, SA = 16, 80, 144, 176
        PF, AC, PK = 16, 48, 56
        T = c.tkv
        a.label("L_KMAIN")
        self.srd(44, 20, "s58", 127 * 512 + 128)
        self.srd(48, 38, None, WS_SIZE)
        a("v_and_b32 v189, 15, v0")
        a("v_lshrrev_b32 v14, 4, v0")
        a("v_lshrrev_b32 v15, 1, v189")
        a("v_xor_b32 v4, v14, v15")
        a("v_lshlrev_b32 v4, 4, v4")
        a("v_lshl_add_u32 v4, v189, 7, v4")
        a("v_add_u32 v4, s12, v4")
        a("v_xor_b32 v5, 64, v4")
        a("v_and_b32 v15, 1, v0")
        a("v_mul_u32_u24 v10, %d, v15" % QS_STR)
        a("v_lshl_add_u32 v10, v14, 4, v10")
        a("v_add_u32 v10, %d, v10" % QS)
        a("v_mul_u32_u24 v11, %d, v15" % PS_STR)
        a("v_lshl_add_u32 v11, v14, 4, v11")
        a("s_lshl_b32 s14, s11, 6")
        a("s_add_u32 s14, s14, %d" % SCL)
        a("v_add_u32 v12, s14, v11")
        a("v_add_u32 v11, %d, v11" % PS)
        a("v_mov_b32 v184, %d" % ZERO)
        a("v_and_b32 v185, 2, v0")
        a("v_cmp_eq_u32 vcc, 0, v185")
        a("v_lshlrev_b32 v188, 13, v15")
        a("v_lshl_add_u32 v188, v14, 9, v188")
        a("v_cndmask_b32 v186, v184, v11, vcc")
        a("v_cndmask_b32 v187, v11, v184, vcc")
        a("v_lshl_add_u32 v188, v185, 7, v188")
        a("v_mov_b32 v184, %d" % OOB)
        a("v_cmp_gt_u32 vcc, 4, v189")
        a("s_lshr_b32 s59, s8, 1")
        a("s_lshl_b32 s59, s59, 14")
        a("v_cndmask_b32 v188, v184, v188, vcc")
        a("s_lshl_b32 s14, s11, 11")
        a("s_add_u32 s59, s59, s14")
        a("s_and_b32 s14, s5, 15")
        a("s_lshl_b32 s14, s14, 4")
        a("s_add_u32 s59, s59, s14")
        a("s_add_u32 s59, s59, %d" % WS_O)
        self.tr_addrs(6, "s12", "v189", "v14", "v15")
        a("v_mov_b32 v14, 1")
        a("s_mov_b32 s60, 0")
        a("s_cmp_lg_u32 s66, 0")
        a("s_cselect_b64 vcc, -1, 0")
        TH = c.thi
        for i in range(T, TH):
            self.k_issue(i)
        a("s_waitcnt vmcnt(%d)" % TH)
        self.signal("v13", F_WQ, "v14")
        nxt = TH
        last_issue = 31 - TH
        block_at = max(15, last_issue | 1)
        for i in range(28):
            grp_end = (i & 1) == 1 if i < 16 else (i & 3) == 3
            if nxt <= 31 or grp_end:
                a("s_waitcnt vmcnt(%d) lgkmcnt(0)" % (nxt - 1 - i))
            if i == 0:
                self.stamp(8)
            if i == c.st2_hi_at:
                a("s_cmp_eq_u32 s66, 3")
                a("s_cselect_b64 vcc, 0, vcc")
            if grp_end:
                if i < 16:
                    for tt in range(2):
                        r = KF + 4 * (i - 1 + tt)
                        a("ds_read_b128 v[%d:%d], v%d offset:%d" % (r, r + 3, 4 + tt, (i - 1) * 1024))
                else:
                    s = (i - 16) >> 2
                    self.tile_reads(VF + 16 * s, 6, s * 4096)
            if i == c.kd_at:
                self.signal("v13", F_KD, "v14")
            if i == 15:
                self.stamp(1)
            def check(blocking):
                skip = self.lbl("kchk")
                a("s_cmp_lg_u32 s60, 0")
                a("s_cbranch_scc1 %s" % skip)
                if blocking:
                    self.wait_flag("v13", F_Q, 1, "v15")
                else:
                    a("ds_read_b32 v15, v13 offset:%d" % F_Q)
                    a("s_waitcnt lgkmcnt(0)")
                    a("v_readfirstlane_b32 s14, v15")
                    a("s_cmp_eq_u32 s14, 0")
                    a("s_cbranch_scc1 %s" % skip)
                a("s_call_b64 s[64:65], L_SCORES")
                a.label(skip)
            if 15 <= i <= last_issue:
                check(False)
            if nxt <= 31:
                self.k_issue(nxt)
                nxt += 1
                if nxt == 32 and c.wo_early < 4:
                    self.signal("v13", F_VI, "v14")
            if i == max(15, last_issue):
                check(True)
        assert nxt == 32
        self.wait_flag("v13", F_CO, 1, "v15")
        a("s_mov_b32 s61, s14")
        self.wait_flag("v13", F_P, 1, "v15")
        self.stamp(4)
        for s in range(4):
            for hv in range(2):
                r = PF + 8 * s + 4 * hv
                a("ds_read_b128 v[%d:%d], v%d offset:%d" % (r, r + 3, 186 + hv, s * 64))
        for s in range(3):
            for n in range(4):
                if n % 2 == 0:
                    a("s_waitcnt lgkmcnt(%d)" % (7 - 2 * s - (n >> 1)))
                self.mfma(AC + 4 * (n & 1), VF + 16 * s + 4 * n, PF + 8 * s + 4 * (n >> 1), s == 0 and n < 2)
        a("s_waitcnt vmcnt(0)")
        self.stamp(5)
        self.tile_reads(VF + 48, 6, 3 * 4096)
        for n in range(4):
            a("s_waitcnt lgkmcnt(%d)" % (6 - 2 * n))
            self.mfma(AC + 4 * (n & 1), VF + 48 + 4 * n, PF + 24 + 4 * (n >> 1), False)
        a("s_cmp_eq_u32 s61, 2")
        a("s_nop 4")
        a("v_cvt_pk_bf16_f32 v%d, v%d, v%d" % (PK, AC, AC + 1))
        a("v_cvt_pk_bf16_f32 v%d, v%d, v%d" % (PK + 1, AC + 2, AC + 3))
        a("v_cvt_pk_bf16_f32 v%d, v%d, v%d" % (PK + 2, AC + 4, AC + 5))
        a("v_cvt_pk_bf16_f32 v%d, v%d, v%d" % (PK + 3, AC + 6, AC + 7))
        for k in range(4):
            a("v_min_u32 v%d, -2, v%d" % (PK + k, PK + k))
        a("s_cbranch_scc0 L_K_SLOWST")
        a("buffer_store_dwordx4 v[%d:%d], v188, s[48:51], s59 offen" % (PK, PK + 3))
        a("s_branch L_K_STDONE")
        a.label("L_K_SLOWST")
        a("buffer_store_dwordx4 v[%d:%d], v188, s[48:51], s59 offen sc1" % (PK, PK + 3))
        a.label("L_K_STDONE")
        self.signal("v13", F_VD, "v14")
        self.stamp(6)
        self.finish()

    def k_scores(self):
        a, c = self.a, self.c
        KF, VF, QF, SA = 16, 80, 144, 176
        a.label("L_SCORES")
        self.stamp(2)
        for t in range(8):
            a("ds_read_b128 v[%d:%d], v10 offset:%d" % (QF + 4 * t, QF + 4 * t + 3, t * 64))
        for t in range(8):
            a("s_waitcnt lgkmcnt(%d)" % (7 - t))
            for u in range(2):
                self.mfma(SA + 4 * u, KF + 4 * (u * 8 + t), QF + 4 * t, t == 0)
        a("s_mov_b32 s60, 1")
        a("s_nop 6")
        for k in range(4):
            a("v_cvt_pk_bf16_f32 v%d, v%d, v%d" % (QF + k, SA + 2 * k, SA + 2 * k + 1))
        a("s_mov_b32 exec_lo, 0x00030003")
        a("s_mov_b32 exec_hi, 0x00030003")
        a("ds_write_b128 v12, v[%d:%d]" % (QF, QF + 3))
        self.signal("v13", F_SC, "v14")
        self.stamp(3)
        a("s_setpc_b64 s[64:65]")

    def s_early(self):
        a, c = self.a, self.c
        a.label("L_SROLE")
        a("s_setprio 2")
        a("v_mov_b32 v2, %d" % FL)
        a("v_mov_b32 v3, 1")
        a("v_lshlrev_b32 v4, 4, v0")
        a("v_mov_b32 v5, %d" % OOB)
        a("v_cmp_gt_u32 vcc, 56, v0")
        a("s_mul_i32 s67, s11, 896")
        a("s_mul_i32 s62, s4, 7")
        a("s_add_u32 s62, s62, s5")
        a("s_sub_u32 s62, s62, 22")
        a("v_cndmask_b32 v5, v5, v4, vcc")
        a("v_and_b32 v17, 7, v0")
        a("v_bfe_u32 v18, v0, 4, 2")
        a("v_lshlrev_b32 v18, 1, v18")
        a("v_xor_b32 v17, v17, v18")
        a("v_lshlrev_b32 v17, 4, v17")
        a("v_bfe_u32 v16, v0, 3, 2")
        a("v_lshrrev_b32 v18, 5, v0")
        a("s_waitcnt lgkmcnt(0)")
        self.srd(48, 38, None, WS_SIZE)
        self.srd(52, 16, None, 3584)
        a("s_cmp_lg_u32 s66, 0")
        a("s_cbranch_scc1 L_S_NOX")
        a("buffer_load_dwordx4 v[8:11], v5, s[52:55], s67 offen")
        a.label("L_S_NOX")
        a("s_cmp_eq_u32 s11, 1")
        a("s_cbranch_scc1 L_S1")
        a("s_cmp_eq_u32 s11, 2")
        a("s_cbranch_scc1 L_S2")
        a("s_barrier")
        a("s_cmp_eq_u32 s11, 3")
        a("s_cbranch_scc1 L_S3")
        a("s_cmp_lg_u32 s66, 0")
        a("s_cbranch_scc1 L_S0_TAG")
        a("s_waitcnt vmcnt(0)")
        a("s_call_b64 s[64:65], L_LN1")
        a("s_branch L_S0_GATHER")
        a.label("L_S1")
        if c.wq_pf_n:
            a("s_cmp_lt_u32 s5, 22")
            a("s_cbranch_scc1 L_S1_NOWQ2")
            a("v_lshrrev_b32 v6, 3, v0")
            a("v_lshlrev_b32 v6, 13, v6")
            a("v_and_b32 v7, 7, v0")
            a("v_lshl_add_u32 v6, v7, 7, v6")
            a("s_sub_u32 s56, s5, 22")
            a("s_mul_i32 s56, s56, %d" % (c.wq_pf_n * 65536))
            a("s_add_u32 s56, s56, %d" % ((448 - 80 * c.wq_pf_n) * 8192))
            a("s_lshl_b32 s57, s4, 10")
            self.srd(40, 22, "s57", 447 * 8192 + 1024)
            for k in range(c.wq_pf_n):
                a("buffer_load_dword v%d, v6, s[40:43], s56 offen %s" % (40 + k, c.pol_pf))
                a("s_add_u32 s56, s56, 65536")
            a.label("L_S1_NOWQ2")
        if c.wq_pf:
            a("s_cmp_lg_u32 s66, 2")
            a("s_cbranch_scc1 L_S1_NOWQ")
            a("v_lshlrev_b32 v6, 13, v0")
            a("s_sub_u32 s56, s5, 28")
            a("s_lshl_b32 s56, s56, 20")
            a("s_lshl_b32 s57, s4, 10")
            a("s_add_u32 s57, s57, 384")
            self.srd(40, 22, "s57", 447 * 8192 + 128)
            a("buffer_load_dword v12, v6, s[40:43], s56 offen %s" % c.pol_pf)
            a("s_add_u32 s56, s56, %d" % (64 * 8192))
            a("buffer_load_dword v13, v6, s[40:43], s56 offen %s" % c.pol_pf)
            a.label("L_S1_NOWQ")
        a("s_barrier")
        a("s_cmp_lg_u32 s66, 0")
        a("s_cbranch_scc1 L_S1_SM")
        a("s_waitcnt vmcnt(0)")
        a("s_call_b64 s[64:65], L_LN1")
        a("s_branch L_S1_SM")
        a.label("L_S2")
        a("v_mov_b32 v19, 0")
        a("buffer_load_dword v7, v19, s[48:51], 0 offen sc1")
        for k in range(4):
            a("v_mov_b32 v%d, -1" % (12 + k))
        a("v_and_b32 v18, 7, v0")
        a("v_lshlrev_b32 v18, 4, v18")
        a("s_lshl_b32 s56, s4, 15")
        a("s_lshl_b32 s57, s5, 10")
        a("s_add_u32 s56, s56, s57")
        a("s_add_u32 s56, s56, %d" % WS_O)
        a("buffer_store_dwordx4 v[12:15], v4, s[48:51], s56 offen sc1")
        a("s_barrier")
        a("s_cmp_eq_u32 s66, 2")
        a("s_cbranch_scc0 L_S2_K")
        a("s_lshl_b32 s56, s4, 9")
        a("s_add_u32 s56, s56, %d" % WS_ST)
        a("s_cmp_eq_u32 s5, 31")
        a("s_cselect_b32 s56, s56, %d" % OOB)
        a("s_mov_b32 exec_hi, 0")
        a("buffer_store_dwordx4 v[12:15], v4, s[48:51], s56 offen sc1")
        a("s_branch L_S2_CLR")
        a.label("L_S2_K")
        a("s_cmp_eq_u32 s66, 0")
        a("s_cbranch_scc1 L_S2_H")
        a("s_cmp_eq_u32 s66, 1")
        a("s_cbranch_scc1 L_S2_C")
        a("v_lshrrev_b32 v16, 5, v0")
        a("v_mul_u32_u24 v16, 14, v16")
        a("v_bfe_u32 v17, v0, 4, 1")
        a("v_add_u32 v16, v16, v17")
        a("v_lshlrev_b32 v16, 12, v16")
        a("v_and_b32 v17, 15, v0")
        a("v_lshl_add_u32 v16, v17, 4, v16")
        a("s_sub_u32 s57, s5, 8")
        a("s_lshr_b32 s56, s57, 1")
        a("s_lshl_b32 s56, s56, 13")
        a("s_and_b32 s57, s57, 1")
        a("s_lshl_b32 s57, s57, 8")
        a("s_add_u32 s56, s56, s57")
        a("s_lshl_b32 s57, s4, 9")
        a("s_add_u32 s56, s56, s57")
        a("s_add_u32 s56, s56, %d" % WS_A)
        a("buffer_store_dwordx4 v[12:15], v16, s[48:51], s56 offen sc1")
        a("s_add_u32 s56, s56, %d" % (28 * 4096))
        a("buffer_store_dwordx4 v[12:15], v16, s[48:51], s56 offen sc1")
        a("s_branch L_S2_CLR")
        a.label("L_S2_C")
        a("v_lshrrev_b32 v17, 3, v0")
        a("v_mul_u32_u24 v16, %d, v17" % (NF * 128))
        a("v_add_u32 v16, v16, v18")
        a("s_lshl_b32 s56, s62, 7")
        a("s_add_u32 s56, s56, %d" % WS_C)
        for k in range(4):
            a("buffer_store_dwordx4 v[12:15], v16, s[48:51], s56 offen sc1")
            a("s_add_u32 s56, s56, %d" % (8 * NF * 128))
        a("s_branch L_S2_CLR")
        a.label("L_S2_H")
        a("v_lshrrev_b32 v17, 2, v0")
        a("v_mul_u32_u24 v16, %d, v17" % HREP_STRIDE)
        a("v_and_b32 v17, 3, v0")
        a("v_lshl_add_u32 v16, v17, 4, v16")
        a("s_lshl_b32 s56, s2, 7")
        a("s_add_u32 s56, s56, %d" % WS_H)
        a("s_mov_b32 exec_lo, 0x%x" % ((1 << (4 * c.hrep)) - 1))
        a("s_mov_b32 exec_hi, 0")
        a("buffer_store_dwordx4 v[12:15], v16, s[48:51], s56 offen sc1")
        a.label("L_S2_CLR")
        a("s_mov_b64 exec, -1")
        a("s_waitcnt vmcnt(2)")
        a("v_readfirstlane_b32 s68, v7")
        a("s_or_b32 s68, s68, 1")
        a("s_mul_i32 s68, s68, 0x9E3779B1")
        a("s_add_u32 s68, s68, 0x85EBCA6A")
        a("s_getreg_b32 s69, hwreg(HW_REG_XCC_ID)")
        a("s_and_b32 s69, s69, 15")
        a("v_mov_b32 v20, s68")
        a("v_mov_b32 v21, s69")
        a("s_mov_b64 exec, 1")
        a("ds_write_b32 v2, v20 offset:%d" % F_TAG)
        a("s_mov_b64 exec, -1")
        a("s_cmp_lg_u32 s66, 0")
        a("s_cbranch_scc1 L_S2_FLAG")
        a("s_call_b64 s[64:65], L_LN1")
        a("s_waitcnt vmcnt(2)")
        a("s_branch L_S2_FLAG2")
        a.label("L_S3")
        a("s_cmp_eq_u32 s66, 1")
        a("s_cbranch_scc1 L_S3_FFN")
        a("s_cmp_eq_u32 s66, 3")
        a("s_cbranch_scc0 L_S3_Q")
        a("v_lshl_add_u32 v20, v18, 5, v16")
        a("v_mul_u32_u24 v20, 896, v20")
        a("v_add_u32 v20, v20, v17")
        for k, rows in enumerate((4, 16, 20, 8, 12, 24, 28)):
            a("v_add_u32 v%d, %d, v20" % (21 + k, rows * 896))
        a("s_sub_u32 s57, s5, 8")
        a("s_and_b32 s56, s57, 1")
        a("s_lshl_b32 s58, s4, 1")
        a("s_add_u32 s56, s56, s58")
        a("s_mul_i32 s56, s56, %d" % (256 * 896))
        a("s_lshr_b32 s57, s57, 1")
        a("s_lshl_b32 s57, s57, 7")
        a("s_add_u32 s56, s56, s57")
        self.srd(52, 24, "s56", 255 * 896 + 128)
        a("s_mov_b32 m0, %d" % BIG)
        a("s_movk_i32 s15, 0")
        wv = [("v%d" % (20 + k), 52, 1024) for k in range(8)]
        if c.wo_early:
            self.tile_loop(wv, 52, c.wo_early, 64 * 896, c.pol_wo, c.wo_thr)
        if c.wo_early < 4:
            self.wait_flag("v2", F_VI, 4, "v28", sleep=1)
            self.tile_loop(wv, 52, 4 - c.wo_early, 64 * 896, c.pol_wo, 0)
        a("s_waitcnt vmcnt(0)")
        self.signal("v2", F_WO, "v3")
        self.stamp(1)
        a("s_branch L_STAGE2")
        a.label("L_S3_Q")
        a("s_cmp_lg_u32 s66, 0")
        a("s_cbranch_scc1 L_S3_PF")
        a("s_waitcnt vmcnt(0)")
        a("s_call_b64 s[64:65], L_LN1")
        a("s_branch L_S3_PF")
        a.label("L_LN1")
        self.layernorm(8, 24, 32)
        a("s_mul_i32 s14, s11, %d" % XN_STR)
        a("s_add_u32 s14, s14, %d" % XN)
        a("v_add_u32 v6, s14, v4")
        a("s_mov_b32 exec_hi, 0x00ffffff")
        a("ds_write_b128 v6, v[8:11]")
        self.signal("v2", F_XN, "v3")
        XF, WF, AC = 48, 104, 160
        a("v_lshrrev_b32 v24, 2, v0")
        a("v_bfe_u32 v25, v0, 3, 2")
        a("v_and_b32 v26, 3, v0")
        a("v_lshlrev_b32 v24, 7, v24")
        a("v_lshl_add_u32 v24, v26, 3, v24")
        a("v_xor_b32 v25, s11, v25")
        a("v_lshl_add_u32 v24, v25, 5, v24")
        a("v_add_u32 v24, %d, v24" % BIG)
        a("v_lshrrev_b32 v25, 4, v0")
        a("v_mul_u32_u24 v6, %d, v26" % XN_STR)
        a("v_lshl_add_u32 v6, v25, 4, v6")
        a("v_add_u32 v6, %d, v6" % XN)
        a("v_lshlrev_b32 v27, 14, v26")
        a("v_lshl_add_u32 v27, v25, 4, v27")
        a("s_lshl_b32 s56, s4, 11")
        a("s_lshl_b32 s57, s5, 8")
        a("s_add_u32 s56, s56, s57")
        a("s_lshl_b32 s57, s11, 6")
        a("s_add_u32 s56, s56, s57")
        a("s_add_u32 s56, s56, %d" % WS_Q)
        a("s_add_u32 s57, s56, %d" % (WS_QF - WS_Q))
        self.wait_flag("v2", F_XN, 4, "v28")
        for s in range(14):
            a("ds_read_b128 v[%d:%d], v6 offset:%d" % (XF + 4 * s, XF + 4 * s + 3, s * 64))
        self.wait_flag("v2", F_TAG, 1, "v28")
        a("v_mov_b32 v9, s14")
        a("v_mov_b32 v11, s14")
        self.stamp(9)
        self.wait_flag("v2", F_WQ, 4, "v28")
        for s in range(14 + 6):
            if s < 14:
                for hh in range(2):
                    r = WF + 4 * s + 2 * hh
                    a("ds_read_b64_tr_b16 v[%d:%d], v24 offset:%d" % (r, r + 1, s * 4096 + hh * 2048))
            p = s - 6
            if p >= 0:
                a("s_waitcnt lgkmcnt(%d)" % (2 * (min(s, 13) - p)))
                self.mfma(AC, WF + 4 * p, XF + 4 * p, p == 0)
        a("s_mov_b32 exec_lo, 0x000f000f")
        a("s_mov_b32 exec_hi, 0x000f000f")
        a("s_nop 5")
        a("v_cvt_pk_bf16_f32 v8, v%d, v%d" % (AC, AC + 1))
        a("v_cvt_pk_bf16_f32 v10, v%d, v%d" % (AC + 2, AC + 3))
        a("buffer_store_dwordx4 v[8:11], v27, s[48:51], s57 offen")
        a("buffer_store_dwordx4 v[8:11], v27, s[48:51], s56 offen sc1")
        a("s_mov_b64 exec, -1")
        self.stamp(10)
        a("s_setpc_b64 s[64:65]")

    def s_next(self):
        a = self.a
        a("s_cmp_eq_u32 s66, 3")
        a("s_cbranch_scc1 L_STAGE2")
        a("s_cmp_eq_u32 s66, 1")
        a("s_cbranch_scc1 L_FFN")
        self.finish()

    def s0_late(self):
        a, c = self.a, self.c
        a.label("L_S0_TAG")
        a.label("L_S0_GATHER")
        self.wait_flag("v2", F_TAG, 1, "v24", sleep=2)
        a("s_mov_b32 s68, s14")
        a("s_lshl_b32 s56, s10, 11")
        a("s_add_u32 s56, s56, %d" % WS_Q)
        a("v_lshlrev_b32 v7, 3, v0")
        a("v_xor_b32 v7, s70, v7")
        a("v_add_u32 v7, %d, v7" % QS)
        self.wait_flag("v2", F_KD, 4, "v24", sleep=1)
        a("s_add_u32 s57, s56, %d" % (WS_QF - WS_Q))
        a("s_mov_b32 s13, 1")
        a.label("L_QPOLL")
        a("s_and_b32 s14, s13, %d" % (c.fast_n - 1))
        a("s_cselect_b32 s58, s57, s56")
        a("buffer_load_dwordx4 v[8:11], v4, s[48:51], s58 offen sc1")
        a("buffer_load_dwordx4 v[12:15], v4, s[48:51], s58 offen offset:1024 sc1")
        a("s_waitcnt vmcnt(0)")
        a("v_xor_b32 v9, s68, v9")
        a("v_xor_b32 v11, s68, v11")
        a("v_xor_b32 v13, s68, v13")
        a("v_xor_b32 v15, s68, v15")
        a("v_or3_b32 v9, v9, v11, v13")
        a("v_or_b32 v9, v9, v15")
        a("v_cmp_ne_u32 vcc, 0, v9")
        a("s_cbranch_vccz L_QOK")
        a("s_add_u32 s13, s13, 1")
        a("s_cmp_lt_u32 s13, %d" % c.poll_max)
        a("s_cbranch_scc1 L_QPOLL")
        a.label("L_QOK")
        a("v_mov_b32 v9, v10")
        a("v_mov_b32 v13, v14")
        a("ds_write_b64 v7, v[8:9]")
        a("ds_write_b64 v7, v[12:13] offset:%d" % QS_STR)
        self.signal("v2", F_Q, "v3")
        self.stamp(4)
        self.s_next()

    def s1_late(self):
        a, c = self.a, self.c
        a.label("L_S1_SM")
        a("v_lshrrev_b32 v6, 5, v0")
        a("v_mul_u32_u24 v6, %d, v6" % PS_STR)
        a("v_and_b32 v7, 31, v0")
        a("v_lshl_add_u32 v6, v7, 3, v6")
        a("v_add_u32 v6, %d, v6" % SCL)
        a("v_cmp_gt_u32 s[58:59], 32, v0")
        a("s_mov_b32 s61, %s" % f32(0.0625 * LOG2E))
        a("s_lshr_b32 s56, s8, 1")
        a("s_lshl_b32 s56, s56, 8")
        a("s_and_b32 s57, s5, 15")
        a("s_lshl_b32 s57, s57, 3")
        a("s_add_u32 s56, s56, s57")
        a("s_add_u32 s56, s56, %d" % WS_ST)
        a("v_lshrrev_b32 v7, 5, v0")
        a("v_lshlrev_b32 v7, 7, v7")
        a("s_waitcnt vmcnt(0)")
        self.wait_flag("v2", F_SC, 4, "v24", sleep=1)
        self.stamp(2)
        a("ds_read_b64 v[8:9], v6")
        a("s_waitcnt lgkmcnt(0)")
        a("v_lshlrev_b32 v12, 16, v8")
        a("v_and_b32 v13, 0xffff0000, v8")
        a("v_lshlrev_b32 v14, 16, v9")
        a("v_and_b32 v15, 0xffff0000, v9")
        a("v_max3_f32 v16, v12, v13, v14")
        a("v_max_f32 v16, v16, v15")

        def half_reduce(op, x):
            for ctl in ("row_shr:1", "row_shr:2", "row_shr:4", "row_shr:8"):
                a("s_nop 1")
                a("%s_dpp %s, %s, %s %s row_mask:0xf bank_mask:0xf" % (op, x, x, x, ctl))
            a("s_nop 1")
            a("%s_dpp %s, %s, %s row_bcast:15 row_mask:0xa bank_mask:0xf" % (op, x, x, x))
            a("s_nop 0")
        half_reduce("v_max_f32", "v16")
        a("v_readlane_b32 s64, v16, 31")
        a("v_readlane_b32 s65, v16, 63")
        a("s_nop 1")
        a("v_mov_b32 v20, s64")
        a("v_mov_b32 v22, s65")
        a("v_mul_f32 v20, s61, v20")
        a("v_mul_f32 v22, s61, v22")
        a("v_cndmask_b32 v18, v22, v20, s[58:59]")
        for k in range(4):
            a("v_fma_f32 v%d, v%d, s61, -v18" % (12 + k, 12 + k))
        for k in range(4):
            a("v_exp_f32 v%d, v%d" % (12 + k, 12 + k))
        a("s_nop 0")
        a("v_cvt_pk_bf16_f32 v8, v12, v13")
        a("v_cvt_pk_bf16_f32 v9, v14, v15")
        a("ds_write_b64 v6, v[8:9] offset:%d" % (PS - SCL))
        self.signal("v2", F_P, "v3")
        self.stamp(3)
        a("v_add_f32 v19, v12, v13")
        a("v_add_f32 v17, v14, v15")
        a("v_add_f32 v19, v19, v17")
        half_reduce("v_add_f32", "v19")
        a("v_min_u32 v18, -2, v18")
        a("v_min_u32 v19, -2, v19")
        self.wait_flag("v2", F_CO, 1, "v24")
        a("s_mov_b32 exec_lo, 0x80000000")
        a("s_mov_b32 exec_hi, 0x80000000")
        a("s_cmp_eq_u32 s14, 2")
        a("s_cbranch_scc0 L_S1_SLOW")
        a("buffer_store_dwordx2 v[18:19], v7, s[48:51], s56 offen")
        a("s_branch L_S1_DONE")
        a.label("L_S1_SLOW")
        a("buffer_store_dwordx2 v[18:19], v7, s[48:51], s56 offen sc1")
        a.label("L_S1_DONE")
        a("s_mov_b64 exec, -1")
        self.stamp(4)
        self.s_next()

    def s2_late(self):
        a, c = self.a, self.c
        a.label("L_S2_FLAG")
        a("s_waitcnt vmcnt(0)")
        a.label("L_S2_FLAG2")
        a("s_lshl_b32 s56, s4, 12")
        a("s_add_u32 s56, s56, %d" % WS_FLAGS)
        a("s_lshl_b32 s57, s5, 7")
        a("s_add_u32 s57, s57, s56")
        a("s_lshl_b32 s58, s4, 8")
        a("s_add_u32 s58, s58, %d" % WS_FF)
        a("s_lshl_b32 s59, s5, 3")
        a("s_add_u32 s59, s59, s58")
        a("s_mov_b64 exec, 1")
        a("buffer_store_dwordx2 v[20:21], v19, s[48:51], s59 offen")
        a("buffer_store_dwordx2 v[20:21], v19, s[48:51], s57 offen sc1")
        a("s_mov_b64 exec, -1")
        self.stamp(1)
        a("v_and_b32 v16, 31, v0")
        a("v_lshlrev_b32 v17, 3, v16")
        a("v_lshlrev_b32 v16, 7, v16")
        self.wait_flag("v2", F_KD, 1, "v24", sleep=2)
        a("s_mov_b32 s13, 1")
        a.label("L_GPOLL")
        a("s_and_b32 s14, s13, %d" % (c.fast_n - 1))
        a("s_cbranch_scc0 L_GSLOW")
        a("buffer_load_dwordx2 v[12:13], v17, s[48:51], s58 offen sc1")
        a("s_branch L_GCHK")
        a.label("L_GSLOW")
        a("buffer_load_dwordx2 v[12:13], v16, s[48:51], s56 offen sc1")
        a.label("L_GCHK")
        a("s_waitcnt vmcnt(0)")
        a("v_cmp_ne_u32 vcc, s68, v12")
        a("s_cbranch_vccz L_GOK")
        a("s_sleep 2")
        a("s_add_u32 s13, s13, 1")
        a("s_cmp_lt_u32 s13, %d" % c.poll_max)
        a("s_cbranch_scc1 L_GPOLL")
        a.label("L_GOK")
        a("v_cmp_ne_u32 vcc, s69, v13")
        a("s_cmp_eq_u64 vcc, 0")
        a("s_cselect_b32 s14, %d, 1" % (2 if c.fast else 1))
        a("v_mov_b32 v21, s14")
        a("s_mov_b64 exec, 1")
        a("ds_write_b32 v2, v21 offset:%d" % F_CO)
        a("s_cmp_eq_u32 s5, 31")
        a("s_cbranch_scc0 L_S2_NOLEAD")
        a("s_lshl_b32 s58, s4, 7")
        a("s_add_u32 s58, s58, %d" % WS_GOK)
        a("buffer_store_dword v20, v19, s[48:51], s58 offen sc1")
        a.label("L_S2_NOLEAD")
        a("s_mov_b64 exec, -1")
        self.stamp(2)
        a("s_cmp_eq_u32 s66, 3")
        a("s_cbranch_scc1 L_STAGE2")
        a("s_cmp_eq_u32 s66, 2")
        a("s_cbranch_scc1 L_RED_END")
        a("v_and_b32 v16, 7, v0")
        a("v_lshlrev_b32 v16, 7, v16")
        a("s_mov_b32 s56, %d" % WS_GOK)
        if c.gok_wait:
            self.wait_flag("v2", F_P, 1, "v24", sleep=2)
        a("s_mov_b32 s13, 0")
        a.label("L_APOLL")
        a("buffer_load_dword v12, v16, s[48:51], s56 offen sc1")
        a("s_waitcnt vmcnt(0)")
        a("v_cmp_ne_u32 vcc, s68, v12")
        a("s_cbranch_vccz L_AOK")
        a("s_sleep 4")
        a("s_add_u32 s13, s13, 1")
        a("s_cmp_lt_u32 s13, %d" % c.poll_max)
        a("s_cbranch_scc1 L_APOLL")
        a.label("L_AOK")
        a("s_cmp_eq_u32 s66, 1")
        a("s_cbranch_scc1 L_FFN")
        a("s_branch L_RED")

        a.label("L_S3_PF")
        if c.ffn_pf:
            a("s_sub_u32 s58, s5, 21")
            a("s_cmp_lt_u32 s5, 8")
            a("s_cselect_b32 s58, s5, s58")
            a("v_lshrrev_b32 v6, 2, v0")
            a("v_mul_u32_u24 v6, 3584, v6")
            a("v_and_b32 v7, 3, v0")
            a("v_lshl_add_u32 v6, v7, 7, v6")
            a("s_mul_i32 s56, s4, 448")
            a("s_and_b32 s56, s56, 0xffffff80")
            a("v_lshlrev_b32 v7, 7, v0")
            self.srd(40, 28, None, 448 * 3584)
            self.srd(44, 30, None, 448 * 3584)
            a("s_mul_i32 s57, s58, %d" % (c.pf_rows * 3584))
            a("s_add_u32 s56, s56, s57")
            a("s_add_u32 s56, s56, %d" % ((448 - 11 * c.pf_rows) * 3584))
            a("s_mul_i32 s57, s4, %d" % (224 * 896))
            self.srd(52, 32, "s57", 224 * 896)
            a("s_mul_i32 s57, s58, %d" % (3 * 8192))
            self.wait_flag("v2", F_VD, 4, "v24", sleep=1)
            if c.ffn_delay:
                a("s_sleep %d" % c.ffn_delay)
            for k in range(c.pf_rows // 16):
                a("buffer_load_dword v%d, v6, s[40:43], s56 offen %s" % (12 + 2 * k, c.pol_pf))
                a("buffer_load_dword v%d, v6, s[44:47], s56 offen %s" % (13 + 2 * k, c.pol_pf))
                a("s_add_u32 s56, s56, %d" % (16 * 3584))
            for k in range(3):
                a("buffer_load_dword v%d, v7, s[52:55], s57 offen %s" % (24 + k, c.pol_pf))
                a("s_add_u32 s57, s57, 8192")
            if c.diag:
                a("s_waitcnt vmcnt(0)")
            self.stamp(1)
        self.finish()
        a.label("L_S3_FFN")
        a("v_lshl_add_u32 v24, v18, 3, v16")
        a("v_mul_u32_u24 v24, 896, v24")
        a("v_add_u32 v24, v24, v17")
        a("v_add_u32 v25, %d, v24" % (16 * 896))
        a("v_add_u32 v26, %d, v24" % (4 * 896))
        a("v_add_u32 v27, %d, v24" % (20 * 896))
        a("v_lshrrev_b32 v22, 2, v0")
        a("v_mul_u32_u24 v20, 3584, v22")
        a("v_and_b32 v23, 3, v0")
        a("v_xor_b32 v23, v23, v18")
        a("v_lshl_add_u32 v20, v23, 4, v20")
        a("v_xor_b32 v21, 32, v20")
        a("s_lshl_b32 s56, s62, 6")
        self.srd(40, 28, "s56", 447 * 3584 + 64)
        self.srd(44, 30, "s56", 447 * 3584 + 64)
        a("s_mul_i32 s56, s62, %d" % (32 * 896))
        self.srd(52, 32, "s56", 32 * 896)
        a("s_mov_b32 m0, %d" % GT)
        a("s_movk_i32 s15, 0")
        gu = [("v20", 40, 28672), ("v21", 44, 1024 - 28672)]
        if c.ffn_n1:
            self.tile_loop(gu, None, c.ffn_n1, 16 * 3584, c.pol_ffn, c.ffn_thr)
        self.stamp(2)
        self.wait_flag("v2", F_VD, 4, "v28", sleep=1)
        if c.ffn_delay:
            a("s_sleep %d" % c.ffn_delay)
        self.tile_loop(gu, None, 28 - c.ffn_n1, 16 * 3584, c.pol_ffn, 48)
        a("s_mov_b32 m0, %d" % DT)
        a("s_movk_i32 s15, 0")
        self.tile_loop([("v%d" % (24 + k), 52, 1024) for k in range(4)], 52, 7, 128, c.pol_ffn, 48)
        a("s_waitcnt vmcnt(0)")
        self.stamp(1)
        a("s_branch L_FFN")

    def stage2(self):
        a, c = self.a, self.c
        WF, AF, AC, W = 48, 112, 128, 28
        a.label("L_STAGE2")
        a("s_lshr_b32 s70, s11, 1")
        a("s_and_b32 s71, s11, 1")
        a("s_lshl_b32 s71, s71, 1")
        a("s_sub_u32 s64, s5, 8")
        a("s_and_b32 s65, s64, 1")
        a("s_lshr_b32 s64, s64, 1")
        a("s_lshl_b32 s12, s70, 14")
        a("s_add_u32 s12, s12, %d" % BIG)
        self.tr_addrs(12, "s12", "v24", "v25", "v26")
        a("v_and_b32 v24, 7, v0")
        a("v_lshrrev_b32 v25, 4, v0")
        a("v_bfe_u32 v26, v0, 3, 1")
        a("v_and_b32 v17, 15, v0")
        a("v_lshlrev_b32 v17, 3, v17")
        a("v_lshlrev_b32 v18, 4, v24")
        a("v_lshl_add_u32 v18, v26, 12, v18")
        a("v_lshrrev_b32 v27, 5, v0")
        a("v_mul_u32_u24 v27, %d, v27" % (14 * 4096))
        a("v_add_u32 v18, v18, v27")
        a("v_mov_b32 v26, %d" % OOB)
        a("v_and_b32 v27, 1, v25")
        a("v_cmp_eq_u32 vcc, 0, v27")
        a("v_lshlrev_b32 v19, 4, v25")
        a("s_add_u32 s56, s9, s71")
        a("s_lshl_b32 s57, s56, 7")
        a("v_cndmask_b32 v18, v26, v18, vcc")
        a("s_lshl_b32 s14, s65, 7")
        a("s_add_u32 s57, s57, s14")
        a("s_add_u32 s57, s57, %d" % WS_ST)
        a("s_lshl_b32 s14, s65, 1")
        a("s_add_u32 s14, s14, s70")
        a("s_lshl_b32 s56, s56, 1")
        a("s_add_u32 s56, s56, s14")
        a("s_lshl_b32 s56, s56, 12")
        a("s_add_u32 s56, s56, %d" % WS_O)
        a("s_add_u32 s14, s14, s9")
        a("s_lshl_b32 s14, s14, 7")
        a("s_mul_i32 s60, s71, 14")
        a("s_lshl_b32 s61, s64, 1")
        a("s_add_u32 s60, s60, s61")
        a("s_lshl_b32 s60, s60, 12")
        a("s_add_u32 s60, s60, s14")
        a("s_add_u32 s60, s60, %d" % WS_A)
        self.wait_flag("v2", F_WO, 1, "v24", sleep=1)
        for s in range(4):
            self.tile_reads(WF + 16 * s, 12, s * 4096)
            a("s_waitcnt lgkmcnt(0)")
        self.wait_flag("v2", F_CO, 1, "v24", sleep=1)
        self.stamp(5)
        a("s_mov_b32 s13, 0")
        a.label("L_OPOLL")
        a("buffer_load_dwordx2 v[20:21], v17, s[48:51], s57 offen sc1")
        for s in range(4):
            a("buffer_load_dwordx4 v[%d:%d], v4, s[48:51], s56 offen offset:%d sc1" % (AF + 4 * s, AF + 4 * s + 3, s * 1024))
        a("s_waitcnt vmcnt(4)")
        a("v_max_u32 v24, v20, v21")
        for s in range(4):
            a("s_waitcnt vmcnt(%d)" % (3 - s))
            r = AF + 4 * s
            a("v_max3_u32 v24, v24, v%d, v%d" % (r, r + 1))
            a("v_max3_u32 v24, v24, v%d, v%d" % (r + 2, r + 3))
        a("v_cmp_eq_u32 vcc, -1, v24")
        a("s_cbranch_vccz L_OOK")
        a("s_cmp_lg_u32 s13, 0")
        a("s_cbranch_scc1 L_ONEXT")
        self.wait_flag("v2", F_VD, 1, "v24", sleep=1)
        a.label("L_ONEXT")
        a("s_add_u32 s13, s13, 1")
        a("s_cmp_lt_u32 s13, %d" % c.poll_max)
        a("s_cbranch_scc1 L_OPOLL")
        a.label("L_OOK")
        self.stamp(6)

        def epi(n):
            r = AC + 4 * n
            return ["v_pk_mul_f32 v[%d:%d], v[%d:%d], v[%d:%d]" % (r, r + 1, r, r + 1, W, W + 1),
                    "v_pk_fma_f32 v[%d:%d], v[%d:%d], v[%d:%d], v[%d:%d]" % (r, r + 1, r + 2, r + 3, W + 2, W + 3, r, r + 1),
                    "v_add_f32 v%d, v%d, v%d" % (24 + n, r, r + 1)]
        dp = ("quad_perm:[1,0,3,2]", "quad_perm:[2,3,0,1]", "row_half_mirror")
        wts = [["v_max_f32_dpp v22, v20, v20 %s row_mask:0xf bank_mask:0xf" % dp[0]],
               ["s_nop 0", "v_max_f32_dpp v22, v22, v22 %s row_mask:0xf bank_mask:0xf" % dp[1]],
               ["s_nop 0", "v_max_f32_dpp v22, v22, v22 %s row_mask:0xf bank_mask:0xf" % dp[2], "v_sub_f32 v20, v20, v22", "v_exp_f32 v20, v20"],
               ["v_mul_f32 v22, v20, v21"],
               ["s_nop 0", "v_add_f32_dpp v22, v22, v22 %s row_mask:0xf bank_mask:0xf" % dp[0]],
               ["s_nop 0", "v_add_f32_dpp v22, v22, v22 %s row_mask:0xf bank_mask:0xf" % dp[1]],
               ["s_nop 0", "v_add_f32_dpp v22, v22, v22 %s row_mask:0xf bank_mask:0xf" % dp[2], "v_rcp_f32 v22, v22"],
               ["v_mul_f32 v20, v20, v22"] + ["ds_bpermute_b32 v%d, v19, v20 offset:%d" % (W + r, 4 * r) for r in range(4)]]
        fill = epi(0) + epi(1)
        k = 0
        for n in range(4):
            for s in range(4):
                idx = 4 * n + s
                self.mfma(AC + 4 * n, AF + 4 * s, WF + 16 * s + 4 * n, s == 0)
                if idx < len(wts):
                    for ins in wts[idx]:
                        a(ins)
                if idx == 12:
                    a("s_waitcnt lgkmcnt(0)")
                if idx >= 12:
                    a(fill[k]); k += 1
        a(fill[4])
        a(fill[5])
        for ins in epi(2):
            a(ins)
        a("v_permlane16_swap_b32 v24, v25")
        a("v_add_f32 v24, v24, v25")
        for ins in epi(3):
            a(ins)
        a("v_min_u32 v24, -2, v24")
        a("v_mov_b32 v25, v24")
        a("v_permlane16_swap_b32 v26, v27")
        a("v_add_f32 v26, v26, v27")
        a("v_permlane16_swap_b32 v24, v25")
        a("v_min_u32 v26, -2, v26")
        a("v_mov_b32 v27, v26")
        a("s_nop 1")
        a("v_permlane16_swap_b32 v26, v27")
        a("buffer_store_dwordx4 v[24:27], v18, s[48:51], s60 offen sc1")
        self.stamp(7)
        self.final()

    def final(self):
        a, c = self.a, self.c
        L, SEL = 48, 32
        a("s_mul_i32 s63, s11, 14")
        a("s_add_u32 s63, s63, s5")
        a("s_sub_u32 s63, s63, 8")
        a("s_cmp_lg_u32 s4, 0")
        a("s_cselect_b32 s63, 99, s63")
        a("s_cmp_ge_u32 s63, 32")
        a("s_cbranch_scc1 L_RED_END")
        a("s_lshr_b32 s64, s63, 3")
        a("s_bfe_u32 s65, s63, 0x20001")
        a("s_and_b32 s70, s63, 1")
        a("v_bfe_u32 v8, v0, 2, 1")
        a("v_bfe_u32 v9, v0, 3, 1")
        a("v_lshl_add_u32 v8, v8, 1, v9")
        a("v_and_b32 v10, 1, v0")
        a("v_lshlrev_b32 v10, 4, v10")
        a("v_mov_b32 v11, 0x3f80")
        a("v_lshlrev_b32 v11, v10, v11")
        for k in range(4):
            a("v_cmp_eq_u32 vcc, %d, v8" % k)
            a("s_nop 1")
            a("v_cndmask_b32 v%d, 0, v11, vcc" % (SEL + k))
        a("v_bfe_u32 v12, v0, 4, 1")
        a("v_lshrrev_b32 v13, 5, v0")
        a("v_lshl_add_u32 v13, v13, 1, v9")
        a("v_and_b32 v14, 7, v0")
        a("v_lshlrev_b32 v15, 8, v12")
        a("v_lshl_add_u32 v15, v13, 4, v15")
        a("v_and_b32 v16, 6, v14")
        a("v_lshl_add_u32 v15, v16, 1, v15")
        a("v_lshlrev_b32 v17, 7, v12")
        a("v_lshl_add_u32 v17, v13, 5, v17")
        a("v_lshl_add_u32 v17, v14, 1, v17")
        a("s_cmp_eq_u32 s65, 3")
        a("s_cselect_b32 s14, 1, 2")
        a("v_cmp_gt_u32 vcc, s14, v12")
        a("v_mov_b32 v16, %d" % OOB)
        a("v_cmp_eq_u32 s[58:59], 0, v9")
        a("v_cndmask_b32 v15, v16, v15, vcc")
        a("v_cndmask_b32 v17, v16, v17, vcc")
        a("s_mul_i32 s56, s64, 14")
        a("s_lshl_b32 s14, s65, 2")
        a("s_add_u32 s56, s56, s14")
        a("s_add_u32 s56, s56, s70")
        a("s_lshl_b32 s56, s56, 7")
        a("s_add_u32 s56, s56, %d" % WS_H)
        a("s_mul_i32 s69, s64, 896")
        a("s_lshl_b32 s14, s65, 8")
        a("s_add_u32 s69, s69, s14")
        a("s_lshl_b32 s14, s70, 4")
        a("s_add_u32 s69, s69, s14")
        a("s_mul_i32 s60, s63, %d" % (NF * 128))
        a("s_add_u32 s60, s60, %d" % WS_C)
        a("s_add_u32 s61, s60, 4096")
        self.srd(44, 34, None, 3584)
        self.wait_flag("v2", F_TAG, 1, "v24")
        a("s_mov_b32 s68, s14")
        a("v_lshlrev_b32 v16, 7, v14")
        a("s_mov_b32 s57, %d" % WS_GOK)
        a("s_mov_b32 s13, 0")
        a.label("L_FGPOLL")
        a("buffer_load_dword v18, v16, s[48:51], s57 offen sc1")
        a("s_waitcnt vmcnt(0)")
        a("v_cmp_ne_u32 vcc, s68, v18")
        a("s_cbranch_vccz L_FHPOLL")
        a("s_sleep 2")
        a("s_add_u32 s13, s13, 1")
        a("s_cmp_lt_u32 s13, %d" % c.poll_max)
        a("s_cbranch_scc1 L_FGPOLL")
        a.label("L_FHPOLL")
        a("buffer_load_dword v18, v15, s[48:51], s56 offen sc1")
        a("s_waitcnt vmcnt(0)")
        a("v_cmp_eq_u32 vcc, -1, v18")
        a("s_cbranch_vccz L_FHOK")
        a("s_sleep 2")
        a("s_add_u32 s13, s13, 1")
        a("s_cmp_lt_u32 s13, %d" % c.poll_max)
        a("s_cbranch_scc1 L_FHPOLL")
        a.label("L_FHOK")
        a("v_lshrrev_b32 v18, v10, v18")
        a("v_lshlrev_b32 v18, 16, v18")
        self.stamp(8)
        a("s_mov_b32 s13, 0")
        a.label("L_CPOLL")
        for i in range(7):
            a("buffer_load_dwordx4 v[%d:%d], v4, s[48:51], %s offen offset:%d sc1" % (L + 4 * i, L + 4 * i + 3, "s60" if i < 4 else "s61", (i & 3) * 1024))
        for i in range(7):
            a("s_waitcnt vmcnt(%d)" % (6 - i))
            self.mfma(24, SEL, L + 4 * i, i == 0)
        a("s_add_u32 s13, s13, 1")
        a("s_nop 6")
        a("v_cndmask_b32 v20, v24, v25, s[58:59]")
        a("v_cndmask_b32 v21, v25, v24, s[58:59]")
        a("s_nop 0")
        a("v_add_f32_dpp v22, v20, v21 row_ror:8 row_mask:0xf bank_mask:0xf")
        a("v_cmp_u_f32 vcc, v22, v22")
        a("s_cbranch_vccz L_COK")
        a("s_and_b32 s14, s13, 15")
        a("s_cbranch_scc1 L_CPOLL")
        a("v_max_u32 v20, v%d, v%d" % (L, L + 1))
        for i in range(2, 28, 2):
            a("v_max3_u32 v20, v20, v%d, v%d" % (L + i, L + i + 1))
        a("v_cmp_eq_u32 vcc, -1, v20")
        a("s_cbranch_vccz L_COK")
        a("s_cmp_lt_u32 s13, %d" % c.poll_max)
        a("s_cbranch_scc1 L_CPOLL")
        a.label("L_COK")
        a("v_cvt_pk_bf16_f32 v22, v22, v22")
        a("v_lshlrev_b32 v22, 16, v22")
        a("v_add_f32 v22, v18, v22")
        a("v_cvt_pk_bf16_f32 v22, v22, v22")
        a("buffer_store_short v22, v17, s[44:47], s69 offen")
        self.stamp(9)
        self.finish()

    def reducer(self):
        a, c = self.a, self.c
        L, T = 32, 64
        a.label("L_RED")
        a("s_cmp_ge_u32 s2, 56")
        a("s_cbranch_scc1 L_RED_END")
        a("s_mul_i32 s64, s2, 4682")
        a("s_lshr_b32 s64, s64, 16")
        a("s_mul_i32 s65, s64, 14")
        a("s_sub_u32 s65, s2, s65")
        a("v_lshrrev_b32 v16, 4, v0")
        a("v_and_b32 v17, 7, v0")
        a("v_lshlrev_b32 v18, 5, v16")
        a("v_lshl_add_u32 v18, v17, 1, v18")
        a("s_mul_i32 s69, s64, 896")
        a("s_lshr_b32 s14, s65, 1")
        a("s_lshl_b32 s14, s14, 7")
        a("s_add_u32 s69, s69, s14")
        a("s_and_b32 s14, s65, 1")
        a("s_lshl_b32 s14, s14, 4")
        a("s_add_u32 s69, s69, s14")
        a("buffer_load_ushort v19, v18, s[52:55], s69 offen")
        a("v_mov_b32 v20, %d" % OOB)
        a("v_bfe_u32 v21, v0, 3, 1")
        a("v_mul_u32_u24 v21, %d, v21" % HREP_STRIDE)
        a("v_lshl_add_u32 v21, v16, 4, v21")
        a("v_cmp_eq_u32 vcc, 0, v17")
        a("s_lshl_b32 s70, s2, 7")
        a("s_add_u32 s70, s70, %d" % WS_H)
        a("v_cndmask_b32 v21, v20, v21, vcc")
        a("s_cmp_eq_u32 s2, 0")
        a("s_cbranch_scc0 L_RED_NOEP")
        a("v_mov_b32 v6, 0")
        a("v_mov_b32 v7, s68")
        a("s_mov_b64 exec, 1")
        a("buffer_store_dword v7, v6, s[48:51], 0 offen sc1")
        a("s_mov_b64 exec, -1")
        a.label("L_RED_NOEP")
        a("s_lshl_b32 s56, s2, 12")
        a("s_add_u32 s56, s56, %d" % WS_A)
        a("s_waitcnt vmcnt(0)")
        a("v_lshlrev_b32 v19, 16, v19")
        self.stamp(5)
        self.wait_flag("v2", F_VD, 4, "v24", sleep=1)
        self.stamp(6)
        self.inbox_reduce(4, "v4", ("s56", "s56"), L, T, "v22")
        a("v_cvt_pk_bf16_f32 v22, v22, v22")
        a("v_lshlrev_b32 v22, 16, v22")
        a("v_add_f32 v22, v19, v22")
        a("s_nop 1")
        a("v_mov_b32_dpp v23, v22 quad_perm:[1,0,3,2] row_mask:0xf bank_mask:0xf")
        a("v_cvt_pk_bf16_f32 v24, v22, v23")
        a("v_min_u32 v24, -2, v24")
        a("s_nop 1")
        a("v_mov_b32_dpp v25, v24 row_shl:2 row_mask:0xf bank_mask:0xf")
        a("v_mov_b32_dpp v26, v24 row_shl:4 row_mask:0xf bank_mask:0xf")
        a("v_mov_b32_dpp v27, v24 row_shl:6 row_mask:0xf bank_mask:0xf")
        for k in range(c.hrep // 2):
            a("buffer_store_dwordx4 v[24:27], v21, s[48:51], s70 offen sc1")
            if k + 1 < c.hrep // 2:
                a("s_add_u32 s70, s70, %d" % (2 * HREP_STRIDE))
        self.stamp(7)
        a.label("L_RED_END")
        self.finish()

    def ffn(self):
        a, c = self.a, self.c
        GF, DF, HF = 48, 104, 136
        a.label("L_FFN")
        a("v_lshrrev_b32 v22, 4, v0")
        a("v_bfe_u32 v23, v0, 2, 2")
        a("v_lshl_add_u32 v24, v22, 3, v23")
        a("v_lshlrev_b32 v20, 6, v24")
        a("v_and_b32 v24, 1, v0")
        a("v_lshl_add_u32 v20, v24, 3, v20")
        a("v_and_b32 v24, 1, v22")
        a("v_and_b32 v25, 2, v0")
        a("v_xor_b32 v24, v24, v25")
        a("v_xor_b32 v24, s11, v24")
        a("v_lshl_add_u32 v20, v24, 4, v20")
        a("v_mul_u32_u24 v25, %d, v25" % (28672 // 2))
        a("v_add_u32 v20, v20, v25")
        a("v_add_u32 v20, %d, v20" % GT)
        a("s_lshl_b32 s14, s11, 13")
        a("s_add_u32 s12, s14, %d" % DT)
        self.tr_addrs(12, "s12", "v24", "v25", "v26")
        a("v_mul_u32_u24 v21, %d, v23" % XN_STR)
        a("v_lshl_add_u32 v21, v22, 4, v21")
        a("v_add_u32 v21, %d, v21" % XN)
        a("s_mul_i32 s14, s11, %d" % XN_STR)
        a("s_add_u32 s14, s14, %d" % XN)
        a("v_lshrrev_b32 v24, 3, v0")
        a("v_lshlrev_b32 v6, 7, v24")
        a("v_and_b32 v24, 3, v0")
        a("v_lshl_add_u32 v6, v24, 5, v6")
        a("v_bfe_u32 v25, v0, 2, 1")
        a("v_lshl_add_u32 v6, v25, 4, v6")
        a("v_add_u32 v6, s14, v6")
        a("v_lshrrev_b32 v25, 2, v0")
        a("v_lshlrev_b32 v25, 7, v25")
        a("v_lshl_add_u32 v25, v24, 4, v25")
        a("v_max_u32 v5, v5, v25")
        a("v_lshlrev_b32 v24, 6, v23")
        a("v_lshl_add_u32 v24, v22, 4, v24")
        a("v_add_u32 v24, %d, v24" % ACT)
        a("v_mov_b32 v25, %d" % ZERO)
        a("v_and_b32 v26, 3, v0")
        for n in range(4):
            a("v_cmp_eq_u32 vcc, %d, v26" % n)
            a("s_nop 1")
            a("v_cndmask_b32 v%d, v25, v24, vcc" % (16 + n))
        a("v_and_b32 v24, 15, v0")
        a("v_lshlrev_b32 v7, 6, v22")
        a("v_lshl_add_u32 v7, v24, 1, v7")
        a("s_lshl_b32 s14, s11, 4")
        a("s_add_u32 s14, s14, %d" % ACT)
        a("v_add_u32 v7, s14, v7")
        a("v_mov_b32 v25, %d" % DUMP)
        a("v_cmp_gt_u32 vcc, 8, v24")
        a("s_nop 1")
        a("v_cndmask_b32 v7, v25, v7, vcc")
        a("v_bfe_u32 v26, v0, 3, 1")
        a("v_lshl_add_u32 v25, v22, 3, v26")
        a("v_mul_u32_u24 v25, %d, v25" % (NF * 128))
        a("v_and_b32 v26, 7, v0")
        a("v_lshl_add_u32 v23, v26, 4, v25")
        a("s_mul_i32 s69, s11, %d" % (2 * NF * 128))
        a("s_lshl_b32 s70, s62, 7")
        a("s_add_u32 s69, s69, s70")
        a("s_add_u32 s69, s69, %d" % WS_C)
        a("s_and_b32 s60, s4, %d" % (c.hrep - 1))
        a("s_mul_i32 s60, s60, %d" % HREP_STRIDE)
        a("s_lshl_b32 s14, s67, 1")
        a("s_add_u32 s60, s60, s14")
        a("s_add_u32 s60, s60, %d" % WS_H)
        a("s_mov_b32 s61, %s" % f32(-LOG2E))
        a("s_waitcnt vmcnt(0)")
        a("s_barrier")
        self.stamp(8)
        for s in range(14):
            for hh in range(2):
                r = GF + 4 * s + 2 * hh
                a("ds_read_b64_tr_b16 v[%d:%d], v20 offset:%d" % (r, r + 1, s * 2048 + hh * 256))
            if s % 4 == 3:
                a("s_waitcnt lgkmcnt(0)")
        a("s_waitcnt lgkmcnt(0)")
        self.tile_reads(DF, 12, 0)
        a("s_waitcnt lgkmcnt(0)")
        self.tile_reads(DF + 16, 12, 4096)
        AC = 24
        if c.fold:
            for k in range(4):
                a("v_mov_b32 v%d, 0x3f803f80" % (40 + k))
            a("v_mov_b32 v25, %d" % DUMP)
            a("v_cmp_gt_u32 vcc, 56, v0")
            for s in range(14):
                self.mfma(44, 40, GF + 4 * s, s == 0)
            a("v_cndmask_b32 v6, v25, v6, vcc")
            a("s_lshl_b32 s14, s11, 3")
            a("s_add_u32 s14, s14, %d" % SCL)
            a("v_mov_b32 v38, s14")
            a("v_lshlrev_b32 v39, 3, v22")
            a("v_add_u32 v39, %d, v39" % SCL)
            a("v_mov_b32 v37, %s" % f32(1.0 / 448))
        a("s_waitcnt lgkmcnt(0)")
        a("s_cmp_lg_u32 s11, 3")
        a("s_cbranch_scc1 L_FFN_P7")
        for k in range(16):
            a("v_mov_b32 v%d, 0" % (DF + 16 + k))
        a.label("L_FFN_P7")
        a("s_mov_b32 s13, 0")
        a.label("L_HPOLL")
        a("buffer_load_dwordx4 v[8:11], v5, s[48:51], s60 offen sc1")
        a("s_waitcnt vmcnt(0)")
        a("v_max3_u32 v24, v8, v9, v10")
        a("v_max_u32 v24, v24, v11")
        a("v_cmp_eq_u32 vcc, -1, v24")
        a("s_cbranch_vccz L_HOK")
        a("s_add_u32 s13, s13, 1")
        a("s_cmp_lt_u32 s13, %d" % c.poll_max)
        a("s_cbranch_scc1 L_HPOLL")
        a.label("L_HOK")
        self.stamp(9)
        if not c.fold:
            self.layernorm(8, 24, 32)
            a("s_mov_b32 exec_hi, 0x00ffffff")
            a("ds_write_b128 v6, v[8:11]")
            a("s_mov_b64 exec, -1")
            a("s_waitcnt lgkmcnt(0)")
            a("s_barrier")
            for s in range(7):
                a("ds_read_b128 v[%d:%d], v21 offset:%d" % (HF + 4 * s, HF + 4 * s + 3, s * 64))
            for s in range(14):
                a("s_waitcnt lgkmcnt(%d)" % (6 if s < 7 else 13 - s))
                self.mfma(AC, HF + 4 * (s % 7), GF + 4 * s, s == 0)
                if s < 7:
                    a("ds_read_b128 v[%d:%d], v21 offset:%d" % (HF + 4 * s, HF + 4 * s + 3, (s + 7) * 64))
            a("s_nop 7")
            a("v_cvt_pk_bf16_f32 v28, v24, v24")
        else:
            a("ds_write_b128 v6, v[8:11]")
            for k in range(4):
                a("v_dot2_f32_bf16 v32, v%d, v%d, %s" % (8 + k, 8 + k, "v32" if k else "0"))
                a("v_dot2_f32_bf16 v33, v%d, v40, %s" % (8 + k, "v33" if k else "0"))
            a("s_waitcnt lgkmcnt(0)")
            a("s_barrier")
            ctls = ["row_shr:1 row_mask:0xf", "row_shr:2 row_mask:0xf", "row_shr:4 row_mask:0xf", "row_shr:8 row_mask:0xf",
                    "row_bcast:15 row_mask:0xa", "row_bcast:31 row_mask:0xc"]
            for s in range(14):
                a("ds_read_b128 v[%d:%d], v21 offset:%d" % (HF + 4 * s, HF + 4 * s + 3, s * 64))
                if s & 1 and s < 12:
                    for r in ("v32", "v33"):
                        a("v_add_f32_dpp %s, %s, %s %s bank_mask:0xf" % (r, r, r, ctls[s >> 1]))
            chain = [["v_readlane_b32 s58, v32, 63", "v_readlane_b32 s57, v33, 63"],
                     ["v_mul_f32 v35, s58, v37", "v_mul_f32 v34, s57, v37", "v_fma_f32 v35, -v34, v34, v35"],
                     ["v_max_f32 v35, 0, v35", "v_cvt_pk_bf16_f32 v36, v34, v35", "v_and_b32 v35, 0xffff0000, v36"],
                     ["v_lshlrev_b32 v34, 16, v36", "v_add_f32 v35, %s, v35" % f32(1e-5), "v_cvt_pk_bf16_f32 v35, v35, v35"],
                     ["v_lshlrev_b32 v35, 16, v35", "v_sqrt_f32 v35, v35"],
                     ["v_cvt_pk_bf16_f32 v35, v35, v35", "v_lshlrev_b32 v35, 16, v35", "v_rcp_f32 v35, v35"],
                     ["ds_write_b64 v38, v[34:35]"]]
            for ins in chain[0]:
                a(ins)
            for s in range(14):
                if s <= 5:
                    a("s_waitcnt lgkmcnt(%d)" % (13 - s))
                elif s <= 9:
                    a("s_waitcnt lgkmcnt(%d)" % (14 - s))
                self.mfma(AC, HF + 4 * s, GF + 4 * s, s == 0)
                if s + 1 < len(chain):
                    for ins in chain[s + 1]:
                        a(ins)
                if s == 9:
                    a("s_waitcnt lgkmcnt(0)")
                    a("s_barrier")
                    a("ds_read_b64 v[34:35], v39")
            a("s_nop 6")
            a("s_waitcnt lgkmcnt(0)")
            a("v_fma_f32 v28, -v34, v44, v24")
            a("v_mul_f32 v28, v28, v35")
            a("v_cvt_pk_bf16_f32 v28, v28, v28")
        a("v_lshlrev_b32 v28, 16, v28")
        a("v_mul_f32 v29, s61, v28")
        a("v_exp_f32 v29, v29")
        a("v_mov_b32_dpp v30, v28 row_ror:8 row_mask:0xf bank_mask:0xf")
        a("v_add_f32 v29, 1.0, v29")
        a("v_rcp_f32 v29, v29")
        a("s_nop 0")
        a("v_mul_f32 v29, v28, v29")
        a("v_cvt_pk_bf16_f32 v29, v29, v29")
        a("v_lshlrev_b32 v29, 16, v29")
        a("v_mul_f32 v29, v29, v30")
        a("v_cvt_pk_bf16_f32 v29, v29, v29")
        a("ds_write_b16 v7, v29")
        a("s_waitcnt lgkmcnt(0)")
        a("s_barrier")
        for n in range(4):
            a("ds_read_b128 v[%d:%d], v%d" % (HF + 4 * n, HF + 4 * n + 3, 16 + n))
        for pp in range(2):
            for n in range(4):
                if pp == 0:
                    a("s_waitcnt lgkmcnt(%d)" % (3 - n))
                self.mfma(24 + 4 * pp, HF + 4 * n, DF + 16 * pp + 4 * n, n == 0)
        a("s_nop 3")
        a("v_cvt_pk_bf16_f32 v32, v24, v25")
        a("v_cvt_pk_bf16_f32 v33, v26, v27")
        a("v_min_u32 v32, -2, v32")
        a("v_min_u32 v33, -2, v33")
        a("v_cvt_pk_bf16_f32 v34, v28, v29")
        a("v_cvt_pk_bf16_f32 v35, v30, v31")
        a("v_min_u32 v34, -2, v34")
        a("v_min_u32 v35, -2, v35")
        a("buffer_store_dwordx4 v[32:35], v23, s[48:51], s69 offen sc1")
        self.stamp(10)
        self.finish()


HEADER = """; Fused pre-LN decode block: sliding-window GQA attention + SwiGLU FFN in one launch (generated by gen_kernel.py).
"""


def generate(cfg):
    body = Gen(cfg).build()
    return f"""{HEADER}; @launch grid=(256,1,1) block=(512,1,1) lds={LDS_TOTAL}
.amdgcn_target "amdgcn-amd-amdhsa--gfx950"
.text
.globl {NAME}
.p2align {cfg.align}
.type {NAME},@function
{NAME}:
{body}
.section .rodata,"a"
.p2align 6
.amdhsa_kernel {NAME}
  .amdhsa_next_free_vgpr 192
  .amdhsa_next_free_sgpr 96
  .amdhsa_accum_offset 192
  .amdhsa_group_segment_fixed_size 0
  .amdhsa_kernarg_size 96
  .amdhsa_user_sgpr_count 2
  .amdhsa_user_sgpr_kernarg_segment_ptr 1
  .amdhsa_system_sgpr_workgroup_id_x 1
  .amdhsa_float_denorm_mode_32 3
.end_amdhsa_kernel
"""


if __name__ == "__main__":
    cfg = Cfg()
    out = sys.argv[1]
    for kv in sys.argv[2:]:
        k, v = kv.split("=")
        cur = getattr(cfg, k)
        setattr(cfg, k, (v == "1") if isinstance(cur, bool) else type(cur)(v))
    open(out, "w").write(generate(cfg))
```

```python
import sys
from asmgen import Asm, NAME

WS_EPOCH = 0x0
WS_GOK = 0x1000
WS_VOTE = 0x800
WS_Q = 0x2000
WS_FF = 0x1800
WS_QF = 0xF0000
WS_O = 0x20000
WS_H = 0x60000
WS_FLAGS = 0x70000
WS_ST = 0x78000
WS_A = 0x80000
WS_C = 0x100000
WS_PR = 0x180000
WS_TS = 0x200000
WS_SIZE = 0x240000
NF = 56
HREP_STRIDE = 8192
OOB = 0x40000000

RING = 0
BIG = 65536
GT = BIG
UT = BIG + 28672
DT = BIG + 57344
SH = 151552
XN = SH
XN_STR = 960
QS = SH + 3840
QS_STR = 576
SCL = SH + 4992
PS = SH + 5632
PS_STR = 320
ACT = SH + 6272
DUMP = SH + 6528
ZERO = SH + 6592
FL = SH + 6848
LDS_TOTAL = SH + 6912
F_TAG, F_XN, F_Q, F_SC, F_P, F_VD, F_KD, F_CO, F_WO, F_WQ, F_VI, F_NEAR = 0, 4, 8, 12, 16, 20, 24, 28, 32, 36, 40, 44

LOG2E = 1.4426950408889634
NWAVES = 8


def f32(x):
    import struct
    return "0x%08x" % struct.unpack("<I", struct.pack("<f", x))[0]


class Cfg:
    diag = False
    pol_kv = "nt"
    pol_wq = "nt"
    pol_wo = "nt"
    pol_ffn = "nt"
    pol_pf = ""
    tkv = 4
    thi = 8
    tkv2 = 7
    ramp_at = 16
    fast_n = 8
    decor = True
    kd_at = 5
    wo_thr = 6
    hrep = 4
    poll_max = 1 << 20
    ffn_n1 = 0
    ffn_thr = 4
    fast = True
    code_pf = True
    wq_pf = True
    wq_pf_n = 0
    ffn_pf = True
    pf_rows = 32
    align = 12
    gok_wait = F_Q
    ffn_delay = 0
    st2_hi_at = 99
    near = 1
    fold = True
    wo_early = 4


class Gen:
    def __init__(self, cfg):
        self.c = cfg
        self.a = Asm()
        self.uid = 0

    def lbl(self, base):
        self.uid += 1
        return "L_%s_%d" % (base, self.uid)

    def stamp(self, k):
        if self.c.diag:
            a = self.a
            a("s_memrealtime s[%d:%d]" % (72 + 2 * k, 73 + 2 * k))
            a("s_waitcnt lgkmcnt(0)")

    def stamps_init(self):
        if self.c.diag:
            for k in range(12):
                self.a("s_mov_b32 s%d, 0" % (72 + 2 * k))

    def finish(self):
        a = self.a
        if self.c.diag:
            a("s_branch L_DIAG_END")
        else:
            a("s_endpgm")

    def srd(self, d, ptr, off_sreg, nrec):
        a = self.a
        if off_sreg is None:
            a("s_mov_b32 s%d, s%d" % (d, ptr))
            a("s_mov_b32 s%d, s%d" % (d + 1, ptr + 1))
        else:
            a("s_add_u32 s%d, s%d, %s" % (d, ptr, off_sreg))
            a("s_addc_u32 s%d, s%d, 0" % (d + 1, ptr + 1))
        a("s_mov_b32 s%d, %d" % (d + 2, nrec))
        a("s_mov_b32 s%d, 0x20000" % (d + 3))

    def dma(self, voff, srd, soff, m0, pol):
        a = self.a
        if isinstance(m0, tuple):
            a("s_add_u32 m0, %s, %d" % m0)
        else:
            a("s_mov_b32 m0, %d" % m0)
        if isinstance(soff, tuple):
            a("s_add_u32 s15, %s, %d" % soff)
        else:
            a("s_mov_b32 s15, %d" % soff)
        a("buffer_load_dwordx4 %s, s[%d:%d], s15 offen%s lds" % (voff, srd, srd + 3, (" " + pol) if pol else ""))

    def wait_flag(self, vfl, off, n, vt, sleep=0):
        a = self.a
        l = self.lbl("wf")
        a.label(l)
        if sleep:
            a("s_sleep %d" % sleep)
        a("ds_read_b32 %s, %s offset:%d" % (vt, vfl, off))
        a("s_waitcnt lgkmcnt(0)")
        a("v_readfirstlane_b32 s14, %s" % vt)
        a("s_cmp_ge_u32 s14, %d" % n)
        a("s_cbranch_scc0 %s" % l)

    def signal(self, vfl, off, vone):
        a = self.a
        a("s_mov_b64 exec, 1")
        a("ds_add_u32 %s, %s offset:%d" % (vfl, vone, off))
        a("s_mov_b64 exec, -1")

    def tr_addrs(self, dst, base_sreg_or_int, t0, t1, t2):
        a = self.a
        a("v_lshrrev_b32 %s, 2, v0" % t0)
        a("v_bfe_u32 %s, v0, 3, 2" % t1)
        a("v_and_b32 %s, 3, v0" % t2)
        a("v_lshlrev_b32 %s, 7, %s" % (t0, t0))
        a("v_lshl_add_u32 %s, %s, 3, %s" % (t0, t2, t0))
        a("v_add_u32 %s, %s, %s" % (t0, base_sreg_or_int, t0))
        for n in range(4):
            a("v_xor_b32 %s, %d, %s" % (t2, n, t1))
            a("v_lshl_add_u32 v%d, %s, 5, %s" % (dst + n, t2, t0))

    def tile_reads(self, dst, addr0, off):
        a = self.a
        for n in range(4):
            for hh in range(2):
                r = dst + 4 * n + 2 * hh
                a("ds_read_b64_tr_b16 v[%d:%d], v%d offset:%d" % (r, r + 1, addr0 + n, off + hh * 2048))

    def mfma(self, d, A, B, first):
        self.a("v_mfma_f32_16x16x32_bf16 v[%d:%d], v[%d:%d], v[%d:%d], %s" % (
            d, d + 3, A, A + 3, B, B + 3, "0" if first else "v[%d:%d]" % (d, d + 3)))

    def wave_reduce2(self, op, x, y):
        a = self.a
        for ctl in ("row_shr:1", "row_shr:2", "row_shr:4", "row_shr:8"):
            a("s_nop 0")
            for r in (x, y):
                a("%s_dpp %s, %s, %s %s row_mask:0xf bank_mask:0xf" % (op, r, r, r, ctl))
        for ctl in ("row_bcast:15 row_mask:0xa", "row_bcast:31 row_mask:0xc"):
            a("s_nop 0")
            for r in (x, y):
                a("%s_dpp %s, %s, %s %s bank_mask:0xf" % (op, r, r, r, ctl))

    def wave_reduce1(self, op, x):
        a = self.a
        for ctl in ("row_shr:1", "row_shr:2", "row_shr:4", "row_shr:8"):
            a("s_nop 1")
            a("%s_dpp %s, %s, %s %s row_mask:0xf bank_mask:0xf" % (op, x, x, x, ctl))
        for ctl in ("row_bcast:15 row_mask:0xa", "row_bcast:31 row_mask:0xc"):
            a("s_nop 1")
            a("%s_dpp %s, %s, %s %s bank_mask:0xf" % (op, x, x, x, ctl))

    def layernorm(self, src, f, t):
        a = self.a
        for k in range(4):
            a("v_lshlrev_b32 v%d, 16, v%d" % (f + 2 * k, src + k))
            a("v_and_b32 v%d, 0xffff0000, v%d" % (f + 2 * k + 1, src + k))
        a("v_readfirstlane_b32 s56, v%d" % f)
        a("v_mov_b32 v%d, 0" % (t + 8))
        a("v_mov_b32 v%d, 0" % (t + 9))
        a("s_mov_b32 exec_hi, 0x00ffffff")
        for k in range(4):
            a("v_pk_add_f32 v[%d:%d], v[%d:%d], s[56:57] op_sel_hi:[1,0] neg_lo:[0,1] neg_hi:[0,1]" % (
                t + 2 * k, t + 2 * k + 1, f + 2 * k, f + 2 * k + 1))
        a("v_pk_mul_f32 v[%d:%d], v[%d:%d], v[%d:%d]" % (t + 10, t + 11, t, t + 1, t, t + 1))
        for k in range(1, 4):
            a("v_pk_fma_f32 v[%d:%d], v[%d:%d], v[%d:%d], v[%d:%d]" % (
                t + 10, t + 11, t + 2 * k, t + 2 * k + 1, t + 2 * k, t + 2 * k + 1, t + 10, t + 11))
        a("v_pk_add_f32 v[%d:%d], v[%d:%d], v[%d:%d]" % (t, t + 1, t, t + 1, t + 2, t + 3))
        a("v_pk_add_f32 v[%d:%d], v[%d:%d], v[%d:%d]" % (t + 4, t + 5, t + 4, t + 5, t + 6, t + 7))
        a("v_pk_add_f32 v[%d:%d], v[%d:%d], v[%d:%d]" % (t, t + 1, t, t + 1, t + 4, t + 5))
        a("v_add_f32 v%d, v%d, v%d" % (t + 9, t + 10, t + 11))
        a("v_add_f32 v%d, v%d, v%d" % (t + 8, t, t + 1))
        a("s_mov_b64 exec, -1")
        S, Q = "v%d" % (t + 8), "v%d" % (t + 9)
        a("s_nop 0")
        self.wave_reduce2("v_add_f32", Q, S)
        a("s_nop 0")
        a("v_readlane_b32 s58, %s, 63" % Q)
        a("v_readlane_b32 s57, %s, 63" % S)
        a("v_mov_b32 v%d, %s" % (t + 2, f32(1.0 / 448)))
        a("v_mul_f32 v%d, s58, v%d" % (t + 1, t + 2))
        a("v_mul_f32 v%d, s57, v%d" % (t, t + 2))
        a("v_fma_f32 v%d, -v%d, v%d, v%d" % (t + 1, t, t, t + 1))
        a("v_add_f32 v%d, s56, v%d" % (t, t))
        a("v_max_f32 v%d, 0, v%d" % (t + 1, t + 1))
        a("v_cvt_pk_bf16_f32 v%d, v%d, v%d" % (t + 2, t, t + 1))
        a("v_and_b32 v%d, 0xffff0000, v%d" % (t + 1, t + 2))
        a("v_lshlrev_b32 v%d, 16, v%d" % (t, t + 2))
        a("v_add_f32 v%d, %s, v%d" % (t + 1, f32(1e-5), t + 1))
        a("v_cvt_pk_bf16_f32 v%d, v%d, v%d" % (t + 1, t + 1, t + 1))
        a("v_lshlrev_b32 v%d, 16, v%d" % (t + 1, t + 1))
        a("v_sqrt_f32 v%d, v%d" % (t + 1, t + 1))
        for k in range(4):
            a("v_pk_add_f32 v[%d:%d], v[%d:%d], v[%d:%d] op_sel_hi:[1,0] neg_lo:[0,1] neg_hi:[0,1]" % (
                f + 2 * k, f + 2 * k + 1, f + 2 * k, f + 2 * k + 1, t, t + 1))
        a("v_cvt_pk_bf16_f32 v%d, v%d, v%d" % (t + 2, t + 1, t + 1))
        a("v_lshlrev_b32 v%d, 16, v%d" % (t + 2, t + 2))
        a("v_rcp_f32 v%d, v%d" % (t + 2, t + 2))
        for k in range(4):
            a("v_cvt_pk_bf16_f32 v%d, v%d, v%d" % (src + k, f + 2 * k, f + 2 * k + 1))
        for k in range(4):
            a("v_lshlrev_b32 v%d, 16, v%d" % (f + 2 * k, src + k))
            a("v_and_b32 v%d, 0xffff0000, v%d" % (f + 2 * k + 1, src + k))
        for k in range(4):
            a("v_pk_mul_f32 v[%d:%d], v[%d:%d], v[%d:%d] op_sel_hi:[1,0]" % (
                f + 2 * k, f + 2 * k + 1, f + 2 * k, f + 2 * k + 1, t + 2, t + 3))
        for k in range(4):
            a("v_cvt_pk_bf16_f32 v%d, v%d, v%d" % (src + k, f + 2 * k, f + 2 * k + 1))

    def inbox_reduce(self, nl, voff, soff, L, T, out):
        a = self.a
        top, ok, chk = self.lbl("rp"), self.lbl("rok"), self.lbl("rchk")
        a("s_mov_b32 s13, 0")
        a.label(top)
        for i in range(nl):
            if i < 4:
                a("buffer_load_dwordx4 v[%d:%d], %s, s[48:51], %s offen offset:%d sc1" % (L + 4 * i, L + 4 * i + 3, voff, soff[0], i * 1024))
            else:
                a("buffer_load_dwordx4 v[%d:%d], %s, s[48:51], %s offen offset:%d sc1" % (L + 4 * i, L + 4 * i + 3, voff, soff[1], (i - 4) * 1024))

        def padd(d, x, y):
            for h in (0, 2):
                a("v_pk_add_f32 v[%d:%d], v[%d:%d], v[%d:%d]" % (d + h, d + h + 1, x + h, x + h + 1, y + h, y + h + 1))
        for k in range(nl // 2):
            a("s_waitcnt vmcnt(%d)" % (nl - 2 - 2 * k))
            padd(T + 4 * k, L + 8 * k, L + 8 * k + 4)
        padd(T, T, T + 4)
        if nl == 8:
            padd(T + 8, T + 8, T + 12)
            padd(T, T, T + 8)
        elif nl == 7:
            a("s_waitcnt vmcnt(0)")
            padd(T + 8, T + 8, L + 24)
            padd(T, T, T + 8)
        a("s_nop 1")
        a("v_permlane16_swap_b32 v%d, v%d" % (T, T + 1))
        a("v_permlane16_swap_b32 v%d, v%d" % (T + 2, T + 3))
        a("v_add_f32 v%d, v%d, v%d" % (T, T, T + 1))
        a("v_add_f32 v%d, v%d, v%d" % (T + 2, T + 2, T + 3))
        a("s_nop 1")
        a("v_permlane32_swap_b32 v%d, v%d" % (T, T + 2))
        a("v_add_f32 v%d, v%d, v%d" % (T, T, T + 2))
        a("s_nop 1")
        a("v_add_f32_dpp %s, v%d, v%d row_ror:8 row_mask:0xf bank_mask:0xf" % (out, T, T))
        a("v_cmp_u_f32 vcc, %s, %s" % (out, out))
        a("s_cbranch_vccz %s" % ok)
        a("s_add_u32 s13, s13, 1")
        a("s_and_b32 s14, s13, 15")
        a("s_cbranch_scc1 %s" % top)
        regs = [L + i for i in range(4 * nl)]
        a("v_max_u32 v%d, v%d, v%d" % (T + 4, regs[0], regs[1]))
        for i in range(2, 4 * nl, 2):
            a("v_max3_u32 v%d, v%d, v%d, v%d" % (T + 4, T + 4, regs[i], regs[i + 1]))
        a("v_cmp_eq_u32 vcc, -1, v%d" % (T + 4))
        a("s_cbranch_vccz %s" % ok)
        a("s_cmp_lt_u32 s13, %d" % self.c.poll_max)
        a("s_cbranch_scc1 %s" % top)
        a.label(ok)

    def ld(self, voff, srd, pol):
        self.a("buffer_load_dwordx4 %s, s[%d:%d], s15 offen%s lds" % (voff, srd, srd + 3, (" " + pol) if pol else ""))

    def tile_loop(self, voffs, srd, n, step, pol, thr):
        a = self.a
        top = self.lbl("tl")
        a("s_movk_i32 s13, %d" % n)
        a.label(top)
        for v in voffs:
            self.ld(v[0], v[1] if srd is None else srd, pol)
            a("s_addk_i32 m0, %d" % v[2])
            if thr:
                a("s_waitcnt vmcnt(%d)" % (thr - 1))
            else:
                a("s_nop 0")
        a("s_add_u32 s15, s15, %d" % step)
        a("s_sub_u32 s13, s13, 1")
        a("s_cmp_lg_u32 s13, 0")
        a("s_cbranch_scc1 %s" % top)

    def build(self):
        a, c = self.a, self.c
        a("s_cmp_ge_u32 s2, 256")
        a("s_cbranch_scc1 L_END")
        a("s_load_dwordx16 s[16:31], s[0:1], 0")
        a("s_load_dwordx8 s[32:39], s[0:1], 64")
        self.stamps_init()
        if c.diag:
            a("s_memrealtime s[72:73]")
        a("v_lshrrev_b32 v1, 6, v0")
        a("v_and_b32 v0, 63, v0")
        a("v_readfirstlane_b32 s3, v1")
        a("s_lshr_b32 s5, s2, 3")
        a("s_cmp_lg_u32 s3, 1")
        a("s_cbranch_scc1 L_NOINIT")
        if c.code_pf:
            a("s_getpc_b64 s[56:57]")
            a.label("L_PC")
            a("s_sub_u32 s56, s56, L_PC-%s" % NAME)
            a("s_subb_u32 s57, s57, 0")
            a("v_and_b32 v6, 3, v0")
            a("v_lshl_add_u32 v6, s5, 2, v6")
            a("v_lshlrev_b32 v6, 7, v6")
            a("v_min_u32 v6, L_END-%s, v6" % NAME)
            a("global_load_dword v47, v6, s[56:57]")
        a("v_min_u32 v6, 39, v0")
        a("v_lshlrev_b32 v6, 3, v6")
        a("v_add_u32 v6, %d, v6" % ZERO)
        a("v_mov_b32 v12, 0")
        a("v_mov_b32 v13, 0")
        a("ds_write_b64 v6, v[12:13]")
        a.label("L_NOINIT")
        a("s_and_b32 s4, s2, 7")
        a("s_lshr_b32 s6, s2, 6")
        a("s_and_b32 s7, s5, 7")
        a("s_lshl_b32 s10, s6, 3")
        a("s_add_u32 s10, s10, s4")
        a("s_lshl_b32 s9, s4, 2")
        a("s_add_u32 s8, s9, s6")
        a("s_and_b32 s11, s3, 3")
        a("s_mov_b32 s66, 2")
        a("s_cmp_lt_u32 s5, 29")
        a("s_cselect_b32 s66, 1, s66")
        a("s_cmp_lt_u32 s5, 22")
        a("s_cselect_b32 s66, 3, s66")
        a("s_cmp_lt_u32 s5, 8")
        a("s_cselect_b32 s66, 0, s66")
        a("s_lshr_b32 s70, s5, 2")
        a("s_add_u32 s70, s70, s4")
        a("s_and_b32 s70, s70, %d" % (3 if c.decor else 0))
        a("s_lshl_b32 s70, s70, 7")
        a("s_cmp_lt_u32 s3, 4")
        a("s_cbranch_scc1 L_SROLE")
        self.k_early()
        self.s_early()
        self.k_main()
        self.k_scores()
        self.s0_late()
        self.s1_late()
        self.s2_late()
        self.stage2()
        self.reducer()
        self.ffn()
        if c.diag:
            a.label("L_DIAG_END")
            a("s_memrealtime s[94:95]")
            a("s_waitcnt lgkmcnt(0)")
            a("s_mov_b64 exec, -1")
            for k in range(12):
                a("v_mov_b32 v%d, s%d" % (4 + k, 72 + 2 * k))
            a("s_mul_i32 s14, s2, 12")
            a("s_add_u32 s14, s14, s3")
            a("s_lshl_b32 s14, s14, 6")
            a("s_add_u32 s14, s14, %d" % WS_TS)
            a("v_mov_b32 v1, 0")
            a("s_mov_b64 exec, 1")
            for k in range(3):
                a("buffer_store_dwordx4 v[%d:%d], v1, s[48:51], s14 offen offset:%d" % (4 + 4 * k, 7 + 4 * k, 16 * k))
            a("s_waitcnt vmcnt(0)")
        a.label("L_END")
        a("s_endpgm")
        return a.text()

    def k_issue(self, i):
        a, c = self.a, self.c
        lo = c.tkv if i < c.ramp_at + c.tkv else c.tkv2
        if i >= lo and lo < c.thi:
            skip = self.lbl("thr")
            a("s_cbranch_vccz %s" % skip)
            a("s_waitcnt vmcnt(%d)" % (lo - 1))
            a.label(skip)
        if i & 15:
            a("s_addk_i32 m0, 1024")
        else:
            a("s_mov_b32 m0, s12")
        if i < 16:
            u, dseg, half = i >> 3, (i >> 1) & 3, i & 1
            a("s_xor_b32 s15, s62, %d" % (u * 8192 + dseg * 128))
            self.ld("v2" if half else "v1", 40, c.pol_kv)
        else:
            a("s_xor_b32 s15, s63, %d" % ((i - 16) * 4096))
            self.ld("v3", 44, c.pol_kv)

    def k_early(self):
        a, c = self.a, self.c
        T = c.tkv
        a("v_lshrrev_b32 v13, 3, v0")
        a("v_and_b32 v14, 7, v0")
        a("v_lshrrev_b32 v15, 1, v13")
        a("v_xor_b32 v1, v14, v15")
        a("v_lshlrev_b32 v1, 4, v1")
        a("v_lshl_add_u32 v1, v13, 9, v1")
        a("v_xor_b32 v2, 64, v1")
        a("v_add_u32 v2, 4096, v2")
        a("v_lshlrev_b32 v3, 1, v15")
        a("v_xor_b32 v3, v14, v3")
        a("v_lshlrev_b32 v3, 4, v3")
        a("v_lshl_add_u32 v3, v13, 9, v3")
        a("v_mov_b32 v13, %d" % FL)
        a("s_lshl_b32 s12, s11, 14")
        a("s_lshl_b32 s56, s10, 21")
        a("s_add_u32 s56, s56, 0x180000")
        a("s_lshl_b32 s57, s7, 16")
        a("s_add_u32 s56, s56, s57")
        a("s_lshl_b32 s63, s4, 1")
        a("s_add_u32 s63, s63, s5")
        a("s_and_b32 s63, s63, %d" % (15 if c.decor else 0))
        a("s_lshl_b32 s63, s63, 12")
        a("s_and_b32 s62, s63, 0x2000")
        a("s_or_b32 s62, s62, s70")
        a("s_and_b32 s57, s63, 0x1000")
        a("v_xor_b32 v1, s57, v1")
        a("v_xor_b32 v2, s57, v2")
        a("s_and_b32 s57, s63, 0xc000")
        a("s_xor_b32 s57, s57, s12")
        a("s_add_u32 s57, s56, s57")
        a("s_lshl_b32 s58, s11, 7")
        a("s_add_u32 s58, s58, s56")
        a("s_waitcnt lgkmcnt(0)")
        self.srd(40, 18, "s57", 16384)
        a("s_cmp_lg_u32 s66, 0")
        a("s_cbranch_scc0 L_K_Q")
        for i in range(T):
            self.k_issue(i)
        self.stamp(7)
        a("s_barrier")
        a("s_branch L_KMAIN")
        a.label("L_K_Q")
        a("v_bfe_u32 v16, v0, 3, 2")
        a("v_lshrrev_b32 v17, 5, v0")
        a("v_lshl_add_u32 v16, v17, 3, v16")
        a("v_and_b32 v17, 0x70, v3")
        a("v_lshl_add_u32 v16, v16, 13, v17")
        a("s_lshl_b32 s56, s4, 10")
        a("s_lshl_b32 s57, s5, 7")
        a("s_add_u32 s56, s56, s57")
        self.srd(52, 22, "s56", 447 * 8192 + 128)
        a("s_lshl_b32 s14, s11, 10")
        a("s_add_u32 m0, s14, %d" % BIG)
        a("s_and_b32 s15, s11, 1")
        a("s_lshl_b32 s15, s15, 17")
        a("s_lshr_b32 s14, s11, 1")
        a("s_lshl_b32 s14, s14, 15")
        a("s_add_u32 s15, s15, s14")
        self.tile_loop([("v16", 52, 4096)], 52, 6, 32 * 8192, c.pol_wq, 0)
        a("s_barrier")
        self.tile_loop([("v16", 52, 4096)], 52, 8, 32 * 8192, c.pol_wq, 0)
        for i in range(T):
            self.k_issue(i)
        self.stamp(7)
        a("s_branch L_KMAIN")

    def k_main(self):
        a, c = self.a, self.c
        KF, VF, QF, SA = 16, 80, 144, 176
        PF, AC, PK = 16, 48, 56
        T = c.tkv
        a.label("L_KMAIN")
        self.srd(44, 20, "s58", 127 * 512 + 128)
        self.srd(48, 38, None, WS_SIZE)
        a("v_and_b32 v189, 15, v0")
        a("v_lshrrev_b32 v14, 4, v0")
        a("v_lshrrev_b32 v15, 1, v189")
        a("v_xor_b32 v4, v14, v15")
        a("v_lshlrev_b32 v4, 4, v4")
        a("v_lshl_add_u32 v4, v189, 7, v4")
        a("v_add_u32 v4, s12, v4")
        a("v_xor_b32 v5, 64, v4")
        a("v_and_b32 v15, 1, v0")
        a("v_mul_u32_u24 v10, %d, v15" % QS_STR)
        a("v_lshl_add_u32 v10, v14, 4, v10")
        a("v_add_u32 v10, %d, v10" % QS)
        a("v_mul_u32_u24 v11, %d, v15" % PS_STR)
        a("v_lshl_add_u32 v11, v14, 4, v11")
        a("s_lshl_b32 s14, s11, 6")
        a("s_add_u32 s14, s14, %d" % SCL)
        a("v_add_u32 v12, s14, v11")
        a("v_add_u32 v11, %d, v11" % PS)
        a("v_mov_b32 v184, %d" % ZERO)
        a("v_and_b32 v185, 2, v0")
        a("v_cmp_eq_u32 vcc, 0, v185")
        a("v_lshlrev_b32 v188, 13, v15")
        a("v_lshl_add_u32 v188, v14, 9, v188")
        a("v_cndmask_b32 v186, v184, v11, vcc")
        a("v_cndmask_b32 v187, v11, v184, vcc")
        a("v_lshl_add_u32 v188, v185, 7, v188")
        a("v_mov_b32 v184, %d" % OOB)
        a("v_cmp_gt_u32 vcc, 4, v189")
        a("s_lshr_b32 s59, s8, 1")
        a("s_lshl_b32 s59, s59, 14")
        a("v_cndmask_b32 v188, v184, v188, vcc")
        a("s_lshl_b32 s14, s11, 11")
        a("s_add_u32 s59, s59, s14")
        a("s_and_b32 s14, s5, 15")
        a("s_lshl_b32 s14, s14, 4")
        a("s_add_u32 s59, s59, s14")
        a("s_add_u32 s59, s59, %d" % WS_O)
        self.tr_addrs(6, "s12", "v189", "v14", "v15")
        a("v_mov_b32 v14, 1")
        a("s_mov_b32 s60, 0")
        a("s_cmp_lg_u32 s66, 0")
        a("s_cselect_b64 vcc, -1, 0")
        TH = c.thi
        for i in range(T, TH):
            self.k_issue(i)
        a("s_waitcnt vmcnt(%d)" % TH)
        self.signal("v13", F_WQ, "v14")
        nxt = TH
        last_issue = 31 - TH
        block_at = max(15, last_issue | 1)
        for i in range(28):
            grp_end = (i & 1) == 1 if i < 16 else (i & 3) == 3
            if nxt <= 31 or grp_end:
                a("s_waitcnt vmcnt(%d) lgkmcnt(0)" % (nxt - 1 - i))
            if i == 0:
                self.stamp(8)
            if i == c.st2_hi_at:
                a("s_cmp_eq_u32 s66, 3")
                a("s_cselect_b64 vcc, 0, vcc")
            if grp_end:
                if i < 16:
                    for tt in range(2):
                        r = KF + 4 * (i - 1 + tt)
                        a("ds_read_b128 v[%d:%d], v%d offset:%d" % (r, r + 3, 4 + tt, (i - 1) * 1024))
                else:
                    s = (i - 16) >> 2
                    self.tile_reads(VF + 16 * s, 6, s * 4096)
            if i == c.kd_at:
                self.signal("v13", F_KD, "v14")
            if i == 15:
                self.stamp(1)
            def check(blocking):
                skip = self.lbl("kchk")
                a("s_cmp_lg_u32 s60, 0")
                a("s_cbranch_scc1 %s" % skip)
                if blocking:
                    self.wait_flag("v13", F_Q, 1, "v15")
                else:
                    a("ds_read_b32 v15, v13 offset:%d" % F_Q)
                    a("s_waitcnt lgkmcnt(0)")
                    a("v_readfirstlane_b32 s14, v15")
                    a("s_cmp_eq_u32 s14, 0")
                    a("s_cbranch_scc1 %s" % skip)
                a("s_call_b64 s[64:65], L_SCORES")
                a.label(skip)
            if 15 <= i <= last_issue:
                check(False)
            if nxt <= 31:
                self.k_issue(nxt)
                nxt += 1
                if nxt == 32 and c.wo_early < 4:
                    self.signal("v13", F_VI, "v14")
            if i == max(15, last_issue):
                check(True)
        assert nxt == 32
        self.wait_flag("v13", F_CO, 1, "v15")
        a("s_mov_b32 s61, s14")
        self.wait_flag("v13", F_P, 1, "v15")
        self.stamp(4)
        for s in range(4):
            for hv in range(2):
                r = PF + 8 * s + 4 * hv
                a("ds_read_b128 v[%d:%d], v%d offset:%d" % (r, r + 3, 186 + hv, s * 64))
        for s in range(3):
            for n in range(4):
                if n % 2 == 0:
                    a("s_waitcnt lgkmcnt(%d)" % (7 - 2 * s - (n >> 1)))
                self.mfma(AC + 4 * (n & 1), VF + 16 * s + 4 * n, PF + 8 * s + 4 * (n >> 1), s == 0 and n < 2)
        a("s_waitcnt vmcnt(0)")
        self.stamp(5)
        self.tile_reads(VF + 48, 6, 3 * 4096)
        for n in range(4):
            a("s_waitcnt lgkmcnt(%d)" % (6 - 2 * n))
            self.mfma(AC + 4 * (n & 1), VF + 48 + 4 * n, PF + 24 + 4 * (n >> 1), False)
        a("s_cmp_eq_u32 s61, 2")
        a("s_nop 4")
        a("v_cvt_pk_bf16_f32 v%d, v%d, v%d" % (PK, AC, AC + 1))
        a("v_cvt_pk_bf16_f32 v%d, v%d, v%d" % (PK + 1, AC + 2, AC + 3))
        a("v_cvt_pk_bf16_f32 v%d, v%d, v%d" % (PK + 2, AC + 4, AC + 5))
        a("v_cvt_pk_bf16_f32 v%d, v%d, v%d" % (PK + 3, AC + 6, AC + 7))
        for k in range(4):
            a("v_min_u32 v%d, -2, v%d" % (PK + k, PK + k))
        a("s_cbranch_scc0 L_K_SLOWST")
        a("buffer_store_dwordx4 v[%d:%d], v188, s[48:51], s59 offen" % (PK, PK + 3))
        a("s_branch L_K_STDONE")
        a.label("L_K_SLOWST")
        a("buffer_store_dwordx4 v[%d:%d], v188, s[48:51], s59 offen sc1" % (PK, PK + 3))
        a.label("L_K_STDONE")
        self.signal("v13", F_VD, "v14")
        self.stamp(6)
        a("s_cmp_eq_u32 s66, 1")
        a("s_cselect_b32 s14, s11, 1")
        a("s_cmp_eq_u32 s14, 0")
        a("s_cbranch_scc1 L_K_FFN")
        self.finish()

    def k_scores(self):
        a, c = self.a, self.c
        KF, VF, QF, SA = 16, 80, 144, 176
        a.label("L_SCORES")
        self.stamp(2)
        for t in range(8):
            a("ds_read_b128 v[%d:%d], v10 offset:%d" % (QF + 4 * t, QF + 4 * t + 3, t * 64))
        for t in range(8):
            a("s_waitcnt lgkmcnt(%d)" % (7 - t))
            for u in range(2):
                self.mfma(SA + 4 * u, KF + 4 * (u * 8 + t), QF + 4 * t, t == 0)
        a("s_mov_b32 s60, 1")
        a("s_nop 6")
        for k in range(4):
            a("v_cvt_pk_bf16_f32 v%d, v%d, v%d" % (QF + k, SA + 2 * k, SA + 2 * k + 1))
        a("s_mov_b32 exec_lo, 0x00030003")
        a("s_mov_b32 exec_hi, 0x00030003")
        a("ds_write_b128 v12, v[%d:%d]" % (QF, QF + 3))
        self.signal("v13", F_SC, "v14")
        self.stamp(3)
        a("s_setpc_b64 s[64:65]")

    def s_early(self):
        a, c = self.a, self.c
        a.label("L_SROLE")
        a("s_setprio 2")
        a("v_mov_b32 v2, %d" % FL)
        a("v_mov_b32 v3, 1")
        a("v_lshlrev_b32 v4, 4, v0")
        a("v_mov_b32 v5, %d" % OOB)
        a("v_cmp_gt_u32 vcc, 56, v0")
        a("s_mul_i32 s67, s11, 896")
        a("s_mul_i32 s62, s4, 7")
        a("s_add_u32 s62, s62, s5")
        a("s_sub_u32 s62, s62, 22")
        a("v_cndmask_b32 v5, v5, v4, vcc")
        a("v_and_b32 v17, 7, v0")
        a("v_bfe_u32 v18, v0, 4, 2")
        a("v_lshlrev_b32 v18, 1, v18")
        a("v_xor_b32 v17, v17, v18")
        a("v_lshlrev_b32 v17, 4, v17")
        a("v_bfe_u32 v16, v0, 3, 2")
        a("v_lshrrev_b32 v18, 5, v0")
        a("s_waitcnt lgkmcnt(0)")
        self.srd(48, 38, None, WS_SIZE)
        self.srd(52, 16, None, 3584)
        a("s_cmp_lg_u32 s66, 0")
        a("s_cbranch_scc1 L_S_NOX")
        a("buffer_load_dwordx4 v[8:11], v5, s[52:55], s67 offen")
        a.label("L_S_NOX")
        a("s_cmp_eq_u32 s11, 1")
        a("s_cbranch_scc1 L_S1")
        a("s_cmp_eq_u32 s11, 2")
        a("s_cbranch_scc1 L_S2")
        a("s_barrier")
        a("s_cmp_eq_u32 s11, 3")
        a("s_cbranch_scc1 L_S3")
        a("s_cmp_lg_u32 s66, 0")
        a("s_cbranch_scc1 L_S0_TAG")
        a("s_waitcnt vmcnt(0)")
        a("s_call_b64 s[64:65], L_LN1")
        a("s_call_b64 s[64:65], L_QPART")
        a("s_branch L_S0_GATHER")
        a.label("L_S1")
        if c.wq_pf_n:
            a("s_cmp_lt_u32 s5, 22")
            a("s_cbranch_scc1 L_S1_NOWQ2")
            a("v_lshrrev_b32 v6, 3, v0")
            a("v_lshlrev_b32 v6, 13, v6")
            a("v_and_b32 v7, 7, v0")
            a("v_lshl_add_u32 v6, v7, 7, v6")
            a("s_sub_u32 s56, s5, 22")
            a("s_mul_i32 s56, s56, %d" % (c.wq_pf_n * 65536))
            a("s_add_u32 s56, s56, %d" % ((448 - 80 * c.wq_pf_n) * 8192))
            a("s_lshl_b32 s57, s4, 10")
            self.srd(40, 22, "s57", 447 * 8192 + 1024)
            for k in range(c.wq_pf_n):
                a("buffer_load_dword v%d, v6, s[40:43], s56 offen %s" % (40 + k, c.pol_pf))
                a("s_add_u32 s56, s56, 65536")
            a.label("L_S1_NOWQ2")
        if c.wq_pf:
            a("s_cmp_lg_u32 s66, 2")
            a("s_cbranch_scc1 L_S1_NOWQ")
            a("v_lshlrev_b32 v6, 13, v0")
            a("s_sub_u32 s56, s5, 28")
            a("s_lshl_b32 s56, s56, 20")
            a("s_lshl_b32 s57, s4, 10")
            a("s_add_u32 s57, s57, 384")
            self.srd(40, 22, "s57", 447 * 8192 + 128)
            a("buffer_load_dword v12, v6, s[40:43], s56 offen %s" % c.pol_pf)
            a("s_add_u32 s56, s56, %d" % (64 * 8192))
            a("buffer_load_dword v13, v6, s[40:43], s56 offen %s" % c.pol_pf)
            a.label("L_S1_NOWQ")
        a("s_barrier")
        a("s_cmp_lg_u32 s66, 0")
        a("s_cbranch_scc1 L_S1_PR")
        a("s_waitcnt vmcnt(0)")
        a("s_call_b64 s[64:65], L_LN1")
        a("s_call_b64 s[64:65], L_QPART")
        a("s_branch L_S1_SM")
        a.label("L_S1_PR")
        a("s_branch L_NEAR")
        a.label("L_S2")
        a("v_mov_b32 v19, 0")
        a("buffer_load_dword v7, v19, s[48:51], 0 offen sc1")
        for k in range(4):
            a("v_mov_b32 v%d, -1" % (12 + k))
        a("v_and_b32 v18, 7, v0")
        a("v_lshlrev_b32 v18, 4, v18")
        a("s_lshl_b32 s56, s4, 15")
        a("s_lshl_b32 s57, s5, 10")
        a("s_add_u32 s56, s56, s57")
        a("s_add_u32 s56, s56, %d" % WS_O)
        a("buffer_store_dwordx4 v[12:15], v4, s[48:51], s56 offen sc1")
        a("s_barrier")
        a("s_cmp_eq_u32 s66, 2")
        a("s_cbranch_scc0 L_S2_K")
        a("s_lshl_b32 s56, s4, 9")
        a("s_add_u32 s56, s56, %d" % WS_ST)
        a("s_cmp_eq_u32 s5, 31")
        a("s_cselect_b32 s56, s56, %d" % OOB)
        a("s_mov_b32 exec_hi, 0")
        a("buffer_store_dwordx4 v[12:15], v4, s[48:51], s56 offen sc1")
        a("s_branch L_S2_CLR")
        a.label("L_S2_K")
        a("s_cmp_eq_u32 s66, 0")
        a("s_cbranch_scc1 L_S2_H")
        a("s_cmp_eq_u32 s66, 1")
        a("s_cbranch_scc1 L_S2_C")
        a("v_lshrrev_b32 v16, 4, v0")
        a("v_lshlrev_b32 v16, 12, v16")
        a("v_and_b32 v17, 15, v0")
        a("v_lshl_add_u32 v16, v17, 4, v16")
        a("s_sub_u32 s57, s5, 8")
        a("s_lshr_b32 s56, s57, 1")
        a("s_lshl_b32 s56, s56, 14")
        a("s_and_b32 s57, s57, 1")
        a("s_lshl_b32 s57, s57, 8")
        a("s_add_u32 s56, s56, s57")
        a("s_lshl_b32 s57, s4, 9")
        a("s_add_u32 s56, s56, s57")
        a("s_add_u32 s56, s56, %d" % WS_A)
        for k in range(4):
            a("buffer_store_dwordx4 v[12:15], v16, s[48:51], s56 offen sc1")
            a("s_add_u32 s56, s56, %d" % (7 * 16384))
        a("s_branch L_S2_CLR")
        a.label("L_S2_C")
        a("v_lshrrev_b32 v17, 3, v0")
        a("v_lshl_add_u32 v16, v17, 13, v18")
        a("s_lshl_b32 s56, s62, 7")
        a("s_add_u32 s56, s56, %d" % WS_C)
        for k in range(8):
            a("buffer_store_dwordx4 v[12:15], v16, s[48:51], s56 offen sc1")
            a("s_add_u32 s56, s56, 65536")
        a("s_branch L_S2_CLR")
        a.label("L_S2_H")
        a("v_lshrrev_b32 v17, 2, v0")
        a("v_mul_u32_u24 v16, %d, v17" % HREP_STRIDE)
        a("v_and_b32 v17, 3, v0")
        a("v_lshl_add_u32 v16, v17, 4, v16")
        a("s_lshl_b32 s56, s2, 7")
        a("s_add_u32 s56, s56, %d" % WS_H)
        a("s_mov_b32 exec_lo, 0x%x" % ((1 << (4 * c.hrep)) - 1))
        a("s_mov_b32 exec_hi, 0")
        a("buffer_store_dwordx4 v[12:15], v16, s[48:51], s56 offen sc1")
        a.label("L_S2_CLR")
        a("s_mov_b64 exec, -1")
        a("s_waitcnt vmcnt(2)")
        a("v_readfirstlane_b32 s68, v7")
        a("s_or_b32 s68, s68, 1")
        a("s_mul_i32 s68, s68, 0x9E3779B1")
        a("s_add_u32 s68, s68, 0x85EBCA6A")
        a("s_getreg_b32 s69, hwreg(HW_REG_XCC_ID)")
        a("s_and_b32 s69, s69, 15")
        a("v_mov_b32 v20, s68")
        a("v_mov_b32 v21, s69")
        a("s_mov_b64 exec, 1")
        a("ds_write_b32 v2, v20 offset:%d" % F_TAG)
        a("s_mov_b64 exec, -1")
        a("s_cmp_lg_u32 s66, 0")
        a("s_cbranch_scc1 L_S2_FLAG")
        a("s_call_b64 s[64:65], L_LN1")
        a("s_branch L_S2_FLAG")
        a.label("L_S3")
        a("s_cmp_eq_u32 s66, 1")
        a("s_cbranch_scc1 L_FFN")
        a("s_cmp_eq_u32 s66, 3")
        a("s_cbranch_scc0 L_S3_Q")
        a("v_lshl_add_u32 v20, v18, 5, v16")
        a("v_mul_u32_u24 v20, 896, v20")
        a("v_add_u32 v20, v20, v17")
        for k, rows in enumerate((4, 16, 20, 8, 12, 24, 28)):
            a("v_add_u32 v%d, %d, v20" % (21 + k, rows * 896))
        a("s_sub_u32 s57, s5, 8")
        a("s_and_b32 s56, s57, 1")
        a("s_lshl_b32 s58, s4, 1")
        a("s_add_u32 s56, s56, s58")
        a("s_mul_i32 s56, s56, %d" % (256 * 896))
        a("s_lshr_b32 s57, s57, 1")
        a("s_lshl_b32 s57, s57, 7")
        a("s_add_u32 s56, s56, s57")
        self.srd(52, 24, "s56", 255 * 896 + 128)
        a("s_mov_b32 m0, %d" % BIG)
        a("s_movk_i32 s15, 0")
        wv = [("v%d" % (20 + k), 52, 1024) for k in range(8)]
        if c.wo_early:
            self.tile_loop(wv, 52, c.wo_early, 64 * 896, c.pol_wo, c.wo_thr)
        if c.wo_early < 4:
            self.wait_flag("v2", F_VI, 4, "v28", sleep=1)
            self.tile_loop(wv, 52, 4 - c.wo_early, 64 * 896, c.pol_wo, 0)
        a("s_waitcnt vmcnt(0)")
        self.signal("v2", F_WO, "v3")
        self.stamp(1)
        a("s_branch L_STAGE2")
        a.label("L_S3_Q")
        a("s_cmp_lg_u32 s66, 0")
        a("s_cbranch_scc1 L_S3_PF")
        a("s_waitcnt vmcnt(0)")
        a("s_call_b64 s[64:65], L_LN1")
        a("s_call_b64 s[64:65], L_QPART")
        a("s_branch L_S3_PF")
        a.label("L_NEAR")
        a("s_load_dword s40, s[38:39], 0x400")
        a("s_and_b32 s63, s5, 1")
        a("s_lshr_b32 s56, s5, 2")
        a("s_lshl_b32 s57, s63, 3")
        a("s_or_b32 s56, s56, s57")
        a("s_lshr_b32 s57, s4, 2")
        a("s_lshl_b32 s57, s57, 4")
        a("s_or_b32 s56, s56, s57")
        a("s_lshl_b32 s56, s56, 14")
        a("s_lshl_b32 s57, s63, 13")
        a("s_or_b32 s56, s56, s57")
        a("s_and_b32 s57, s5, 2")
        a("s_lshl_b32 s57, s57, 11")
        a("s_or_b32 s56, s56, s57")
        a("s_add_u32 s57, s4, s6")
        a("s_and_b32 s57, s57, 3")
        a("s_lshl_b32 s57, s57, 8")
        a("s_or_b32 s56, s56, s57")
        a("s_add_u32 s56, s56, %d" % WS_PR)
        a("s_xor_b32 s54, s56, 8192")
        a("s_add_u32 s56, s38, s56")
        a("s_addc_u32 s57, s39, 0")
        a("s_add_u32 s54, s38, s54")
        a("s_addc_u32 s55, s39, 0")
        a("s_waitcnt lgkmcnt(0)")
        seq = [(56, 0), (54, 0), (54, 1024), (56, 1024)]
        for k, (base, off) in enumerate(seq):
            a("s_memtime s[%d:%d]" % ((42, 43), (44, 45), (46, 47), (60, 61))[k])
            a("s_waitcnt lgkmcnt(0)")
            a("s_load_dword s40, s[%d:%d], %d" % (base, base + 1, off))
            a("s_load_dword s41, s[%d:%d], %d" % (base, base + 1, off + 2048))
            a("s_waitcnt lgkmcnt(0)")
        a("s_memtime s[58:59]")
        a("s_waitcnt lgkmcnt(0)")
        a("s_sub_u32 s40, s58, s42")
        a("s_sub_u32 s41, s60, s44")
        a("s_lshl_b32 s41, s41, 1")
        a("s_sub_i32 s40, s40, s41")
        a("s_sub_i32 s41, 0, s40")
        a("s_cmp_eq_u32 s63, 0")
        a("s_cselect_b32 s40, s40, s41")
        a("s_min_i32 s40, s40, 600")
        a("s_max_i32 s40, s40, -600")
        a("s_lshl_b32 s56, s4, 8")
        a("s_lshl_b32 s57, s5, 3")
        a("s_add_u32 s56, s56, s57")
        a("v_mov_b32 v29, s40")
        a("v_mov_b32 v30, 0")
        self.wait_flag("v2", F_TAG, 1, "v28")
        a("s_mov_b64 exec, 1")
        a("buffer_store_dwordx2 v[28:29], v30, s[48:51], s56 offen offset:%d" % WS_VOTE)
        a("ds_add_u32 v2, v3 offset:%d" % F_VI)
        a("s_mov_b64 exec, -1")
        a("s_branch L_S1_SM")
        a.label("L_LN1")
        self.layernorm(8, 24, 32)
        a("s_mul_i32 s14, s11, %d" % XN_STR)
        a("s_add_u32 s14, s14, %d" % XN)
        a("v_add_u32 v6, s14, v4")
        a("s_mov_b32 exec_hi, 0x00ffffff")
        a("ds_write_b128 v6, v[8:11]")
        self.signal("v2", F_XN, "v3")
        a("s_setpc_b64 s[64:65]")
        a.label("L_QPART")
        XF, WF, AC = 48, 104, 160
        a("v_lshrrev_b32 v24, 2, v0")
        a("v_bfe_u32 v25, v0, 3, 2")
        a("v_and_b32 v26, 3, v0")
        a("v_lshlrev_b32 v24, 7, v24")
        a("v_lshl_add_u32 v24, v26, 3, v24")
        a("v_xor_b32 v25, s11, v25")
        a("v_lshl_add_u32 v24, v25, 5, v24")
        a("v_add_u32 v24, %d, v24" % BIG)
        a("v_lshrrev_b32 v25, 4, v0")
        a("v_mul_u32_u24 v6, %d, v26" % XN_STR)
        a("v_lshl_add_u32 v6, v25, 4, v6")
        a("v_add_u32 v6, %d, v6" % XN)
        a("v_lshlrev_b32 v27, 14, v26")
        a("v_lshl_add_u32 v27, v25, 4, v27")
        a("s_lshl_b32 s56, s4, 11")
        a("s_lshl_b32 s57, s5, 8")
        a("s_add_u32 s56, s56, s57")
        a("s_lshl_b32 s57, s11, 6")
        a("s_add_u32 s56, s56, s57")
        a("s_add_u32 s56, s56, %d" % WS_Q)
        a("s_add_u32 s57, s56, %d" % (WS_QF - WS_Q))
        self.wait_flag("v2", F_XN, 4, "v28")
        for s in range(14):
            a("ds_read_b128 v[%d:%d], v6 offset:%d" % (XF + 4 * s, XF + 4 * s + 3, s * 64))
        self.wait_flag("v2", F_TAG, 1, "v28")
        a("v_mov_b32 v9, s14")
        a("v_mov_b32 v11, s14")
        self.stamp(9)
        self.wait_flag("v2", F_WQ, 4, "v28")
        for s in range(14 + 6):
            if s < 14:
                for hh in range(2):
                    r = WF + 4 * s + 2 * hh
                    a("ds_read_b64_tr_b16 v[%d:%d], v24 offset:%d" % (r, r + 1, s * 4096 + hh * 2048))
            p = s - 6
            if p >= 0:
                a("s_waitcnt lgkmcnt(%d)" % (2 * (min(s, 13) - p)))
                self.mfma(AC, WF + 4 * p, XF + 4 * p, p == 0)
        a("s_mov_b32 exec_lo, 0x000f000f")
        a("s_mov_b32 exec_hi, 0x000f000f")
        a("s_nop 5")
        a("v_cvt_pk_bf16_f32 v8, v%d, v%d" % (AC, AC + 1))
        a("v_cvt_pk_bf16_f32 v10, v%d, v%d" % (AC + 2, AC + 3))
        a("buffer_store_dwordx4 v[8:11], v27, s[48:51], s57 offen")
        a("buffer_store_dwordx4 v[8:11], v27, s[48:51], s56 offen sc1")
        a("s_mov_b64 exec, -1")
        self.stamp(10)
        a("s_setpc_b64 s[64:65]")

    def near_from(self, v):
        a, c = self.a, self.c
        for ctl in ("quad_perm:[1,0,3,2]", "quad_perm:[2,3,0,1]", "row_half_mirror"):
            a("s_nop 1")
            a("v_add_u32_dpp %s, %s, %s %s row_mask:0xf bank_mask:0xf" % (v, v, v, ctl))
        a("s_getreg_b32 s13, hwreg(HW_REG_XCC_ID, 2, 1)")
        a("v_readfirstlane_b32 s14, %s" % v)
        a("s_cmp_gt_i32 s14, 0")
        a("s_cselect_b32 s14, 1, 0")
        a("s_xor_b32 s14, s14, s13")
        if c.near == 0:
            a("s_mov_b32 s14, 0")
        if c.near == 2:
            a("s_xor_b32 s14, s14, 1")
        a("s_add_u32 s14, s14, 1")

    def s_next(self):
        a = self.a
        a("s_cmp_eq_u32 s66, 3")
        a("s_cbranch_scc1 L_STAGE2")
        a("s_cmp_eq_u32 s66, 1")
        a("s_cbranch_scc1 L_FFN")
        self.finish()

    def s0_late(self):
        a, c = self.a, self.c
        a.label("L_S0_TAG")
        a.label("L_S0_GATHER")
        self.wait_flag("v2", F_TAG, 1, "v24", sleep=2)
        a("s_mov_b32 s68, s14")
        a("s_lshl_b32 s56, s10, 11")
        a("s_add_u32 s56, s56, %d" % WS_Q)
        a("v_lshlrev_b32 v7, 3, v0")
        a("v_xor_b32 v7, s70, v7")
        a("v_add_u32 v7, %d, v7" % QS)
        self.wait_flag("v2", F_KD, 4, "v24", sleep=1)
        a("s_add_u32 s57, s56, %d" % (WS_QF - WS_Q))
        a("s_mov_b32 s13, 1")
        a.label("L_QPOLL")
        a("s_and_b32 s14, s13, %d" % (c.fast_n - 1))
        a("s_cselect_b32 s58, s57, s56")
        a("buffer_load_dwordx4 v[8:11], v4, s[48:51], s58 offen sc1")
        a("buffer_load_dwordx4 v[12:15], v4, s[48:51], s58 offen offset:1024 sc1")
        a("s_waitcnt vmcnt(0)")
        a("v_xor_b32 v9, s68, v9")
        a("v_xor_b32 v11, s68, v11")
        a("v_xor_b32 v13, s68, v13")
        a("v_xor_b32 v15, s68, v15")
        a("v_or3_b32 v9, v9, v11, v13")
        a("v_or_b32 v9, v9, v15")
        a("v_cmp_ne_u32 vcc, 0, v9")
        a("s_cbranch_vccz L_QOK")
        a("s_add_u32 s13, s13, 1")
        a("s_cmp_lt_u32 s13, %d" % c.poll_max)
        a("s_cbranch_scc1 L_QPOLL")
        a.label("L_QOK")
        a("v_mov_b32 v9, v10")
        a("v_mov_b32 v13, v14")
        a("ds_write_b64 v7, v[8:9]")
        a("ds_write_b64 v7, v[12:13] offset:%d" % QS_STR)
        self.signal("v2", F_Q, "v3")
        self.stamp(4)
        self.s_next()

    def s1_late(self):
        a, c = self.a, self.c
        a.label("L_S1_SM")
        a("v_lshrrev_b32 v6, 5, v0")
        a("v_mul_u32_u24 v6, %d, v6" % PS_STR)
        a("v_and_b32 v7, 31, v0")
        a("v_lshl_add_u32 v6, v7, 3, v6")
        a("v_add_u32 v6, %d, v6" % SCL)
        a("v_cmp_gt_u32 s[58:59], 32, v0")
        a("s_mov_b32 s61, %s" % f32(0.0625 * LOG2E))
        a("s_lshr_b32 s56, s8, 1")
        a("s_lshl_b32 s56, s56, 8")
        a("s_and_b32 s57, s5, 15")
        a("s_lshl_b32 s57, s57, 3")
        a("s_add_u32 s56, s56, s57")
        a("s_add_u32 s56, s56, %d" % WS_ST)
        a("v_lshrrev_b32 v7, 5, v0")
        a("v_lshlrev_b32 v7, 7, v7")
        a("s_waitcnt vmcnt(0)")
        self.wait_flag("v2", F_SC, 4, "v24", sleep=1)
        self.stamp(2)
        a("ds_read_b64 v[8:9], v6")
        a("s_waitcnt lgkmcnt(0)")
        a("v_lshlrev_b32 v12, 16, v8")
        a("v_and_b32 v13, 0xffff0000, v8")
        a("v_lshlrev_b32 v14, 16, v9")
        a("v_and_b32 v15, 0xffff0000, v9")
        a("v_max3_f32 v16, v12, v13, v14")
        a("v_max_f32 v16, v16, v15")

        def half_reduce(op, x):
            for ctl in ("row_shr:1", "row_shr:2", "row_shr:4", "row_shr:8"):
                a("s_nop 1")
                a("%s_dpp %s, %s, %s %s row_mask:0xf bank_mask:0xf" % (op, x, x, x, ctl))
            a("s_nop 1")
            a("%s_dpp %s, %s, %s row_bcast:15 row_mask:0xa bank_mask:0xf" % (op, x, x, x))
            a("s_nop 0")
        half_reduce("v_max_f32", "v16")
        a("v_readlane_b32 s64, v16, 31")
        a("v_readlane_b32 s65, v16, 63")
        a("s_nop 1")
        a("v_mov_b32 v20, s64")
        a("v_mov_b32 v22, s65")
        a("v_mul_f32 v20, s61, v20")
        a("v_mul_f32 v22, s61, v22")
        a("v_cndmask_b32 v18, v22, v20, s[58:59]")
        for k in range(4):
            a("v_fma_f32 v%d, v%d, s61, -v18" % (12 + k, 12 + k))
        for k in range(4):
            a("v_exp_f32 v%d, v%d" % (12 + k, 12 + k))
        a("s_nop 0")
        a("v_cvt_pk_bf16_f32 v8, v12, v13")
        a("v_cvt_pk_bf16_f32 v9, v14, v15")
        a("ds_write_b64 v6, v[8:9] offset:%d" % (PS - SCL))
        self.signal("v2", F_P, "v3")
        self.stamp(3)
        a("v_add_f32 v19, v12, v13")
        a("v_add_f32 v17, v14, v15")
        a("v_add_f32 v19, v19, v17")
        half_reduce("v_add_f32", "v19")
        a("v_min_u32 v18, -2, v18")
        a("v_min_u32 v19, -2, v19")
        self.wait_flag("v2", F_CO, 1, "v24")
        a("s_mov_b32 exec_lo, 0x80000000")
        a("s_mov_b32 exec_hi, 0x80000000")
        a("s_cmp_eq_u32 s14, 2")
        a("s_cbranch_scc0 L_S1_SLOW")
        a("buffer_store_dwordx2 v[18:19], v7, s[48:51], s56 offen")
        a("s_branch L_S1_DONE")
        a.label("L_S1_SLOW")
        a("buffer_store_dwordx2 v[18:19], v7, s[48:51], s56 offen sc1")
        a.label("L_S1_DONE")
        a("s_mov_b64 exec, -1")
        self.stamp(4)
        self.s_next()

    def s2_late(self):
        a, c = self.a, self.c
        a.label("L_S2_FLAG")
        a("s_lshl_b32 s56, s4, 12")
        a("s_lshl_b32 s57, s5, 7")
        a("s_add_u32 s57, s57, s56")
        a("s_add_u32 s57, s57, %d" % WS_FLAGS)
        a("s_lshl_b32 s58, s4, 8")
        a("s_lshl_b32 s59, s5, 3")
        a("s_add_u32 s59, s59, s58")
        a("s_add_u32 s59, s59, %d" % WS_FF)
        a("s_waitcnt vmcnt(0)")
        a("s_mov_b64 exec, 1")
        a("buffer_store_dwordx2 v[20:21], v19, s[48:51], s59 offen")
        a("buffer_store_dwordx2 v[20:21], v19, s[48:51], s57 offen sc1")
        a("s_mov_b64 exec, -1")
        self.stamp(1)
        a("s_cmp_lg_u32 s66, 0")
        a("s_cbranch_scc1 L_S2_NOQ")
        a("s_call_b64 s[64:65], L_QPART")
        a.label("L_S2_NOQ")
        a("s_lshl_b32 s56, s4, 12")
        a("s_add_u32 s56, s56, %d" % WS_FLAGS)
        a("s_lshl_b32 s58, s4, 8")
        a("s_add_u32 s58, s58, %d" % WS_FF)
        a("v_and_b32 v16, 31, v0")
        a("v_lshlrev_b32 v17, 3, v16")
        a("v_lshlrev_b32 v16, 7, v16")
        a("s_sub_u32 s59, s58, %d" % (WS_FF - WS_VOTE))
        a("s_cmp_eq_u32 s5, 31")
        a("s_cselect_b32 s59, s59, %d" % OOB)
        self.wait_flag("v2", F_KD, 1, "v24", sleep=2)
        a("s_cmp_eq_u32 s5, 31")
        a("s_cbranch_scc0 L_GSTART")
        self.wait_flag("v2", F_VI, 1, "v24", sleep=2)
        a.label("L_GSTART")
        a("s_mov_b32 s13, 1")
        a.label("L_GPOLL")
        a("buffer_load_dwordx2 v[14:15], v17, s[48:51], s59 offen sc1")
        a("s_and_b32 s14, s13, %d" % (c.fast_n - 1))
        a("s_cbranch_scc0 L_GSLOW")
        a("buffer_load_dwordx2 v[12:13], v17, s[48:51], s58 offen sc1")
        a("s_branch L_GCHK")
        a.label("L_GSLOW")
        a("buffer_load_dwordx2 v[12:13], v16, s[48:51], s56 offen sc1")
        a.label("L_GCHK")
        a("s_waitcnt vmcnt(0)")
        a("v_cmp_ne_u32 vcc, s68, v12")
        a("s_cbranch_vccz L_GOK")
        a("s_sleep 2")
        a("s_add_u32 s13, s13, 1")
        a("s_cmp_lt_u32 s13, %d" % c.poll_max)
        a("s_cbranch_scc1 L_GPOLL")
        a.label("L_GOK")
        a("v_cmp_ne_u32 vcc, s69, v13")
        a("s_cmp_eq_u64 vcc, 0")
        a("s_cselect_b32 s14, %d, 1" % (2 if c.fast else 1))
        a("v_mov_b32 v21, s14")
        a("s_mov_b64 exec, 1")
        a("ds_write_b32 v2, v21 offset:%d" % F_CO)
        a("s_mov_b64 exec, -1")
        a("s_cmp_eq_u32 s5, 31")
        a("s_cbranch_scc0 L_S2_NOLEAD")
        a("v_cmp_eq_u32 vcc, s68, v14")
        a("s_lshl_b32 s58, s4, 7")
        a("s_add_u32 s58, s58, %d" % WS_GOK)
        a("v_cndmask_b32 v15, 0, v15, vcc")
        self.wave_reduce1("v_add_u32", "v15")
        a("s_nop 0")
        a("v_readlane_b32 s14, v15, 63")
        a("s_sub_i32 s13, 0, s14")
        a("s_bitcmp1_b32 s69, 2")
        a("s_cselect_b32 s14, s13, s14")
        a("v_mov_b32 v21, s14")
        a("s_mov_b64 exec, 1")
        a("buffer_store_dwordx2 v[20:21], v19, s[48:51], s58 offen sc1")
        a("s_mov_b64 exec, -1")
        a.label("L_S2_NOLEAD")
        self.stamp(2)
        a("s_cmp_eq_u32 s66, 3")
        a("s_cbranch_scc1 L_STAGE2")
        a("s_cmp_eq_u32 s66, 2")
        a("s_cbranch_scc1 L_RED_END")
        a("v_and_b32 v16, 7, v0")
        a("v_lshlrev_b32 v16, 7, v16")
        a("s_mov_b32 s56, %d" % WS_GOK)
        if c.gok_wait:
            self.wait_flag("v2", c.gok_wait, 1, "v24", sleep=2)
        a("s_mov_b32 s13, 0")
        a.label("L_APOLL")
        a("buffer_load_dwordx2 v[12:13], v16, s[48:51], s56 offen sc1")
        a("s_waitcnt vmcnt(0)")
        a("v_cmp_ne_u32 vcc, s68, v12")
        a("s_cbranch_vccz L_AOK")
        a("s_sleep 4")
        a("s_add_u32 s13, s13, 1")
        a("s_cmp_lt_u32 s13, %d" % c.poll_max)
        a("s_cbranch_scc1 L_APOLL")
        a.label("L_AOK")
        self.near_from("v13")
        a("v_mov_b32 v15, s14")
        a("s_mov_b64 exec, 1")
        a("ds_write_b32 v2, v15 offset:%d" % F_NEAR)
        a("s_mov_b64 exec, -1")
        if c.diag:
            a("s_mov_b32 s78, s14")
        a("s_cmp_eq_u32 s66, 1")
        a("s_cbranch_scc1 L_FFN")
        a("s_branch L_RED")

        a.label("L_S3_PF")
        if c.ffn_pf:
            a("s_sub_u32 s58, s5, 21")
            a("s_cmp_lt_u32 s5, 8")
            a("s_cselect_b32 s58, s5, s58")
            a("v_lshrrev_b32 v6, 2, v0")
            a("v_mul_u32_u24 v6, 3584, v6")
            a("v_and_b32 v7, 3, v0")
            a("v_lshl_add_u32 v6, v7, 7, v6")
            a("s_mul_i32 s56, s4, 448")
            a("s_and_b32 s56, s56, 0xffffff80")
            a("v_lshlrev_b32 v7, 7, v0")
            self.srd(40, 28, None, 448 * 3584)
            self.srd(44, 30, None, 448 * 3584)
            a("s_mul_i32 s57, s58, %d" % (c.pf_rows * 3584))
            a("s_add_u32 s56, s56, s57")
            a("s_add_u32 s56, s56, %d" % ((448 - 11 * c.pf_rows) * 3584))
            a("s_mul_i32 s57, s4, %d" % (224 * 896))
            self.srd(52, 32, "s57", 224 * 896)
            a("s_mul_i32 s57, s58, %d" % (3 * 8192))
            self.wait_flag("v2", F_VD, 4, "v24", sleep=1)
            if c.ffn_delay:
                a("s_sleep %d" % c.ffn_delay)
            for k in range(c.pf_rows // 16):
                a("buffer_load_dword v%d, v6, s[40:43], s56 offen %s" % (12 + 2 * k, c.pol_pf))
                a("buffer_load_dword v%d, v6, s[44:47], s56 offen %s" % (13 + 2 * k, c.pol_pf))
                a("s_add_u32 s56, s56, %d" % (16 * 3584))
            for k in range(3):
                a("buffer_load_dword v%d, v7, s[52:55], s57 offen %s" % (24 + k, c.pol_pf))
                a("s_add_u32 s57, s57, 8192")
            if c.diag:
                a("s_waitcnt vmcnt(0)")
            self.stamp(1)
        self.finish()
        a.label("L_K_FFN")
        a("v_bfe_u32 v16, v0, 3, 2")
        a("v_lshrrev_b32 v18, 5, v0")
        a("v_and_b32 v17, 0x70, v3")
        a("v_lshl_add_u32 v24, v18, 3, v16")
        a("v_mul_u32_u24 v24, 896, v24")
        a("v_add_u32 v24, v24, v17")
        a("v_add_u32 v25, %d, v24" % (16 * 896))
        a("v_add_u32 v26, %d, v24" % (4 * 896))
        a("v_add_u32 v27, %d, v24" % (20 * 896))
        a("v_lshrrev_b32 v22, 2, v0")
        a("v_mul_u32_u24 v20, 3584, v22")
        a("v_and_b32 v23, 3, v0")
        a("v_xor_b32 v23, v23, v18")
        a("v_lshl_add_u32 v20, v23, 4, v20")
        a("v_xor_b32 v21, 32, v20")
        a("s_mul_i32 s62, s4, 7")
        a("s_add_u32 s62, s62, s5")
        a("s_sub_u32 s62, s62, 22")
        a("s_lshl_b32 s56, s62, 6")
        self.srd(40, 28, "s56", 447 * 3584 + 64)
        self.srd(44, 30, "s56", 447 * 3584 + 64)
        a("s_mul_i32 s56, s62, %d" % (32 * 896))
        self.srd(52, 32, "s56", 32 * 896)
        a("s_mov_b32 m0, %d" % GT)
        a("s_movk_i32 s15, 0")
        gu = [("v20", 40, 28672), ("v21", 44, 1024 - 28672)]
        self.wait_flag("v13", F_VD, 4, "v28")
        self.tile_loop(gu, None, 28, 16 * 3584, c.pol_ffn, 32)
        a("s_mov_b32 m0, %d" % DT)
        a("s_movk_i32 s15, 0")
        self.tile_loop([("v%d" % (24 + k), 52, 1024) for k in range(4)], 52, 7, 128, c.pol_ffn, 0)
        a("s_waitcnt vmcnt(28)")
        self.signal("v13", F_WO, "v14")
        self.stamp(9)
        a("s_waitcnt vmcnt(0)")
        self.signal("v13", F_WO, "v14")
        self.stamp(10)
        self.finish()

    def stage2(self):
        a, c = self.a, self.c
        WF, AF, AC, W = 48, 112, 128, 28
        a.label("L_STAGE2")
        a("s_lshr_b32 s70, s11, 1")
        a("s_and_b32 s71, s11, 1")
        a("s_lshl_b32 s71, s71, 1")
        a("s_sub_u32 s64, s5, 8")
        a("s_and_b32 s65, s64, 1")
        a("s_lshr_b32 s64, s64, 1")
        a("s_lshl_b32 s12, s70, 14")
        a("s_add_u32 s12, s12, %d" % BIG)
        self.tr_addrs(12, "s12", "v24", "v25", "v26")
        a("v_and_b32 v24, 7, v0")
        a("v_lshrrev_b32 v25, 4, v0")
        a("v_bfe_u32 v26, v0, 3, 1")
        a("v_and_b32 v17, 15, v0")
        a("v_lshlrev_b32 v17, 3, v17")
        a("v_lshlrev_b32 v18, 4, v24")
        a("v_lshl_add_u32 v18, v26, 12, v18")
        a("v_lshrrev_b32 v27, 5, v0")
        a("v_mul_u32_u24 v27, %d, v27" % (7 * 16384))
        a("v_add_u32 v18, v18, v27")
        a("v_and_b32 v27, 1, v25")
        a("v_lshl_add_u32 v18, v27, 13, v18")
        a("v_lshlrev_b32 v19, 4, v25")
        a("s_add_u32 s56, s9, s71")
        a("s_lshl_b32 s57, s56, 7")
        a("s_lshl_b32 s14, s65, 7")
        a("s_add_u32 s57, s57, s14")
        a("s_add_u32 s57, s57, %d" % WS_ST)
        a("s_lshl_b32 s14, s65, 1")
        a("s_add_u32 s14, s14, s70")
        a("s_lshl_b32 s56, s56, 1")
        a("s_add_u32 s56, s56, s14")
        a("s_lshl_b32 s56, s56, 12")
        a("s_add_u32 s56, s56, %d" % WS_O)
        a("s_add_u32 s14, s14, s9")
        a("s_lshl_b32 s14, s14, 7")
        a("s_mul_i32 s60, s71, 7")
        a("s_add_u32 s60, s60, s64")
        a("s_lshl_b32 s60, s60, 14")
        a("s_add_u32 s60, s60, s14")
        a("s_add_u32 s60, s60, %d" % WS_A)
        self.wait_flag("v2", F_WO, 1, "v24", sleep=1)
        for s in range(4):
            self.tile_reads(WF + 16 * s, 12, s * 4096)
            a("s_waitcnt lgkmcnt(0)")
        self.wait_flag("v2", F_CO, 1, "v24", sleep=1)
        self.stamp(5)
        a("s_mov_b32 s13, 0")
        a.label("L_OPOLL")
        a("buffer_load_dwordx2 v[20:21], v17, s[48:51], s57 offen sc1")
        for s in range(4):
            a("buffer_load_dwordx4 v[%d:%d], v4, s[48:51], s56 offen offset:%d sc1" % (AF + 4 * s, AF + 4 * s + 3, s * 1024))
        a("s_waitcnt vmcnt(4)")
        a("v_max_u32 v24, v20, v21")
        for s in range(4):
            a("s_waitcnt vmcnt(%d)" % (3 - s))
            r = AF + 4 * s
            a("v_max3_u32 v24, v24, v%d, v%d" % (r, r + 1))
            a("v_max3_u32 v24, v24, v%d, v%d" % (r + 2, r + 3))
        a("v_cmp_eq_u32 vcc, -1, v24")
        a("s_cbranch_vccz L_OOK")
        a("s_cmp_lg_u32 s13, 0")
        a("s_cbranch_scc1 L_ONEXT")
        self.wait_flag("v2", F_VD, 1, "v24", sleep=1)
        a.label("L_ONEXT")
        a("s_add_u32 s13, s13, 1")
        a("s_cmp_lt_u32 s13, %d" % c.poll_max)
        a("s_cbranch_scc1 L_OPOLL")
        a.label("L_OOK")
        self.stamp(6)

        def epi(n):
            r = AC + 4 * n
            return ["v_pk_mul_f32 v[%d:%d], v[%d:%d], v[%d:%d]" % (r, r + 1, r, r + 1, W, W + 1),
                    "v_pk_fma_f32 v[%d:%d], v[%d:%d], v[%d:%d], v[%d:%d]" % (r, r + 1, r + 2, r + 3, W + 2, W + 3, r, r + 1),
                    "v_add_f32 v%d, v%d, v%d" % (24 + n, r, r + 1)]
        dp = ("quad_perm:[1,0,3,2]", "quad_perm:[2,3,0,1]", "row_half_mirror")
        wts = [["v_max_f32_dpp v22, v20, v20 %s row_mask:0xf bank_mask:0xf" % dp[0]],
               ["s_nop 0", "v_max_f32_dpp v22, v22, v22 %s row_mask:0xf bank_mask:0xf" % dp[1]],
               ["s_nop 0", "v_max_f32_dpp v22, v22, v22 %s row_mask:0xf bank_mask:0xf" % dp[2], "v_sub_f32 v20, v20, v22", "v_exp_f32 v20, v20"],
               ["v_mul_f32 v22, v20, v21"],
               ["s_nop 0", "v_add_f32_dpp v22, v22, v22 %s row_mask:0xf bank_mask:0xf" % dp[0]],
               ["s_nop 0", "v_add_f32_dpp v22, v22, v22 %s row_mask:0xf bank_mask:0xf" % dp[1]],
               ["s_nop 0", "v_add_f32_dpp v22, v22, v22 %s row_mask:0xf bank_mask:0xf" % dp[2], "v_rcp_f32 v22, v22"],
               ["v_mul_f32 v20, v20, v22"] + ["ds_bpermute_b32 v%d, v19, v20 offset:%d" % (W + r, 4 * r) for r in range(4)]]
        fill = epi(0) + epi(1)
        k = 0
        for n in range(4):
            for s in range(4):
                idx = 4 * n + s
                self.mfma(AC + 4 * n, AF + 4 * s, WF + 16 * s + 4 * n, s == 0)
                if idx < len(wts):
                    for ins in wts[idx]:
                        a(ins)
                if idx == 12:
                    a("s_waitcnt lgkmcnt(0)")
                if idx >= 12:
                    a(fill[k]); k += 1
        a(fill[4])
        a(fill[5])
        for ins in epi(2):
            a(ins)
        a("v_permlane16_swap_b32 v24, v25")
        a("v_add_f32 v24, v24, v25")
        for ins in epi(3):
            a(ins)
        a("v_min_u32 v24, -2, v24")
        a("v_mov_b32 v25, v24")
        a("v_permlane16_swap_b32 v26, v27")
        a("v_add_f32 v26, v26, v27")
        a("v_permlane16_swap_b32 v24, v25")
        a("v_min_u32 v26, -2, v26")
        a("v_mov_b32 v27, v26")
        a("s_nop 1")
        a("v_permlane16_swap_b32 v26, v27")
        a("buffer_store_dwordx4 v[24:27], v18, s[48:51], s60 offen sc1")
        self.stamp(7)
        self.final()

    def final(self):
        a, c = self.a, self.c
        L, SEL = 48, 32
        a("s_mul_i32 s63, s11, 14")
        a("s_add_u32 s63, s63, s5")
        a("s_sub_u32 s63, s63, 8")
        a("s_cmp_lg_u32 s4, 0")
        a("s_cselect_b32 s63, 99, s63")
        a("s_cmp_ge_u32 s63, 32")
        a("s_cbranch_scc1 L_RED_END")
        a("s_lshr_b32 s64, s63, 3")
        a("s_bfe_u32 s65, s63, 0x20001")
        a("s_and_b32 s70, s63, 1")
        a("v_bfe_u32 v8, v0, 2, 1")
        a("v_bfe_u32 v9, v0, 3, 1")
        a("v_lshl_add_u32 v8, v8, 1, v9")
        a("v_and_b32 v10, 1, v0")
        a("v_lshlrev_b32 v10, 4, v10")
        a("v_mov_b32 v11, 0x3f80")
        a("v_lshlrev_b32 v11, v10, v11")
        for k in range(4):
            a("v_cmp_eq_u32 vcc, %d, v8" % k)
            a("s_nop 1")
            a("v_cndmask_b32 v%d, 0, v11, vcc" % (SEL + k))
        a("v_bfe_u32 v12, v0, 4, 1")
        a("v_lshrrev_b32 v13, 5, v0")
        a("v_lshl_add_u32 v13, v13, 1, v9")
        a("v_and_b32 v14, 7, v0")
        a("v_lshlrev_b32 v15, 8, v12")
        a("v_lshl_add_u32 v15, v13, 4, v15")
        a("v_and_b32 v16, 6, v14")
        a("v_lshl_add_u32 v15, v16, 1, v15")
        a("v_lshlrev_b32 v17, 7, v12")
        a("v_lshl_add_u32 v17, v13, 5, v17")
        a("v_lshl_add_u32 v17, v14, 1, v17")
        a("s_cmp_eq_u32 s65, 3")
        a("s_cselect_b32 s14, 1, 2")
        a("v_cmp_gt_u32 vcc, s14, v12")
        a("v_mov_b32 v16, %d" % OOB)
        a("v_cmp_eq_u32 s[58:59], 0, v9")
        a("v_cndmask_b32 v15, v16, v15, vcc")
        a("v_cndmask_b32 v17, v16, v17, vcc")
        a("s_mul_i32 s56, s64, 14")
        a("s_lshl_b32 s14, s65, 2")
        a("s_add_u32 s56, s56, s14")
        a("s_add_u32 s56, s56, s70")
        a("s_lshl_b32 s56, s56, 7")
        a("s_add_u32 s56, s56, %d" % WS_H)
        a("s_mul_i32 s69, s64, 896")
        a("s_lshl_b32 s14, s65, 8")
        a("s_add_u32 s69, s69, s14")
        a("s_lshl_b32 s14, s70, 4")
        a("s_add_u32 s69, s69, s14")
        a("s_lshl_b32 s60, s63, 14")
        a("s_add_u32 s60, s60, %d" % (WS_C - 8192))
        self.srd(44, 34, None, 3584)
        self.wait_flag("v2", F_TAG, 1, "v24")
        a("s_mov_b32 s68, s14")
        a("v_lshlrev_b32 v16, 7, v14")
        a("s_mov_b32 s57, %d" % WS_GOK)
        a("s_mov_b32 s13, 0")
        a.label("L_FGPOLL")
        a("buffer_load_dwordx2 v[18:19], v16, s[48:51], s57 offen sc1")
        a("s_waitcnt vmcnt(0)")
        a("v_cmp_ne_u32 vcc, s68, v18")
        a("s_cbranch_vccz L_FGOK")
        a("s_sleep 2")
        a("s_add_u32 s13, s13, 1")
        a("s_cmp_lt_u32 s13, %d" % c.poll_max)
        a("s_cbranch_scc1 L_FGPOLL")
        a.label("L_FGOK")
        self.near_from("v19")
        a("s_lshl_b32 s14, s14, 13")
        a("s_add_u32 s60, s60, s14")
        a("s_add_u32 s61, s60, 4096")
        a("s_add_u32 s56, s56, s14")
        a("s_sub_u32 s56, s56, 8192")
        a("s_mov_b32 s13, 0")
        a.label("L_FHPOLL")
        a("buffer_load_dword v18, v15, s[48:51], s56 offen sc1")
        a("s_waitcnt vmcnt(0)")
        a("v_cmp_eq_u32 vcc, -1, v18")
        a("s_cbranch_vccz L_FHOK")
        a("s_sleep 2")
        a("s_add_u32 s13, s13, 1")
        a("s_cmp_lt_u32 s13, %d" % c.poll_max)
        a("s_cbranch_scc1 L_FHPOLL")
        a.label("L_FHOK")
        a("v_lshrrev_b32 v18, v10, v18")
        a("v_lshlrev_b32 v18, 16, v18")
        self.stamp(8)
        a("s_mov_b32 s13, 0")
        a.label("L_CPOLL")
        for i in range(7):
            a("buffer_load_dwordx4 v[%d:%d], v4, s[48:51], %s offen offset:%d sc1" % (L + 4 * i, L + 4 * i + 3, "s60" if i < 4 else "s61", (i & 3) * 1024))
        for i in range(7):
            a("s_waitcnt vmcnt(%d)" % (6 - i))
            self.mfma(24, SEL, L + 4 * i, i == 0)
        a("s_add_u32 s13, s13, 1")
        a("s_nop 6")
        a("v_cndmask_b32 v20, v24, v25, s[58:59]")
        a("v_cndmask_b32 v21, v25, v24, s[58:59]")
        a("s_nop 0")
        a("v_add_f32_dpp v22, v20, v21 row_ror:8 row_mask:0xf bank_mask:0xf")
        a("v_cmp_u_f32 vcc, v22, v22")
        a("s_cbranch_vccz L_COK")
        a("s_and_b32 s14, s13, 15")
        a("s_cbranch_scc1 L_CPOLL")
        a("v_max_u32 v20, v%d, v%d" % (L, L + 1))
        for i in range(2, 28, 2):
            a("v_max3_u32 v20, v20, v%d, v%d" % (L + i, L + i + 1))
        a("v_cmp_eq_u32 vcc, -1, v20")
        a("s_cbranch_vccz L_COK")
        a("s_cmp_lt_u32 s13, %d" % c.poll_max)
        a("s_cbranch_scc1 L_CPOLL")
        a.label("L_COK")
        a("v_cvt_pk_bf16_f32 v22, v22, v22")
        a("v_lshlrev_b32 v22, 16, v22")
        a("v_add_f32 v22, v18, v22")
        a("v_cvt_pk_bf16_f32 v22, v22, v22")
        a("buffer_store_short v22, v17, s[44:47], s69 offen")
        self.stamp(9)
        self.finish()

    def reducer(self):
        a, c = self.a, self.c
        L, T = 32, 64
        a.label("L_RED")
        a("s_cmp_ge_u32 s2, 56")
        a("s_cbranch_scc1 L_RED_END")
        a("s_mul_i32 s64, s2, 4682")
        a("s_lshr_b32 s64, s64, 16")
        a("s_mul_i32 s65, s64, 14")
        a("s_sub_u32 s65, s2, s65")
        a("v_lshrrev_b32 v16, 4, v0")
        a("v_and_b32 v17, 7, v0")
        a("v_lshlrev_b32 v18, 5, v16")
        a("v_lshl_add_u32 v18, v17, 1, v18")
        a("s_mul_i32 s69, s64, 896")
        a("s_lshr_b32 s14, s65, 1")
        a("s_lshl_b32 s14, s14, 7")
        a("s_add_u32 s69, s69, s14")
        a("s_and_b32 s14, s65, 1")
        a("s_lshl_b32 s14, s14, 4")
        a("s_add_u32 s69, s69, s14")
        a("buffer_load_ushort v19, v18, s[52:55], s69 offen")
        a("v_mov_b32 v20, %d" % OOB)
        a("v_bfe_u32 v21, v0, 3, 1")
        a("v_mul_u32_u24 v21, %d, v21" % HREP_STRIDE)
        a("v_lshl_add_u32 v21, v16, 4, v21")
        a("v_cmp_eq_u32 vcc, 0, v17")
        a("s_lshl_b32 s70, s2, 7")
        a("s_add_u32 s70, s70, %d" % WS_H)
        a("v_cndmask_b32 v21, v20, v21, vcc")
        a("s_cmp_eq_u32 s2, 0")
        a("s_cbranch_scc0 L_RED_NOEP")
        a("v_mov_b32 v6, 0")
        a("v_mov_b32 v7, s68")
        a("s_mov_b64 exec, 1")
        a("buffer_store_dword v7, v6, s[48:51], 0 offen sc1")
        a("s_mov_b64 exec, -1")
        a.label("L_RED_NOEP")
        a("s_lshr_b32 s56, s2, 1")
        a("s_lshl_b32 s56, s56, 14")
        a("s_and_b32 s57, s2, 1")
        a("s_lshl_b32 s57, s57, 12")
        a("s_add_u32 s56, s56, s57")
        a("s_add_u32 s56, s56, %d" % (WS_A - 8192))
        self.wait_flag("v2", F_NEAR, 1, "v24", sleep=1)
        a("s_lshl_b32 s14, s14, 13")
        a("s_add_u32 s56, s56, s14")
        a("s_waitcnt vmcnt(0)")
        a("v_lshlrev_b32 v19, 16, v19")
        self.stamp(5)
        self.wait_flag("v2", F_VD, 4, "v24", sleep=1)
        self.stamp(6)
        self.inbox_reduce(4, "v4", ("s56", "s56"), L, T, "v22")
        a("v_cvt_pk_bf16_f32 v22, v22, v22")
        a("v_lshlrev_b32 v22, 16, v22")
        a("v_add_f32 v22, v19, v22")
        a("s_nop 1")
        a("v_mov_b32_dpp v23, v22 quad_perm:[1,0,3,2] row_mask:0xf bank_mask:0xf")
        a("v_cvt_pk_bf16_f32 v24, v22, v23")
        a("v_min_u32 v24, -2, v24")
        a("s_nop 1")
        a("v_mov_b32_dpp v25, v24 row_shl:2 row_mask:0xf bank_mask:0xf")
        a("v_mov_b32_dpp v26, v24 row_shl:4 row_mask:0xf bank_mask:0xf")
        a("v_mov_b32_dpp v27, v24 row_shl:6 row_mask:0xf bank_mask:0xf")
        for k in range(c.hrep // 2):
            a("buffer_store_dwordx4 v[24:27], v21, s[48:51], s70 offen sc1")
            if k + 1 < c.hrep // 2:
                a("s_add_u32 s70, s70, %d" % (2 * HREP_STRIDE))
        self.stamp(7)
        a.label("L_RED_END")
        self.finish()

    def ffn(self):
        a, c = self.a, self.c
        GF, DF, HF = 48, 104, 136
        a.label("L_FFN")
        a("v_lshrrev_b32 v22, 4, v0")
        a("v_bfe_u32 v23, v0, 2, 2")
        a("v_lshl_add_u32 v24, v22, 3, v23")
        a("v_lshlrev_b32 v20, 6, v24")
        a("v_and_b32 v24, 1, v0")
        a("v_lshl_add_u32 v20, v24, 3, v20")
        a("v_and_b32 v24, 1, v22")
        a("v_and_b32 v25, 2, v0")
        a("v_xor_b32 v24, v24, v25")
        a("v_xor_b32 v24, s11, v24")
        a("v_lshl_add_u32 v20, v24, 4, v20")
        a("v_mul_u32_u24 v25, %d, v25" % (28672 // 2))
        a("v_add_u32 v20, v20, v25")
        a("v_add_u32 v20, %d, v20" % GT)
        a("s_lshl_b32 s14, s11, 13")
        a("s_add_u32 s12, s14, %d" % DT)
        self.tr_addrs(12, "s12", "v24", "v25", "v26")
        a("v_mul_u32_u24 v21, %d, v23" % XN_STR)
        a("v_lshl_add_u32 v21, v22, 4, v21")
        a("v_add_u32 v21, %d, v21" % XN)
        a("s_mul_i32 s14, s11, %d" % XN_STR)
        a("s_add_u32 s14, s14, %d" % XN)
        a("v_lshrrev_b32 v24, 3, v0")
        a("v_lshlrev_b32 v6, 7, v24")
        a("v_and_b32 v24, 3, v0")
        a("v_lshl_add_u32 v6, v24, 5, v6")
        a("v_bfe_u32 v25, v0, 2, 1")
        a("v_lshl_add_u32 v6, v25, 4, v6")
        a("v_add_u32 v6, s14, v6")
        a("v_lshrrev_b32 v25, 2, v0")
        a("v_lshlrev_b32 v25, 7, v25")
        a("v_lshl_add_u32 v25, v24, 4, v25")
        a("v_max_u32 v5, v5, v25")
        a("v_lshlrev_b32 v24, 6, v23")
        a("v_lshl_add_u32 v24, v22, 4, v24")
        a("v_add_u32 v24, %d, v24" % ACT)
        a("v_mov_b32 v25, %d" % ZERO)
        a("v_and_b32 v26, 3, v0")
        for n in range(4):
            a("v_cmp_eq_u32 vcc, %d, v26" % n)
            a("s_nop 1")
            a("v_cndmask_b32 v%d, v25, v24, vcc" % (16 + n))
        a("v_and_b32 v24, 15, v0")
        a("v_lshlrev_b32 v7, 6, v22")
        a("v_lshl_add_u32 v7, v24, 1, v7")
        a("s_lshl_b32 s14, s11, 4")
        a("s_add_u32 s14, s14, %d" % ACT)
        a("v_add_u32 v7, s14, v7")
        a("v_mov_b32 v25, %d" % DUMP)
        a("v_cmp_gt_u32 vcc, 8, v24")
        a("s_nop 1")
        a("v_cndmask_b32 v7, v25, v7, vcc")
        a("v_bfe_u32 v26, v0, 3, 1")
        a("v_lshl_add_u32 v25, v22, 3, v26")
        a("v_lshlrev_b32 v25, 14, v25")
        a("v_and_b32 v26, 7, v0")
        a("v_lshl_add_u32 v23, v26, 4, v25")
        a("s_lshl_b32 s69, s11, 15")
        a("s_lshl_b32 s70, s62, 7")
        a("s_add_u32 s69, s69, s70")
        a("s_add_u32 s69, s69, %d" % WS_C)
        a("s_add_u32 s70, s69, 8192")
        self.wait_flag("v2", F_NEAR, 1, "v24", sleep=1)
        a("s_lshl_b32 s60, s4, 1")
        a("s_and_b32 s60, s60, %d" % (c.hrep - 2))
        a("s_add_u32 s60, s60, s14")
        a("s_sub_u32 s60, s60, 1")
        a("s_mul_i32 s60, s60, %d" % HREP_STRIDE)
        a("s_lshl_b32 s14, s67, 1")
        a("s_add_u32 s60, s60, s14")
        a("s_add_u32 s60, s60, %d" % WS_H)
        a("s_mov_b32 s61, %s" % f32(-LOG2E))
        a("buffer_load_dwordx4 v[8:11], v5, s[48:51], s60 offen sc1")
        AC = 24
        for k in range(4):
            a("v_mov_b32 v%d, 0x3f803f80" % (40 + k))
        a("v_mov_b32 v25, %d" % DUMP)
        a("v_cmp_gt_u32 vcc, 56, v0")
        a("s_lshl_b32 s14, s11, 3")
        a("s_add_u32 s14, s14, %d" % SCL)
        a("v_mov_b32 v38, s14")
        a("v_cndmask_b32 v6, v25, v6, vcc")
        a("v_lshlrev_b32 v39, 3, v22")
        a("v_add_u32 v39, %d, v39" % SCL)
        a("v_mov_b32 v37, %s" % f32(1.0 / 448))
        for k in range(16):
            a("v_mov_b32 v%d, 0" % (DF + 16 + k))
        self.wait_flag("v2", F_WO, 1, "v24", sleep=1)
        for s in range(14 + 6):
            if s < 14:
                for hh in range(2):
                    r = GF + 4 * s + 2 * hh
                    a("ds_read_b64_tr_b16 v[%d:%d], v20 offset:%d" % (r, r + 1, s * 2048 + hh * 256))
            p = s - 6
            if p >= 0:
                a("s_waitcnt lgkmcnt(%d)" % (2 * (min(s, 13) - p)))
                self.mfma(44, 40, GF + 4 * p, p == 0)
        self.wait_flag("v2", F_WO, 2, "v24")
        self.stamp(8)
        self.tile_reads(DF, 12, 0)
        a("s_cmp_eq_u32 s11, 3")
        a("s_cbranch_scc1 L_FFN_P7")
        a("s_waitcnt lgkmcnt(4)")
        self.tile_reads(DF + 16, 12, 4096)
        a.label("L_FFN_P7")
        a("s_mov_b32 s13, 0")
        a.label("L_HPOLL")
        a("buffer_load_dwordx4 v[8:11], v5, s[48:51], s60 offen sc1")
        a("s_waitcnt vmcnt(0)")
        a("v_max3_u32 v24, v8, v9, v10")
        a("v_max_u32 v24, v24, v11")
        a("v_cmp_eq_u32 vcc, -1, v24")
        a("s_cbranch_vccz L_HOK")
        a("s_add_u32 s13, s13, 1")
        a("s_cmp_lt_u32 s13, %d" % c.poll_max)
        a("s_cbranch_scc1 L_HPOLL")
        a.label("L_HOK")
        self.stamp(9)
        if not c.fold:
            self.layernorm(8, 24, 32)
            a("s_mov_b32 exec_hi, 0x00ffffff")
            a("ds_write_b128 v6, v[8:11]")
            a("s_mov_b64 exec, -1")
            a("s_waitcnt lgkmcnt(0)")
            a("s_barrier")
            for s in range(7):
                a("ds_read_b128 v[%d:%d], v21 offset:%d" % (HF + 4 * s, HF + 4 * s + 3, s * 64))
            for s in range(14):
                a("s_waitcnt lgkmcnt(%d)" % (6 if s < 7 else 13 - s))
                self.mfma(AC, HF + 4 * (s % 7), GF + 4 * s, s == 0)
                if s < 7:
                    a("ds_read_b128 v[%d:%d], v21 offset:%d" % (HF + 4 * s, HF + 4 * s + 3, (s + 7) * 64))
            a("s_nop 7")
            a("v_cvt_pk_bf16_f32 v28, v24, v24")
        else:
            a("ds_write_b128 v6, v[8:11]")
            for k in range(4):
                a("v_dot2_f32_bf16 v32, v%d, v%d, %s" % (8 + k, 8 + k, "v32" if k else "0"))
                a("v_dot2_f32_bf16 v33, v%d, v40, %s" % (8 + k, "v33" if k else "0"))
            a("s_waitcnt lgkmcnt(0)")
            a("s_barrier")
            ctls = ["row_shr:1 row_mask:0xf", "row_shr:2 row_mask:0xf", "row_shr:4 row_mask:0xf", "row_shr:8 row_mask:0xf",
                    "row_bcast:15 row_mask:0xa", "row_bcast:31 row_mask:0xc"]
            for s in range(14):
                a("ds_read_b128 v[%d:%d], v21 offset:%d" % (HF + 4 * s, HF + 4 * s + 3, s * 64))
                if s & 1 and s < 12:
                    for r in ("v32", "v33"):
                        a("v_add_f32_dpp %s, %s, %s %s bank_mask:0xf" % (r, r, r, ctls[s >> 1]))
            chain = [["v_readlane_b32 s58, v32, 63", "v_readlane_b32 s57, v33, 63"],
                     ["v_mul_f32 v35, s58, v37", "v_mul_f32 v34, s57, v37", "v_fma_f32 v35, -v34, v34, v35"],
                     ["v_max_f32 v35, 0, v35", "v_cvt_pk_bf16_f32 v36, v34, v35", "v_and_b32 v35, 0xffff0000, v36"],
                     ["v_lshlrev_b32 v34, 16, v36", "v_add_f32 v35, %s, v35" % f32(1e-5), "v_cvt_pk_bf16_f32 v35, v35, v35"],
                     ["v_lshlrev_b32 v35, 16, v35", "v_sqrt_f32 v35, v35"],
                     ["v_cvt_pk_bf16_f32 v35, v35, v35", "v_lshlrev_b32 v35, 16, v35", "v_rcp_f32 v35, v35"],
                     ["ds_write_b64 v38, v[34:35]"]]
            for ins in chain[0]:
                a(ins)
            for s in range(14):
                if s <= 5:
                    a("s_waitcnt lgkmcnt(%d)" % (13 - s))
                elif s <= 9:
                    a("s_waitcnt lgkmcnt(%d)" % (14 - s))
                self.mfma(AC, HF + 4 * s, GF + 4 * s, s == 0)
                if s + 1 < len(chain):
                    for ins in chain[s + 1]:
                        a(ins)
                if s == 9:
                    a("s_waitcnt lgkmcnt(0)")
                    a("s_barrier")
                    a("ds_read_b64 v[34:35], v39")
            a("s_nop 6")
            a("s_waitcnt lgkmcnt(0)")
            a("v_fma_f32 v28, -v34, v44, v24")
            a("v_mul_f32 v28, v28, v35")
            a("v_cvt_pk_bf16_f32 v28, v28, v28")
        a("v_lshlrev_b32 v28, 16, v28")
        a("v_mul_f32 v29, s61, v28")
        a("v_exp_f32 v29, v29")
        a("v_mov_b32_dpp v30, v28 row_ror:8 row_mask:0xf bank_mask:0xf")
        a("v_add_f32 v29, 1.0, v29")
        a("v_rcp_f32 v29, v29")
        a("s_nop 0")
        a("v_mul_f32 v29, v28, v29")
        a("v_cvt_pk_bf16_f32 v29, v29, v29")
        a("v_lshlrev_b32 v29, 16, v29")
        a("v_mul_f32 v29, v29, v30")
        a("v_cvt_pk_bf16_f32 v29, v29, v29")
        a("ds_write_b16 v7, v29")
        a("s_waitcnt lgkmcnt(0)")
        a("s_barrier")
        for n in range(4):
            a("ds_read_b128 v[%d:%d], v%d" % (HF + 4 * n, HF + 4 * n + 3, 16 + n))
        for pp in range(2):
            for n in range(4):
                if pp == 0:
                    a("s_waitcnt lgkmcnt(%d)" % (3 - n))
                self.mfma(24 + 4 * pp, HF + 4 * n, DF + 16 * pp + 4 * n, n == 0)
        a("s_nop 3")
        a("v_cvt_pk_bf16_f32 v32, v24, v25")
        a("v_cvt_pk_bf16_f32 v33, v26, v27")
        a("v_min_u32 v32, -2, v32")
        a("v_min_u32 v33, -2, v33")
        a("v_cvt_pk_bf16_f32 v34, v28, v29")
        a("v_cvt_pk_bf16_f32 v35, v30, v31")
        a("v_min_u32 v34, -2, v34")
        a("v_min_u32 v35, -2, v35")
        a("buffer_store_dwordx4 v[32:35], v23, s[48:51], s69 offen sc1")
        a("buffer_store_dwordx4 v[32:35], v23, s[48:51], s70 offen sc1")
        self.stamp(10)
        self.finish()


HEADER = """; Fused pre-LN decode block: sliding-window GQA attention + SwiGLU FFN in one launch (generated by gen_kernel.py).
"""


def generate(cfg):
    body = Gen(cfg).build()
    return f"""{HEADER}; @launch grid=(256,1,1) block=(512,1,1) lds={LDS_TOTAL}
.amdgcn_target "amdgcn-amd-amdhsa--gfx950"
.text
.globl {NAME}
.p2align {cfg.align}
.type {NAME},@function
{NAME}:
{body}
.section .rodata,"a"
.p2align 6
.amdhsa_kernel {NAME}
  .amdhsa_next_free_vgpr 192
  .amdhsa_next_free_sgpr 96
  .amdhsa_accum_offset 192
  .amdhsa_group_segment_fixed_size 0
  .amdhsa_kernarg_size 96
  .amdhsa_user_sgpr_count 2
  .amdhsa_user_sgpr_kernarg_segment_ptr 1
  .amdhsa_system_sgpr_workgroup_id_x 1
  .amdhsa_float_denorm_mode_32 3
.end_amdhsa_kernel
"""


if __name__ == "__main__":
    cfg = Cfg()
    out = sys.argv[1]
    for kv in sys.argv[2:]:
        k, v = kv.split("=")
        cur = getattr(cfg, k)
        setattr(cfg, k, (v == "1") if isinstance(cur, bool) else type(cur)(v))
    open(out, "w").write(generate(cfg))
```
